```python
import torch

def _softmax(x, axis=-1):
    return torch.softmax(x, dim=axis)
def _gelu(x):
    return torch.nn.functional.gelu(x, approximate="tanh")
def _silu(x):
    return torch.nn.functional.silu(x)
def _sigmoid(x):
    return torch.sigmoid(x)
def _layernorm(x, axis=-1, eps=1e-5):
    m = x.mean(dim=axis, keepdim=True)
    v = x.var(dim=axis, keepdim=True, unbiased=False)
    return (x - m) / torch.sqrt(v + eps)
def _scatter_add(tgt, idx, src, axis=0):
    return tgt.clone().index_add_(axis, idx, src)
def _segment_sum(src, seg, n):
    out = torch.zeros((n,) + src.shape[1:], dtype=src.dtype)
    return out.index_add_(0, seg, src)
def _pad(x, pw):
    flat = tuple(v for pair in reversed(pw) for v in pair)
    return torch.nn.functional.pad(x, flat)

kernel_name = 'gated_mix__sliding_block_cached__dense_activation_relu__decode'

def setup_inputs():

    _w = (lambda a: (lambda t: t.to(torch.bfloat16) if t.is_floating_point() else t)(torch.as_tensor(a)))
    def _A_setup():
        B, Sq, D = 8, 1, 1024
        Hq, Hkv, Sk, Dh = 32, 4, 4096, 128
        assert Hq % Hkv == 0, (Hq, Hkv)
        return {
            "x": _w((lambda *s: torch.randn(*s, dtype=torch.bfloat16) * 0.05)(B, Sq, D)),
            "k_cache": _w((lambda *s: torch.randn(*s, dtype=torch.bfloat16) * 6.4)(B, Hkv, Sk, Dh)),
            "v_cache": _w((lambda *s: torch.randn(*s, dtype=torch.bfloat16) * 0.4)(B, Hkv, Sk, Dh)),
            "wq": _w((lambda *s: torch.randn(*s, dtype=torch.bfloat16) * 6.4)(D, Hq * Dh) * (D ** -0.5)),
            "wo": _w((lambda *s: torch.randn(*s, dtype=torch.bfloat16) * 0.4)(Hq * Dh, D) * ((Hq * Dh) ** -0.5)),
        }
    _A_in = _A_setup()

    def _B_setup():
        B, S, D, Dff = 8, 1, 1024, 3584
        return {
            "x": _w((lambda *s: torch.randn(*s, dtype=torch.bfloat16) * 0.05)(B, S, D)),
            "w1": _w((lambda *s: torch.randn(*s, dtype=torch.bfloat16) * 0.05)(D, Dff)),
            "w2": _w((lambda *s: torch.randn(*s, dtype=torch.bfloat16) * 0.05)(Dff, D)),
        }
    _B_in = _B_setup()

    return {
        "A_x": _A_in["x"],
        "A_k_cache": _A_in["k_cache"],
        "A_v_cache": _A_in["v_cache"],
        "A_wq": _A_in["wq"],
        "A_wo": _A_in["wo"],
        "B_x": _B_in["x"],
        "B_w1": _B_in["w1"],
        "B_w2": _B_in["w2"],
        "gate_w": _w((lambda *s: torch.randn(*s, dtype=torch.bfloat16) * 0.05)(1024) * 16.0),
    }

def reference(A_x, A_k_cache, A_v_cache, A_wq, A_wo, B_x, B_w1, B_w2, gate_w):
    def _A_ref(x, k_cache, v_cache, wq, wo):
        B, Sq, D = x.shape
        Hq, Dh = 32, 128
        Hkv, Sk = k_cache.shape[1], k_cache.shape[2]
        W = min(4096, max(256, Sk // 4))
        rep = Hq // Hkv
        q = (lambda x, *d: x.permute(*d))((x @ wq).reshape(B, Sq, Hq, Dh), 0, 2, 1, 3)
        k = (lambda x, n, axis: torch.repeat_interleave(x, n, dim=axis))(k_cache[:, :, Sk - W:, :], rep, axis=1)
        v = (lambda x, n, axis: torch.repeat_interleave(x, n, dim=axis))(v_cache[:, :, Sk - W:, :], rep, axis=1)
        scores = torch.einsum("bhqd,bhkd->bhqk", q, k) * (Dh ** -0.5)
        p = _softmax(scores, axis=-1)
        o = torch.einsum("bhqk,bhkd->bhqd", p, v)
        return (lambda x, *d: x.permute(*d))(o, 0, 2, 1, 3).reshape(B, Sq, Hq * Dh) @ wo

    def _B_ref(x, w1, w2):
        h = torch.einsum("bsd,df->bsf", x, w1)
        zero = torch.zeros_like(h)
        h = torch.maximum(h, zero)
        return torch.einsum("bsf,fd->bsd", h, w2)

    x = A_x
    g = _sigmoid((x * gate_w).sum(-1, keepdims=True))
    a = _A_ref(x, A_k_cache, A_v_cache, A_wq, A_wo)
    b = _B_ref(x, B_w1, B_w2)
    return g * a + (1 - g) * b
```

```python
import re

TRANS = ("v_exp_f32", "v_log_f32", "v_rcp_f32", "v_rsq_f32", "v_sqrt_f32", "v_sin_f32", "v_cos_f32")

def regs_of(tok):
    tok = tok.strip()
    neg = tok.lstrip("-")
    m = re.fullmatch(r"(?:abs\()?\|?([vsa])\[(\d+):(\d+)\]\|?\)?", neg)
    if m:
        return {(m.group(1), i) for i in range(int(m.group(2)), int(m.group(3)) + 1)}
    m = re.fullmatch(r"(?:abs\()?\|?([vsa])(\d+)\|?\)?", neg)
    if m:
        return {(m.group(1), int(m.group(2)))}
    if neg in ("vcc", "vcc_lo", "vcc_hi"):
        return {("x", "vcc")}
    if neg in ("exec", "exec_lo", "exec_hi"):
        return {("x", "exec")}
    if neg == "m0":
        return {("x", "m0")}
    return set()

class Ins:
    def __init__(self, text):
        self.text = text
        t = text.split(";")[0].strip()
        parts = t.split(None, 1)
        self.op = parts[0]
        rest = parts[1] if len(parts) > 1 else ""
        toks = [x.strip() for x in rest.split(",")] if rest else []
        self.mods = ""
        if toks:
            lp = toks[-1].split(None, 1)
            toks[-1] = lp[0]
            self.mods = lp[1] if len(lp) > 1 else ""
        self.toks = toks
        op = self.op
        self.is_mfma = op.startswith("v_mfma")
        self.is_valu = op.startswith("v_") and not self.is_mfma
        self.is_salu = op.startswith("s_") and not op.startswith(("s_load", "s_waitcnt", "s_nop", "s_barrier", "s_branch", "s_cbranch", "s_endpgm", "s_sleep", "s_setprio", "s_mem", "s_buffer_load"))
        self.is_vmem = op.startswith(("buffer_", "global_", "flat_"))
        self.is_ds = op.startswith("ds_")
        self.is_trans = op.replace("_e32", "").replace("_e64", "") in TRANS
        self.is_dpp = "_dpp" in op or "row_" in self.mods or "quad_perm" in self.mods
        self.is_permlane = op.startswith("v_permlane")
        self.is_rfl = op.startswith(("v_readfirstlane", "v_readlane"))
        self.is_lane = op.startswith(("v_readlane", "v_writelane"))
        self.ldsdma = self.is_vmem and (" lds" in " " + self.mods or "_lds_" in op)
        R = [regs_of(x) for x in toks]
        W = set(); S = set()
        self.srcC = set(); self.srcAB = set(); self.store_data = set()
        if self.is_mfma:
            W = R[0]; self.srcAB = R[1] | R[2]; self.srcC = R[3]; S = self.srcAB | self.srcC
        elif self.is_valu:
            if self.is_permlane and "swap" in op:
                W = R[0] | R[1]; S = R[0] | R[1]
            elif op.startswith("v_cmp"):
                W = R[0]; S = set().union(*R[1:])
                if op.startswith("v_cmpx"): W = W | {("x", "exec")}
            elif "_co_" in op:
                W = R[0] | R[1]; S = set().union(*R[2:])
            else:
                W = R[0]; S = set().union(*R[1:]) if len(R) > 1 else set()
                if op.startswith(("v_fmac", "v_dot2c", "v_writelane", "v_mac")) or self.is_dpp: S = S | R[0]
                if op.startswith("v_cndmask") and len(toks) == 3: S = S | {("x", "vcc")}
        elif self.is_vmem:
            if "store" in op or ("atomic" in op):
                S = set().union(*R)
                if op.startswith("buffer_"): self.store_data = R[0]
                else: self.store_data = R[1]
                if not re.search(r"x[34]$", op): self.store_data = set()
            elif self.ldsdma:
                S = set().union(*R) | {("x", "m0")}
            elif op in ("buffer_inv", "buffer_wbl2"):
                pass
            else:
                W = R[0]; S = set().union(*R[1:])
        elif self.is_ds:
            if op.startswith(("ds_read", "ds_bpermute", "ds_permute", "ds_swizzle")) or "_rtn_" in op:
                W = R[0]; S = set().union(*R[1:])
            else:
                S = set().union(*R)
        elif self.is_salu or op.startswith(("s_load", "s_mem")):
            if op.startswith("s_cmp") or op.startswith("s_bitcmp"):
                S = set().union(*R) if R else set()
            elif R:
                W = R[0]; S = set().union(*R[1:]) if len(R) > 1 else set()
                if "saveexec" in op: W = W | {("x", "exec")}
        self.W = W; self.S = S
        self.states = 1
        if op == "s_nop": self.states = int(toks[0], 0) + 1

def need(p, c):
    n = 0
    pv = {r for r in p.W if r[0] in "va"}
    ps = {r for r in p.W if r[0] == "s" or r == ("x", "vcc")}
    if p.is_valu:
        if c.is_mfma and pv & c.S: n = max(n, 2)
        if c.is_rfl and pv & c.S: n = max(n, 1)
        if c.is_valu and (c.is_dpp or c.is_permlane) and pv & c.S: n = max(n, 2)
        if p.is_trans and c.is_valu and not c.is_trans and pv & (c.S | c.W): n = max(n, 1)
        if p.is_trans and (c.is_ds or c.is_vmem) and pv & c.S: n = max(n, 1)
        if ps:
            if c.is_valu and ps & c.S: n = max(n, 4 if c.is_lane else 2)
            if c.is_vmem and ps & c.S: n = max(n, 5)
        if ("x", "exec") in p.W:
            raise Exception("VALU exec write not modelled")
    if p.is_mfma:
        passes = 8 if "32x32" in p.op else 4
        big = {4: 8, 8: 12}[passes]
        if c.is_mfma:
            if pv & c.srcAB: n = max(n, big)
            if pv & c.srcC and not (c.srcC == pv and c.op == p.op): n = max(n, {4: 6, 8: 10}[passes])
            if pv & c.W and not (c.srcC == pv and c.op == p.op): n = max(n, big)
        elif c.is_valu or c.is_vmem or c.is_ds:
            if pv & (c.S | c.W): n = max(n, big)
        if c.is_valu and p.srcC & c.W: n = max(n, {4: 3, 8: 7}[passes])
    if p.is_salu and ("x", "m0") in p.W and c.ldsdma: n = max(n, 1)
    if p.store_data and p.store_data & c.W: n = max(n, 2)
    return n

class Asm:
    def __init__(self):
        self.items = []
        self.uid = 0
    def __call__(self, text):
        for line in text.split("\n"):
            line = line.strip()
            if not line: continue
            if line.endswith(":") or line.startswith(".") or line.startswith(";"):
                self.items.append(line)
            else:
                self.items.append(Ins(line))
    def lab(self, base="L"):
        self.uid += 1
        return f"{base}_{self.uid}"
    def render(self):
        out = []
        hist = []
        labels = {}
        for it in self.items:
            if isinstance(it, str):
                out.append(it)
                continue
            req = 0
            dist = 0
            for p in reversed(hist):
                r = need(p, it) - dist
                if r > req: req = r
                dist += p.states
                if dist >= 20: break
            if req > 0:
                nop = Ins(f"s_nop {req-1}")
                out.append("    " + nop.text); hist.append(nop)
            out.append("    " + it.text)
            hist.append(it)
            if it.op in ("s_branch", "s_endpgm", "s_setpc_b64"):
                hist = []
            hist = hist[-24:]
        return "\n".join(out) + "\n"
```

```python
import sys
sys.path.insert(0, "work")
from asmlib import Asm

NAME = "gated_mix__sliding_block_cached__dense_activation_relu__decode_kernel"
HEADER = open("gated_mix__sliding_block_cached__dense_activation_relu__decode.s.ref").read().split("; Override launch")[0]

EPOCH = 0
HINTQ = 0x1000
HINTH = 0x2000
QP = 0x10000
HP = 0x90000
OP = 0x110000
LSE = 0x210000
FP = 0x220000
WS_USED = 0x400000
DIAG = 0x400000
R0, R1, R2, R3, M = 0x0, 0x8000, 0x10000, 0x18000, 0x20000
XS = M
QB = M + 0x1000
OB = M + 0x1A00
AC = M + 0x2C00
ST = M + 0x6E00
FL = M + 0x7000
LDS_BYTES = 160 * 1024
TAGK = 0x9E3779B1
SPIN_LIMIT = 400000
L2E = 0x3FB8AA3B
SCALE = 0x3DB504F3

def gen(D_early=32, D_late=32, diag=False, mimic=True, gflags="sc1", hint_sleep=0, code_pf=True):
    A = Asm()
    nst = [0]
    SP = [68, 70, 72, 74, 76, 78, 80, 82, 62, 100, 32, 36]
    def stamp(i):
        if diag: A(f"s_memrealtime s[{SP[i]}:{SP[i]+1}]")
    def dump_stamps(n):
        if not diag: return
        A("s_waitcnt lgkmcnt(0)")
        A("s_lshl_b32 s60, s2, 4"); A("s_add_u32 s60, s60, s3"); A("s_lshl_b32 s60, s60, 6"); A(f"s_add_u32 s60, s60, {DIAG}")
        A("s_mov_b64 exec, 1")
        A("v_mov_b32 v2, 0")
        for i in range(n):
            A(f"v_mov_b32 v3, s{SP[i]}")
            A(f"buffer_store_dword v3, v2, s[44:47], s60 offen offset:{4*i}")
    def spin_tail(L, Ld):
        A("s_add_u32 s41, s41, 1"); A(f"s_cmp_lt_u32 s41, {SPIN_LIMIT}"); A(f"s_cbranch_scc1 {L}"); A(f"{Ld}:")
    def wait_lds(vaddr, th, vt="v2", sth=None):
        L = A.lab("W"); Ld = L + "d"
        A(f"{L}:")
        A(f"ds_read_b32 {vt}, {vaddr}")
        A("s_waitcnt lgkmcnt(0)")
        A(f"v_cmp_gt_u32 vcc, {sth if sth else th}, {vt}")
        A(f"s_cbranch_vccz {Ld}")
        spin_tail(L, Ld)
    def srd(d, b, size):
        A(f"s_mov_b32 s{d}, s{b}"); A(f"s_mov_b32 s{d+1}, s{b+1}"); A(f"s_mov_b32 s{d+2}, {size:#x}"); A(f"s_mov_b32 s{d+3}, 0x20000")

    A(f"{NAME}:")
    A("s_cmp_ge_u32 s2, 256")
    A("s_cbranch_scc1 L_exit")
    A("s_load_dwordx16 s[16:31], s[0:1], 0")
    A("s_load_dwordx8 s[32:39], s[0:1], 64")
    stamp(0)
    A("v_lshrrev_b32 v2, 6, v0")
    A("v_and_b32 v1, 63, v0")
    A("v_readfirstlane_b32 s3, v2")
    A("s_mov_b32 s41, 0")
    A("s_lshr_b32 s4, s2, 6")
    A("s_and_b32 s5, s2, 63")
    A("s_and_b32 s6, s2, 7")
    A("s_lshr_b32 s7, s2, 3")
    A("s_cmp_eq_u32 s3, 0")
    A("s_cbranch_scc1 L_loader")
    if code_pf:
        A("s_getpc_b64 s[54:55]")
        A("L_pc:")
        A("v_subrev_u32 v2, 64, v0"); A("v_lshlrev_b32 v2, 7, v2"); A("v_min_u32 v2, L_codeend-L_pc-4, v2")
        A("global_load_dword v144, v2, s[54:55]")
    A("s_branch L_notloader")
    A("L_loader:")

    A("s_setprio 3")
    A("v_lshrrev_b32 v2, 5, v1"); A("v_lshlrev_b32 v2, 11, v2"); A("v_and_b32 v3, 31, v1"); A("v_lshl_add_u32 v4, v3, 4, v2")
    A("v_lshrrev_b32 v2, 3, v1"); A("v_and_b32 v2, 6, v2")
    A("v_and_b32 v3, 7, v1"); A("v_xor_b32 v3, v3, v2"); A("v_lshlrev_b32 v12, 4, v3")
    A("v_lshrrev_b32 v13, 3, v1")
    A("v_lshl_add_u32 v5, v13, 13, v12")
    A("s_lshl_b32 s8, s4, 9")
    A("s_lshl_b32 s9, s4, 21"); A("s_lshl_b32 s10, s5, 7"); A("s_add_u32 s9, s9, s10")
    A(f"s_mov_b32 s11, {XS}")
    A("s_waitcnt lgkmcnt(0)")
    srd(44, 16, 16384)
    srd(48, 22, 8 << 20)
    for i in range(4):
        A("s_mov_b32 m0, s11"); A("s_add_u32 s11, s11, 1024")
        A("buffer_load_dwordx4 v4, s[44:47], s8 offen lds"); A("s_add_u32 s8, s8, 4096")
    n = [4]
    A(f"v_mov_b32 v10, {FL}"); A("v_lshl_add_u32 v10, v1, 2, v10")
    barrier_done = [False]
    def seg(vregs, srdn, soff, step, ldsbase, count, D, label):
        first = 0
        A(f"s_mov_b32 s11, {ldsbase}")
        if not barrier_done[0]:
            burst = min(count, (D - n[0]) // 4 * 4)
            A(f"s_mov_b32 s13, {burst // 4}")
            A(f"{label}_b:")
            for u in range(4):
                A("s_mov_b32 m0, s11"); A("s_add_u32 s11, s11, 1024")
                A(f"buffer_load_dwordx4 {vregs[u]}, s[{srdn}:{srdn+3}], {soff} offen nt lds"); A(f"s_add_u32 {soff}, {soff}, {step}")
            A("s_sub_u32 s13, s13, 1"); A("s_cmp_lg_u32 s13, 0"); A(f"s_cbranch_scc1 {label}_b")
            n[0] += burst; first = burst
            post_burst()
            A("s_barrier")
            barrier_done[0] = True
            A(f"s_mov_b32 s14, {n[0]}")
        rem = count - first
        if rem:
            A(f"s_mov_b32 s13, {rem // 4}")
            A(f"{label}:")
            for u in range(4):
                A(f"s_waitcnt vmcnt({D-1})")
                if u == 3:
                    A(f"s_add_i32 s12, s14, {4 - D}"); A("s_max_i32 s12, s12, 0")
                    A("v_mov_b32 v11, s12"); A("ds_write_b32 v10, v11")
                A("s_mov_b32 m0, s11"); A("s_add_u32 s11, s11, 1024")
                A(f"buffer_load_dwordx4 {vregs[u]}, s[{srdn}:{srdn+3}], {soff} offen nt lds"); A(f"s_add_u32 {soff}, {soff}, {step}")
            A("s_add_u32 s14, s14, 4")
            A("s_sub_u32 s13, s13, 1"); A("s_cmp_lg_u32 s13, 0"); A(f"s_cbranch_scc1 {label}")
    def post_burst():
        srd(52, 18, 32 << 20)
        srd(56, 20, 32 << 20)
        srd(60, 28, 7 << 20)
        A("v_lshrrev_b32 v2, 4, v1"); A("v_and_b32 v3, 15, v1"); A("v_xor_b32 v6, v3, v2"); A("v_lshlrev_b32 v6, 4, v6")
        A("v_lshl_add_u32 v16, v2, 8, v6"); A("v_xor_b32 v17, 64, v16"); A("v_xor_b32 v18, 0x80, v16"); A("v_xor_b32 v19, 0xc0, v16")
        A("v_lshlrev_b32 v6, 1, v2"); A("v_xor_b32 v6, v3, v6"); A("v_lshlrev_b32 v6, 4, v6")
        A("v_lshl_add_u32 v20, v2, 8, v6"); A("v_xor_b32 v21, 0x80, v20")
        A("v_lshl_add_u32 v22, v2, 11, v6"); A("v_xor_b32 v23, 0x80, v22")
        A("v_mul_u32_u24 v24, 0x1c00, v13"); A("v_add_u32 v24, v24, v12")
        A("v_lshrrev_b32 v2, 5, v1"); A("v_and_b32 v3, 31, v1"); A("v_lshlrev_b32 v6, 1, v2"); A("v_xor_b32 v6, v3, v6"); A("v_lshlrev_b32 v6, 4, v6")
        A("v_lshl_add_u32 v25, v2, 11, v6"); A("v_xor_b32 v26, 64, v25"); A("v_xor_b32 v27, 0x80, v25"); A("v_xor_b32 v28, 0xc0, v25")
        A("s_lshr_b32 s8, s7, 3"); A("s_lshl_b32 s8, s8, 3"); A("s_add_u32 s8, s8, s6"); A("s_lshl_b32 s8, s8, 20")
        A("s_and_b32 s10, s7, 7"); A("s_lshl_b32 s10, s10, 15"); A("s_add_u32 s8, s8, s10"); A(f"s_add_u32 s8, s8, {3072*256}")
        A("s_mov_b32 s15, s8")
        A(f"s_mul_i32 s42, s4, {256*7168}"); A("s_lshl_b32 s10, s5, 7"); A("s_add_u32 s42, s42, s10")
        A(f"v_mov_b32 v29, {FL+256}"); A("v_and_b32 v2, 3, v1"); A("v_lshl_add_u32 v29, v2, 8, v29")
    seg(["v5"]*4, 48, "s9", 65536, R0, 32, D_early, "L_wq")
    seg(["v16", "v17", "v18", "v19"], 52, "s8", 1024, R1, 32, D_early, "L_k")
    seg(["v20", "v21", "v20", "v21"], 56, "s15", 1024, R2, 32, D_early, "L_v")
    A("s_cmp_ge_u32 s5, 56"); A("s_cbranch_scc1 L_now1")
    seg(["v24"]*4, 60, "s42", 8*7168, R3, 32, D_early, "L_w1")
    A("L_now1:")
    stamp(1)
    if D_early > 32:
        A("s_waitcnt vmcnt(32)"); A("s_sub_u32 s12, s14, 32"); A("v_mov_b32 v11, s12"); A("ds_write_b32 v10, v11")
    wait_lds("v29", 2)
    A("s_cmp_ge_u32 s7, 16"); A("s_cbranch_scc1 L_ldw2")
    srd(64, 24, 8 << 20)
    A("s_lshl_b32 s8, s6, 2"); A("s_lshr_b32 s10, s7, 2"); A("s_add_u32 s8, s8, s10"); A("s_lshl_b32 s8, s8, 18")
    A("s_and_b32 s10, s7, 3"); A("s_lshl_b32 s10, s10, 9"); A("s_add_u32 s8, s8, s10")
    seg(["v25", "v26", "v27", "v28"], 64, "s8", 4096, R0, 64, D_late, "L_wo")
    A("s_branch L_drain")
    A("L_ldw2:")
    srd(64, 30, 7 << 20)
    A("s_lshl_b32 s8, s6, 1"); A("s_bfe_u32 s10, s7, 0x10003"); A("s_add_u32 s8, s8, s10"); A(f"s_mul_i32 s8, s8, {224*2048}")
    A("s_and_b32 s10, s7, 7"); A("s_lshl_b32 s10, s10, 8"); A("s_add_u32 s8, s8, s10")
    seg(["v22", "v23", "v22", "v23"], 64, "s8", 8192, R0, 56, D_late, "L_w2")
    A("L_drain:")
    for k in range(D_late - 4, -1, -4):
        A(f"s_waitcnt vmcnt({k})")
        A(f"s_sub_u32 s12, s14, {k}"); A("v_mov_b32 v11, s12"); A("ds_write_b32 v10, v11")
    stamp(2)
    if diag:
        srd(44, 38, 0x800000)
        dump_stamps(3)
    A("L_exit:")
    A("s_endpgm")

    A("L_notloader:")
    A("v_and_b32 v4, 15, v1")
    A("v_lshrrev_b32 v5, 4, v1")
    A("v_and_b32 v6, 7, v1")
    A(f"v_mov_b32 v7, {FL}")
    A(f"v_mov_b32 v8, {FL+256}"); A("v_and_b32 v2, 3, v1"); A("v_lshl_add_u32 v8, v2, 8, v8")
    A("s_lshl_b32 s8, s3, 8"); A(f"s_add_u32 s8, s8, {FL}"); A("v_lshl_add_u32 v9, v1, 2, s8")
    A("v_lshlrev_b32 v10, 9, v6"); A("v_lshl_add_u32 v10, v5, 3, v10"); A(f"v_add_u32 v10, {XS}, v10")
    A("v_lshrrev_b32 v11, 2, v1")
    A("v_and_b32 v12, 3, v1"); A("v_lshlrev_b32 v12, 3, v12")
    A("s_mov_b32 s48, 0x00ff00ff"); A("s_mov_b32 s49, 0x00ff00ff")
    A("s_mov_b32 s50, 0xff00ff00"); A("s_mov_b32 s51, 0xff00ff00")
    A("s_cmp_lg_u32 s3, 8"); A("s_cbranch_scc1 L_noinit")
    A("v_mov_b32 v16, 0"); A("v_mov_b32 v17, 0"); A("v_mov_b32 v18, 0"); A("v_mov_b32 v19, 0")
    A(f"v_mov_b32 v2, {FL}"); A("v_lshl_add_u32 v2, v1, 4, v2")
    A("ds_write_b128 v2, v[16:19]"); A("ds_write_b128 v2, v[16:19] offset:1024")
    A("L_noinit:")
    A("s_waitcnt lgkmcnt(0)")
    srd(44, 38, 0x800000 if diag else WS_USED)
    A("s_cmp_ge_u32 s3, 5"); A("s_cbranch_scc1 L_B")

    def p1_gemv(region, qs, dst_base, hint_base, label):
        A("v_lshrrev_b32 v2, 1, v11"); A("v_and_b32 v2, 3, v2"); A(f"v_xor_b32 v2, {qs}, v2"); A("v_lshlrev_b32 v2, 5, v2")
        A("v_lshl_add_u32 v13, v11, 7, v2"); A("v_add_u32 v13, v13, v12")
        if region >= 0x10000:
            A(f"v_add_u32 v13, {region}, v13"); ro = 0
        else:
            ro = region
        return ro
    def p1_run(ro):
        for ks in range(8):
            A(f"ds_read_b64_tr_b16 v[{64+4*ks}:{65+4*ks}], v13 offset:{ro + ks*4096}")
            A(f"ds_read_b64_tr_b16 v[{66+4*ks}:{67+4*ks}], v13 offset:{ro + ks*4096 + 2048}")
        for ks in range(8):
            A(f"s_waitcnt lgkmcnt({min(15, 14 - 2*ks)})")
            c = "0" if ks == 0 else "v[16:19]"
            A(f"v_mfma_f32_16x16x32_bf16 v[16:19], v[{64+4*ks}:{67+4*ks}], v[{32+4*ks}:{35+4*ks}], {c}")
    def xfrags():
        wait_lds("v7", 4)
        for ks in range(8):
            A(f"ds_read2_b64 v[{32+4*ks}:{35+4*ks}], v10 offset0:{ks*8} offset1:{ks*8+4}")
    def p1_publish(qs, base, hint):
        A("v_cvt_pk_bf16_f32 v20, v16, v17"); A("v_cvt_pk_bf16_f32 v22, v18, v19")
        A("v_mov_b32 v21, v15"); A("v_mov_b32 v23, v15")
        A("s_mov_b64 exec, s[48:49]")
        A("buffer_store_dwordx4 v[20:23], v14, s[44:47], s52 offen sc1")
        Lh = A.lab("H")
        A(f"s_cmp_lg_u32 {qs}, 3"); A(f"s_cbranch_scc1 {Lh}")
        A("s_mov_b64 exec, 1")
        A("v_mov_b32 v2, 0")
        A("buffer_store_dword v15, v2, s[44:47], s53 offen sc1")
        A(f"{Lh}:")
        A("s_mov_b64 exec, -1")
    def p1_addr(qs, base, hint):
        A("v_lshlrev_b32 v14, 14, v6"); A("v_lshl_add_u32 v14, v5, 4, v14")
        A("s_lshl_b32 s52, s4, 17"); A("s_lshl_b32 s8, s5, 8"); A("s_add_u32 s52, s52, s8")
        A(f"s_lshl_b32 s8, {qs}, 6"); A("s_add_u32 s52, s52, s8"); A(f"s_add_u32 s52, s52, {base}")
        A("s_lshl_b32 s53, s5, 4"); A("s_lshl_b32 s8, s4, 2"); A("s_add_u32 s53, s53, s8"); A(f"s_add_u32 s53, s53, {hint}")
    def flag(stage):
        A(f"v_mov_b32 v2, {stage}"); A("ds_write_b32 v9, v2")
    def hint_poll(nblk, stride_tag):
        pass

    A("s_load_dword s40, s[38:39], 0 glc")
    A("s_sub_u32 s9, s3, 1")
    ro = p1_gemv(R0, "s9", QP, HINTQ, "A")
    p1_addr("s9", QP, HINTQ)
    A("s_barrier")
    xfrags()
    A("s_waitcnt lgkmcnt(0)")
    A(f"s_add_u32 s40, s40, {TAGK:#x}"); A("s_mov_b32 s42, s40"); A("s_mov_b32 s43, s40")
    A("v_mov_b32 v15, s40")
    A("s_lshr_b32 s10, s7, 3"); A("s_lshl_b32 s10, s10, 3"); A("s_add_u32 s10, s10, s6")
    A("s_lshr_b32 s11, s10, 2")
    A("s_and_b32 s12, s10, 3")
    A("s_and_b32 s13, s7, 7")
    A("v_xor_b32 v2, v5, v4"); A("v_lshlrev_b32 v2, 4, v2"); A("v_lshl_add_u32 v24, v4, 8, v2")
    A("s_lshl_b32 s8, s9, 13"); A(f"s_add_u32 s8, s8, {R1}"); A("v_add_u32 v24, s8, v24")
    A("v_xor_b32 v25, 64, v24"); A("v_xor_b32 v26, 0x80, v24"); A("v_xor_b32 v27, 0xc0, v24")
    A("v_and_b32 v2, 7, v11"); A("v_lshlrev_b32 v2, 5, v2"); A("v_lshl_add_u32 v28, v11, 8, v2"); A("v_add_u32 v28, v28, v12")
    A("s_lshl_b32 s8, s9, 13"); A(f"s_add_u32 s8, s8, {R2}"); A("v_add_u32 v28, s8, v28")
    A("s_lshl_b32 s14, s9, 3"); A("s_add_u32 s15, s14, 76"); A("s_add_u32 s14, s14, 44")
    wait_lds("v7", 36)
    stamp(1)
    p1_run(ro)
    p1_publish("s9", QP, HINTQ)
    stamp(2)
    A(f"v_mov_b32 v3, {FL + 6*256}"); A("v_lshl_add_u32 v3, v1, 2, v3"); A("ds_write_b32 v3, v15")
    flag(1)
    wait_lds("v7", None, sth="s14")
    for t in range(2):
        for s in range(4):
            A(f"ds_read_b128 v[{32+16*t+4*s}:{35+16*t+4*s}], v{24+s} offset:{t*4096}")
    A("v_lshlrev_b32 v29, 4, v1")
    A("s_lshl_b32 s56, s11, 14"); A("s_lshl_b32 s8, s12, 12"); A("s_add_u32 s56, s56, s8"); A("s_lshl_b32 s8, s9, 10"); A("s_add_u32 s56, s56, s8")
    A(f"s_add_u32 s56, s56, {QP}"); A("s_add_u32 s57, s56, 0x20000"); A("s_add_u32 s58, s56, 0x40000"); A("s_add_u32 s59, s56, 0x60000")
    A("s_lshl_b32 s8, s12, 8"); A("s_lshl_b32 s54, s9, 6"); A("s_add_u32 s8, s8, s54"); A(f"s_add_u32 s8, s8, {HINTQ}")
    A("s_add_u32 s54, s38, s8"); A("s_addc_u32 s55, s39, 0")
    A("v_lshrrev_b32 v2, 5, v1"); A("v_mul_u32_u24 v2, 288, v2"); A("v_and_b32 v3, 31, v1"); A("v_lshl_add_u32 v30, v3, 3, v2")
    A("s_mul_i32 s8, s9, 576"); A(f"s_add_u32 s8, s8, {QB}"); A("v_add_u32 v30, s8, v30")
    A("v_mul_u32_u24 v31, 288, v6"); A("v_lshl_add_u32 v31, v5, 4, v31"); A(f"v_add_u32 v31, {QB}, v31")
    A("s_waitcnt lgkmcnt(0)")
    flag(2)
    stamp(3)
    def hint16():
        L = A.lab("P"); Ld = L + "d"; Lr = L + "r"
        A(f"{L}:")
        A("s_load_dwordx16 s[84:99], s[54:55], 0 glc")
        A("s_waitcnt lgkmcnt(0)")
        for i in range(8):
            A(f"s_cmp_eq_u64 s[{84+2*i}:{85+2*i}], s[42:43]"); A(f"s_cbranch_scc0 {Lr}")
        A(f"s_branch {Ld}")
        A(f"{Lr}:")
        if hint_sleep: A(f"s_sleep {hint_sleep}")
        spin_tail(L, Ld)
    def tagcheck(regs, L, Ld):
        A(f"v_xor_b32 v2, {regs[0]}, v15")
        for r in regs[1:]:
            A(f"v_bitop3_b32 v2, v2, {r}, v15 bitop3:0xf6")
        A("v_cmp_ne_u32 vcc, 0, v2")
        A(f"s_cbranch_vccz {Ld}")
        spin_tail(L, Ld)
    hint16()
    stamp(4)
    L = A.lab("G"); Ld = L + "d"
    A(f"{L}:")
    for sp in range(4):
        A(f"buffer_load_dwordx4 v[{64+4*sp}:{67+4*sp}], v29, s[44:47], s{56+sp} offen {gflags}")
    A("s_waitcnt vmcnt(0)")
    tagcheck([f"v{65+2*i}" for i in range(8)], L, Ld)
    stamp(5)
    def sum4(base, n, stride, out):
        for k, off in enumerate((0, 2)):
            for i in range(n):
                r = base + stride * i + off
                if i == 0:
                    A(f"v_lshlrev_b32 v{out+2*k}, 16, v{r}"); A(f"v_and_b32 v{out+2*k+1}, 0xffff0000, v{r}")
                else:
                    A(f"v_lshlrev_b32 v2, 16, v{r}"); A(f"v_and_b32 v3, 0xffff0000, v{r}")
                    A(f"v_add_f32 v{out+2*k}, v{out+2*k}, v2"); A(f"v_add_f32 v{out+2*k+1}, v{out+2*k+1}, v3")
    sum4(64, 4, 4, 16)
    A("v_cvt_pk_bf16_f32 v20, v16, v17"); A("v_cvt_pk_bf16_f32 v21, v18, v19")
    A("ds_write_b64 v30, v[20:21]")
    flag(3)
    wait_lds("v8", 3)
    for s in range(4):
        A(f"ds_read_b128 v[{64+4*s}:{67+4*s}], v31 offset:{s*64}")
    for s in range(4):
        A(f"s_waitcnt lgkmcnt({3-s})")
        for t in range(2):
            c = "0" if s == 0 else f"v[{16+4*t}:{19+4*t}]"
            A(f"v_mfma_f32_16x16x32_bf16 v[{16+4*t}:{19+4*t}], v[{32+16*t+4*s}:{35+16*t+4*s}], v[{64+4*s}:{67+4*s}], {c}")
    A(f"s_mov_b32 s60, {SCALE:#x}"); A(f"s_mov_b32 s61, {L2E:#x}")
    if mimic:
        for i in range(4):
            a, b = 16 + 2*i, 17 + 2*i
            A(f"v_cvt_pk_bf16_f32 v2, v{a}, v{b}")
            A(f"v_lshlrev_b32 v{a}, 16, v2"); A(f"v_and_b32 v{b}, 0xffff0000, v2")
            A(f"v_mul_f32 v{a}, s60, v{a}"); A(f"v_mul_f32 v{b}, s60, v{b}")
            A(f"v_cvt_pk_bf16_f32 v2, v{a}, v{b}")
            A(f"v_lshlrev_b32 v{a}, 16, v2"); A(f"v_and_b32 v{b}, 0xffff0000, v2")
    else:
        for i in range(8): A(f"v_mul_f32 v{16+i}, s60, v{16+i}")
    A("v_max3_f32 v2, v16, v17, v18"); A("v_max3_f32 v3, v19, v20, v21"); A("v_max3_f32 v2, v2, v22, v23"); A("v_max_f32 v2, v2, v3")
    A("v_mov_b32 v3, v2"); A("v_permlane16_swap_b32 v2, v3"); A("v_max_f32 v2, v2, v3")
    A("v_mov_b32 v3, v2"); A("v_permlane32_swap_b32 v2, v3"); A("v_max_f32 v2, v2, v3")
    A("v_mul_f32 v96, s61, v2")
    for i in range(8):
        A(f"v_fma_f32 v{16+i}, v{16+i}, s61, -v96")
    for i in range(8):
        A(f"v_exp_f32 v{16+i}, v{16+i}")
    for i in range(4):
        A(f"v_cvt_pk_bf16_f32 v{100+i}, v{16+2*i}, v{17+2*i}")
    A("v_add_f32 v2, v16, v17"); A("v_add_f32 v3, v18, v19"); A("v_add_f32 v2, v2, v20"); A("v_add_f32 v3, v3, v21")
    A("v_add_f32 v2, v2, v22"); A("v_add_f32 v3, v3, v23"); A("v_add_f32 v97, v2, v3")
    A("v_mov_b32 v3, v97"); A("v_permlane16_swap_b32 v97, v3"); A("v_add_f32 v97, v97, v3")
    A("v_mov_b32 v3, v97"); A("v_permlane32_swap_b32 v97, v3"); A("v_add_f32 v97, v97, v3")
    stamp(6)
    wait_lds("v7", None, sth="s15")
    for q in range(8):
        if q: A(f"v_xor_b32 v3, {q*32}, v28")
        ad = "v3" if q else "v28"
        A(f"ds_read_b64_tr_b16 v[{32+4*q}:{33+4*q}], {ad}")
        A(f"ds_read_b64_tr_b16 v[{34+4*q}:{35+4*q}], {ad} offset:4096")
    A("v_mul_u32_u24 v24, 528, v6"); A("v_lshl_add_u32 v24, v5, 4, v24")
    A("s_mul_i32 s8, s9, 4224"); A(f"s_add_u32 s8, s8, {AC}"); A("v_add_u32 v24, s8, v24")
    A("s_lshl_b32 s8, s9, 2"); A(f"s_add_u32 s8, s8, {ST}"); A("v_lshl_add_u32 v25, v6, 5, s8")
    for q in range(8):
        A(f"s_waitcnt lgkmcnt({min(15, 14-2*q)})")
        A(f"v_mfma_f32_16x16x32_bf16 v[{64+4*q}:{67+4*q}], v[{32+4*q}:{35+4*q}], v[100:103], 0")
    A("s_mov_b64 exec, 0xff")
    A("ds_write2_b32 v25, v96, v97 offset0:0 offset1:4")
    A("s_mov_b64 exec, s[48:49]")
    for q in range(8):
        A(f"ds_write_b128 v24, v[{64+4*q}:{67+4*q}] offset:{q*64}")
    A("s_mov_b64 exec, -1")
    flag(4)
    A("v_lshrrev_b32 v2, 5, v1"); A("s_lshl_b32 s8, s9, 1"); A("v_add_u32 v2, s8, v2")
    A("v_mul_u32_u24 v26, 528, v2"); A("v_and_b32 v3, 31, v1"); A("v_lshl_add_u32 v26, v3, 4, v26"); A(f"v_add_u32 v26, {AC}, v26")
    A("v_lshlrev_b32 v27, 5, v2"); A(f"v_add_u32 v27, {ST}, v27")
    A("v_lshlrev_b32 v30, 15, v2"); A("v_lshl_add_u32 v30, v3, 4, v30")
    A("s_lshl_b32 s56, s12, 18"); A("s_lshl_b32 s8, s11, 12"); A("s_add_u32 s56, s56, s8"); A("s_lshl_b32 s8, s13, 9"); A("s_add_u32 s56, s56, s8")
    A("s_lshr_b32 s57, s56, 6"); A(f"s_add_u32 s56, s56, {OP}"); A(f"s_add_u32 s57, s57, {LSE}")
    A("v_lshlrev_b32 v31, 9, v2")
    wait_lds("v8", 4)
    A("ds_read_b128 v[16:19], v27"); A("ds_read_b128 v[20:23], v27 offset:16")
    for i in range(4):
        A(f"ds_read_b128 v[{32+4*i}:{35+4*i}], v26 offset:{i*4224}")
    A("s_waitcnt lgkmcnt(4)")
    A("v_max3_f32 v2, v16, v17, v18"); A("v_max_f32 v2, v2, v19")
    for i in range(4): A(f"v_sub_f32 v{16+i}, v{16+i}, v2")
    for i in range(4): A(f"v_exp_f32 v{16+i}, v{16+i}")
    A("v_mul_f32 v3, v16, v20")
    for i in range(1, 4): A(f"v_fmac_f32 v3, v{16+i}, v{20+i}")
    A("v_rcp_f32 v20, v3"); A("v_log_f32 v21, v3")
    for i in range(4): A(f"v_mul_f32 v{16+i}, v{16+i}, v20")
    A("v_add_f32 v22, v2, v21"); A("v_mov_b32 v23, v15")
    A("s_waitcnt lgkmcnt(0)")
    for k in range(4):
        A(f"v_mul_f32 v{48+k}, v16, v{32+k}")
    for i in range(1, 4):
        for k in range(4):
            A(f"v_fmac_f32 v{48+k}, v{16+i}, v{32+4*i+k}")
    A("v_cvt_pk_bf16_f32 v52, v48, v49"); A("v_cvt_pk_bf16_f32 v54, v50, v51"); A("v_mov_b32 v53, v15"); A("v_mov_b32 v55, v15")
    A("buffer_store_dwordx4 v[52:55], v30, s[44:47], s56 offen sc1")
    A("s_mov_b32 exec_lo, 1"); A("s_mov_b32 exec_hi, 1")
    A("buffer_store_dwordx2 v[22:23], v31, s[44:47], s57 offen sc1")
    A("s_mov_b64 exec, -1")
    stamp(7)
    def unitpos(dst, u):
        A(f"v_lshrrev_b32 v2, 3, {u}"); A(f"v_lshlrev_b32 {dst}, 6, v2")
        A(f"v_and_b32 v2, 3, {u}"); A(f"v_lshl_add_u32 {dst}, v2, 4, {dst}")
        A(f"v_bfe_u32 v2, {u}, 2, 1"); A(f"v_lshl_add_u32 {dst}, v2, 3, {dst}")
    A("s_cmp_ge_u32 s7, 16"); A("s_cbranch_scc1 L_gh")
    A("s_lshl_b32 s10, s6, 2"); A("s_lshr_b32 s8, s7, 2"); A("s_add_u32 s10, s10, s8")
    A("s_lshl_b32 s56, s10, 15"); A("s_lshl_b32 s8, s9, 13"); A("s_add_u32 s56, s56, s8")
    A("s_lshr_b32 s8, s56, 6"); A(f"s_add_u32 s8, s8, {LSE}"); A("s_add_u32 s54, s38, s8"); A("s_addc_u32 s55, s39, 0")
    A(f"s_add_u32 s56, s56, {OP}"); A("s_add_u32 s57, s56, 4096")
    A("v_and_b32 v3, 31, v1"); unitpos("v30", "v3")
    A("v_lshrrev_b32 v2, 5, v1"); A("v_mul_u32_u24 v2, 544, v2"); A("v_add_u32 v30, v30, v2")
    A("s_mul_i32 s8, s9, 1088"); A(f"s_add_u32 s8, s8, {OB}"); A("v_add_u32 v30, s8, v30")
    L = A.lab("P"); Ld = L + "d"; Lr = L + "r"
    A(f"{L}:")
    A("s_load_dwordx16 s[16:31], s[54:55], 0 glc")
    A("s_load_dwordx16 s[84:99], s[54:55], 64 glc")
    A("s_waitcnt lgkmcnt(0)")
    for base in (16, 84):
        for i in range(8):
            A(f"s_cmp_eq_u32 s{base+2*i+1}, s40"); A(f"s_cbranch_scc0 {Lr}")
    A(f"s_branch {Ld}")
    A(f"{Lr}:")
    if hint_sleep: A(f"s_sleep {hint_sleep}")
    spin_tail(L, Ld)
    stamp(8)
    L = A.lab("G"); Ld = L + "d"
    A(f"{L}:")
    for bb in range(2):
        for i in range(4):
            A(f"buffer_load_dwordx4 v[{32+16*bb+4*i}:{35+16*bb+4*i}], v29, s[44:47], s{56+bb} offen offset:{i*1024} {gflags}")
    for bb, base in enumerate((16, 84)):
        for i in range(4): A(f"v_mov_b32 v{16+4*bb+i}, s{base+4*i}")
    A("s_mov_b32 exec_lo, 0")
    for bb, base in enumerate((16, 84)):
        for i in range(4): A(f"v_mov_b32 v{16+4*bb+i}, s{base+4*i+2}")
    A("s_mov_b64 exec, -1")
    for bb in range(2):
        o = 16 + 4*bb
        A(f"v_max3_f32 v2, v{o}, v{o+1}, v{o+2}"); A(f"v_max_f32 v2, v2, v{o+3}")
        A("v_mov_b32 v3, v2"); A("v_permlane32_swap_b32 v2, v3"); A("v_max_f32 v2, v2, v3")
        for i in range(4): A(f"v_sub_f32 v{o+i}, v{o+i}, v2")
        for i in range(4): A(f"v_exp_f32 v{o+i}, v{o+i}")
        A(f"v_add_f32 v2, v{o}, v{o+1}"); A(f"v_add_f32 v3, v{o+2}, v{o+3}"); A("v_add_f32 v2, v2, v3")
        A("v_mov_b32 v3, v2"); A("v_permlane32_swap_b32 v2, v3"); A("v_add_f32 v2, v2, v3")
        A("v_rcp_f32 v2, v2")
        for i in range(4): A(f"v_mul_f32 v{o+i}, v{o+i}, v2")
    A("s_waitcnt vmcnt(0)")
    tagcheck([f"v{33+2*i}" for i in range(16)], L, Ld)
    for bb in range(2):
        for k, off in enumerate((0, 2)):
            for i in range(4):
                r = 32 + 16*bb + 4*i + off; w = 16 + 4*bb + i; o = 64 + 4*bb + 2*k
                A(f"v_lshlrev_b32 v2, 16, v{r}"); A(f"v_and_b32 v3, 0xffff0000, v{r}")
                if i == 0:
                    A(f"v_mul_f32 v{o}, v{w}, v2"); A(f"v_mul_f32 v{o+1}, v{w}, v3")
                else:
                    A(f"v_fmac_f32 v{o}, v{w}, v2"); A(f"v_fmac_f32 v{o+1}, v{w}, v3")
    for k in range(4): A(f"v_permlane32_swap_b32 v{64+k}, v{68+k}")
    for k in range(4): A(f"v_add_f32 v{64+k}, v{64+k}, v{68+k}")
    A("v_cvt_pk_bf16_f32 v20, v64, v65"); A("v_cvt_pk_bf16_f32 v21, v66, v67")
    A("ds_write_b64 v30, v[20:21]")
    A("s_branch L_gdone")
    A("L_gh:")
    A("s_lshl_b32 s10, s6, 1"); A("s_bfe_u32 s8, s7, 0x10003"); A("s_add_u32 s10, s10, s8")
    A("s_mul_i32 s8, s10, 7"); A("s_lshr_b32 s8, s8, 1"); A("s_lshl_b32 s8, s8, 4"); A(f"s_add_u32 s8, s8, {HINTH}")
    A("s_add_u32 s54, s38, s8"); A("s_addc_u32 s55, s39, 0")
    A("s_mul_i32 s56, s10, 896"); A("s_lshl_b32 s8, s9, 15"); A("s_add_u32 s56, s56, s8"); A(f"s_add_u32 s56, s56, {HP}")
    A("s_add_u32 s57, s56, 0x20000"); A("s_add_u32 s58, s56, 0x40000"); A("s_add_u32 s59, s56, 0x60000")
    A("v_add_u32 v31, 0x4000, v29")
    unitpos("v30", "v1")
    A("s_mul_i32 s8, s9, 1088"); A(f"s_add_u32 s8, s8, {OB}"); A("v_add_u32 v30, s8, v30")
    hint16()
    stamp(8)
    A("s_mov_b32 exec_hi, 0x00ffffff")
    L = A.lab("G"); Ld = L + "d"
    A(f"{L}:")
    for bb in range(2):
        for sp in range(4):
            A(f"buffer_load_dwordx4 v[{32+16*bb+4*sp}:{35+16*bb+4*sp}], v{29 if bb == 0 else 31}, s[44:47], s{56+sp} offen {gflags}")
    A("s_waitcnt vmcnt(0)")
    tagcheck([f"v{33+2*i}" for i in range(16)], L, Ld)
    for bb in range(2):
        sum4(32 + 16*bb, 4, 4, 64 + 4*bb)
        for k in range(4): A(f"v_max_f32 v{64+4*bb+k}, 0, v{64+4*bb+k}")
        A(f"v_cvt_pk_bf16_f32 v{20+2*bb}, v{64+4*bb}, v{65+4*bb}"); A(f"v_cvt_pk_bf16_f32 v{21+2*bb}, v{66+4*bb}, v{67+4*bb}")
        A(f"ds_write_b64 v30, v[{20+2*bb}:{21+2*bb}] offset:{544*bb}")
    A("s_mov_b64 exec, -1")
    A("L_gdone:")
    flag(5)
    stamp(9)
    A("s_cmp_lg_u32 s9, 0"); A("s_cbranch_scc1 L_Aend")
    A("v_lshrrev_b32 v2, 3, v1"); A("v_lshlrev_b32 v29, 15, v2"); A("v_lshl_add_u32 v29, v6, 4, v29")
    A("s_lshr_b32 s10, s2, 5"); A("s_lshl_b32 s56, s10, 12"); A("s_and_b32 s11, s2, 31"); A("s_lshl_b32 s8, s11, 7"); A("s_add_u32 s56, s56, s8")
    A(f"s_add_u32 s56, s56, {FP}")
    for i in range(1, 6): A(f"s_add_u32 s{56+i}, s56, {i*0x40000}")
    srd(64, 34, 16384)
    A("s_lshl_b32 s12, s10, 11"); A("s_lshl_b32 s8, s11, 6"); A("s_add_u32 s12, s12, s8")
    A("v_lshlrev_b32 v30, 3, v6")
    A(f"v_mov_b32 v3, {FL+5*256}")
    wait_lds("v3", 1)
    A(f"v_mov_b32 v3, {FL+7*256}")
    A("ds_read_b64 v[24:25], v3")
    L = A.lab("G"); Ld = L + "d"
    A(f"{L}:")
    for i in range(6):
        A(f"buffer_load_dwordx4 v[{32+4*i}:{35+4*i}], v29, s[44:47], s{56+i} offen sc1")
    A("s_waitcnt vmcnt(0)")
    tagcheck([f"v{33+2*i}" for i in range(12)], L, Ld)
    stamp(10)
    sum4(32, 4, 4, 64)
    sum4(48, 2, 4, 68)
    for k in range(8): A(f"v_add_f32_dpp v{64+k}, v{64+k}, v{64+k} row_ror:8 row_mask:0xf bank_mask:0xf")
    for sw in ("v_permlane16_swap_b32", "v_permlane32_swap_b32"):
        for k in range(8): A(f"v_mov_b32 v{72+k}, v{64+k}")
        for k in range(8): A(f"{sw} v{64+k}, v{72+k}")
        for k in range(8): A(f"v_add_f32 v{64+k}, v{64+k}, v{72+k}")
    A("s_waitcnt lgkmcnt(0)")
    for base, gv in ((64, "v24"), (68, "v25")):
        for p in range(2):
            a, b = base + 2*p, base + 2*p + 1
            A(f"v_cvt_pk_bf16_f32 v2, v{a}, v{b}")
            A(f"v_lshlrev_b32 v{a}, 16, v2"); A(f"v_and_b32 v{b}, 0xffff0000, v2")
            A(f"v_mul_f32 v{a}, {gv}, v{a}"); A(f"v_mul_f32 v{b}, {gv}, v{b}")
            A(f"v_cvt_pk_bf16_f32 v2, v{a}, v{b}")
            A(f"v_lshlrev_b32 v{a}, 16, v2"); A(f"v_and_b32 v{b}, 0xffff0000, v2")
    for k in range(4): A(f"v_add_f32 v{64+k}, v{64+k}, v{68+k}")
    A("v_cvt_pk_bf16_f32 v20, v64, v65"); A("v_cvt_pk_bf16_f32 v21, v66, v67")
    A("s_mov_b64 exec, 0xff")
    A("buffer_store_dwordx2 v[20:21], v30, s[64:67], s12 offen")
    A("s_cmp_lg_u32 s2, 0"); A("s_cbranch_scc1 L_Aend")
    A("s_mov_b64 exec, 1")
    A("v_mov_b32 v2, 0")
    A("buffer_store_dword v15, v2, s[44:47], 0 offen sc1")
    A("L_Aend:")
    stamp(11)
    dump_stamps(12)
    A("s_endpgm")

    A("L_B:")
    A("s_sub_u32 s9, s3, 5")
    ro = p1_gemv(R3, "s9", HP, HINTH, "B")
    p1_addr("s9", HP, HINTH)
    A("s_cmp_lg_u32 s9, 0"); A("s_cbranch_scc1 L_nogate0")
    srd(64, 16, 16384)
    srd(84, 32, 2048)
    A("s_lshr_b32 s10, s2, 5"); A("s_lshl_b32 s10, s10, 11")
    A("v_lshlrev_b32 v2, 5, v1")
    A("buffer_load_dwordx4 v[96:99], v2, s[64:67], s10 offen"); A("buffer_load_dwordx4 v[100:103], v2, s[64:67], s10 offen offset:16")
    A("buffer_load_dwordx4 v[104:107], v2, s[84:87], 0 offen"); A("buffer_load_dwordx4 v[108:111], v2, s[84:87], 0 offen offset:16")
    A("L_nogate0:")
    A("s_barrier")
    xfrags()
    A("s_cmp_lg_u32 s9, 0"); A("s_cbranch_scc1 L_nogate")
    A("s_waitcnt vmcnt(0)")
    A("v_mov_b32 v16, 0"); A("v_mov_b32 v17, 0")
    for i in range(8):
        x, gw = 96 + i, 104 + i
        A(f"v_lshlrev_b32 v18, 16, v{x}"); A(f"v_and_b32 v19, 0xffff0000, v{x}")
        A(f"v_lshlrev_b32 v20, 16, v{gw}"); A(f"v_and_b32 v21, 0xffff0000, v{gw}")
        A("v_mul_f32 v18, v18, v20"); A("v_mul_f32 v19, v19, v21")
        A("v_cvt_pk_bf16_f32 v18, v18, v19")
        A("v_and_b32 v19, 0xffff0000, v18"); A("v_lshlrev_b32 v18, 16, v18")
        A("v_add_f32 v16, v16, v18"); A("v_add_f32 v17, v17, v19")
    A("v_add_f32 v16, v16, v17")
    for r in (1, 2, 4, 8): A(f"v_add_f32_dpp v16, v16, v16 row_ror:{r} row_mask:0xf bank_mask:0xf")
    for sw in ("v_permlane16_swap_b32", "v_permlane32_swap_b32"):
        A("v_mov_b32 v17, v16"); A(f"{sw} v16, v17"); A("v_add_f32 v16, v16, v17")
    A("v_cvt_pk_bf16_f32 v16, v16, v16"); A("v_lshlrev_b32 v16, 16, v16")
    A(f"v_mul_f32 v16, {0xBFB8AA3B:#x}, v16"); A("v_exp_f32 v16, v16"); A("v_add_f32 v16, 1.0, v16"); A("v_rcp_f32 v16, v16")
    A("v_cvt_pk_bf16_f32 v16, v16, v16"); A("v_lshlrev_b32 v16, 16, v16")
    A("v_sub_f32 v17, 1.0, v16"); A("v_cvt_pk_bf16_f32 v17, v17, v17"); A("v_lshlrev_b32 v17, 16, v17")
    A(f"v_mov_b32 v3, {FL+7*256}")
    A("s_mov_b64 exec, 1"); A("ds_write_b64 v3, v[16:17]"); A("s_mov_b64 exec, -1")
    flag(1)
    A("L_nogate:")
    wait_lds("v8", 1)
    A(f"v_mov_b32 v3, {FL+6*256}"); A("ds_read_b32 v15, v3")
    A("s_mov_b32 s14, 100")
    A("s_cmp_ge_u32 s5, 56"); A("s_cbranch_scc1 L_Bnow1")
    A("s_mov_b32 s14, 132")
    wait_lds("v7", 132)
    stamp(1)
    p1_run(ro)
    p1_publish("s9", HP, HINTH)
    A("L_Bnow1:")
    stamp(2)
    A("v_mul_u32_u24 v31, 544, v6"); A("v_lshl_add_u32 v31, v5, 4, v31"); A(f"v_add_u32 v31, {OB}, v31")
    A("v_lshlrev_b32 v30, 12, v6"); A("v_lshl_add_u32 v30, v5, 4, v30"); A("v_lshrrev_b32 v2, 3, v4"); A("v_lshl_add_u32 v30, v2, 6, v30")
    def final(P, nq, nks, lpk, label):
        sh = P.bit_length() - 1
        A("v_and_b32 v2, 7, v11"); A("v_lshlrev_b32 v2, 5, v2"); A(f"v_lshl_add_u32 v24, v11, {sh}, v2"); A("v_add_u32 v24, v24, v12")
        A(f"s_mul_i32 s8, s9, {nq*32}"); A("v_xor_b32 v24, s8, v24")
        for q in range(1, nq): A(f"v_xor_b32 v{24+q}, {q*32}, v24")
        fr = lambda ks, q: 64 + (ks * nq + q) * 4
        def reads(ks):
            A(f"s_add_u32 s14, s14, {lpk}")
            wait_lds("v7", None, sth="s14")
            for q in range(nq):
                A(f"ds_read_b64_tr_b16 v[{fr(ks,q)}:{fr(ks,q)+1}], v{24+q} offset:{ks*32*P}")
                A(f"ds_read_b64_tr_b16 v[{fr(ks,q)+2}:{fr(ks,q)+3}], v{24+q} offset:{ks*32*P + 16*P}")
        def mm(ks):
            for q in range(nq):
                c = "0" if ks == 0 else f"v[{128+4*q}:{131+4*q}]"
                A(f"v_mfma_f32_16x16x32_bf16 v[{128+4*q}:{131+4*q}], v[{fr(ks,q)}:{fr(ks,q)+3}], v[{32+4*ks}:{35+4*ks}], {c}")
        for ks in range(nks - 1): reads(ks)
        stamp(3)
        wait_lds("v8", 5)
        stamp(4)
        for ks in range(nks): A(f"ds_read_b128 v[{32+4*ks}:{35+4*ks}], v31 offset:{ks*64}")
        A("s_waitcnt lgkmcnt(0)")
        for ks in range(nks - 1): mm(ks)
        reads(nks - 1)
        stamp(5)
        A("s_waitcnt lgkmcnt(0)")
        mm(nks - 1)
        for q in range(nq):
            A(f"v_cvt_pk_bf16_f32 v{16+2*q}, v{128+4*q}, v{129+4*q}"); A(f"v_cvt_pk_bf16_f32 v{17+2*q}, v{130+4*q}, v{131+4*q}")
        for pr in range(nq // 2):
            d = 32 + 4*pr
            A(f"v_cndmask_b32 v{d}, v{16+4*pr}, v{18+4*pr}, s[50:51]"); A(f"v_cndmask_b32 v{d+2}, v{17+4*pr}, v{19+4*pr}, s[50:51]")
            A(f"v_mov_b32 v{d+1}, v15"); A(f"v_mov_b32 v{d+3}, v15")
            A(f"buffer_store_dwordx4 v[{d}:{d+3}], v30, s[44:47], s56 offen offset:{pr*128} sc1")
    A("s_cmp_ge_u32 s7, 16"); A("s_cbranch_scc1 L_Bw2")
    A("s_lshl_b32 s10, s6, 2"); A("s_lshr_b32 s8, s7, 2"); A("s_add_u32 s10, s10, s8"); A("s_lshl_b32 s56, s10, 15")
    A("s_and_b32 s8, s7, 3"); A("s_lshl_b32 s8, s8, 10"); A("s_add_u32 s56, s56, s8"); A("s_lshl_b32 s8, s9, 8"); A("s_add_u32 s56, s56, s8")
    A(f"s_add_u32 s56, s56, {FP}")
    final(512, 4, 4, 16, "wo")
    A("s_branch L_Bend")
    A("L_Bw2:")
    A("s_lshl_b32 s10, s6, 1"); A("s_bfe_u32 s8, s7, 0x10003"); A("s_add_u32 s10, s10, s8"); A("s_add_u32 s10, s10, 32"); A("s_lshl_b32 s56, s10, 15")
    A("s_and_b32 s8, s7, 7"); A("s_lshl_b32 s8, s8, 9"); A("s_add_u32 s56, s56, s8"); A("s_lshl_b32 s8, s9, 7"); A("s_add_u32 s56, s56, s8")
    A(f"s_add_u32 s56, s56, {FP}")
    final(256, 2, 7, 8, "w2")
    A("L_Bend:")
    stamp(6)
    dump_stamps(7)
    A("s_endpgm")
    A("L_codeend:")

    body = A.render()
    out = HEADER
    out += f"; @launch grid=(256,1,1) block=(576,1,1) lds={LDS_BYTES}\n"
    out += '.amdgcn_target "amdgcn-amd-amdhsa--gfx950"\n.text\n'
    out += f".globl {NAME}\n.p2align 8\n.type {NAME},@function\n"
    out += body
    out += f""".section .rodata,"a"
.p2align 6
.amdhsa_kernel {NAME}
  .amdhsa_next_free_vgpr 152
  .amdhsa_next_free_sgpr 102
  .amdhsa_accum_offset 152
  .amdhsa_group_segment_fixed_size 0
  .amdhsa_kernarg_size 96
  .amdhsa_user_sgpr_count 2
  .amdhsa_user_sgpr_kernarg_segment_ptr 1
  .amdhsa_system_sgpr_workgroup_id_x 1
  .amdhsa_float_denorm_mode_32 3
.end_amdhsa_kernel
"""
    return out

if __name__ == "__main__":
    import json
    kw = json.loads(sys.argv[2]) if len(sys.argv) > 2 else {}
    open(sys.argv[1], "w").write(gen(**kw))
```

```python
import sys
sys.path.insert(0, "work")
from asmlib import Asm

NAME = "gated_mix__sliding_block_cached__dense_activation_relu__decode_kernel"
HEADER = open("gated_mix__sliding_block_cached__dense_activation_relu__decode.s.ref").read().split("; Override launch")[0]

EPOCH = 0
HINTQ = 0x1000
HINTH = 0x2000
QP = 0x10000
HP = 0x90000
OP = 0x110000
LSE = 0x210000
FP = 0x220000
WS_USED = 0x400000
DIAG = 0x400000
R0, R1, R2, R3, M = 0x0, 0x8000, 0x10000, 0x18000, 0x20000
XS = M
QB = M + 0x1000
OB = M + 0x1A00
AC = M + 0x2C00
ST = M + 0x6E00
FL = M + 0x7000
LDS_BYTES = 160 * 1024
TAGK = 0x9E3779B1
SPIN_LIMIT = 400000
L2E = 0x3FB8AA3B
SCALE = 0x3DB504F3

def gen(D_early=32, D_late=32, diag=False, mimic=True, gflags="sc1", hint_sleep=0, code_pf=True, h_start=132, r_start=156):
    A = Asm()
    nst = [0]
    SP = [68, 70, 72, 74, 76, 78, 80, 82, 62, 100, 32, 36]
    def stamp(i):
        if diag: A(f"s_memrealtime s[{SP[i]}:{SP[i]+1}]")
    def dump_stamps(n):
        if not diag: return
        A("s_waitcnt lgkmcnt(0)")
        A("s_lshl_b32 s60, s2, 4"); A("s_add_u32 s60, s60, s3"); A("s_lshl_b32 s60, s60, 6"); A(f"s_add_u32 s60, s60, {DIAG}")
        A("s_mov_b64 exec, 1")
        A("v_mov_b32 v2, 0")
        for i in range(n):
            A(f"v_mov_b32 v3, s{SP[i]}")
            A(f"buffer_store_dword v3, v2, s[44:47], s60 offen offset:{4*i}")
    def spin_tail(L, Ld):
        A("s_add_u32 s41, s41, 1"); A(f"s_cmp_lt_u32 s41, {SPIN_LIMIT}"); A(f"s_cbranch_scc1 {L}"); A(f"{Ld}:")
    def wait_lds(vaddr, th, vt="v2", sth=None):
        L = A.lab("W"); Ld = L + "d"
        A(f"{L}:")
        A(f"ds_read_b32 {vt}, {vaddr}")
        A("s_waitcnt lgkmcnt(0)")
        A(f"v_cmp_gt_u32 vcc, {sth if sth else th}, {vt}")
        A(f"s_cbranch_vccz {Ld}")
        spin_tail(L, Ld)
    def srd(d, b, size):
        A(f"s_mov_b32 s{d}, s{b}"); A(f"s_mov_b32 s{d+1}, s{b+1}"); A(f"s_mov_b32 s{d+2}, {size:#x}"); A(f"s_mov_b32 s{d+3}, 0x20000")

    A(f"{NAME}:")
    A("s_cmp_ge_u32 s2, 256")
    A("s_cbranch_scc1 L_exit")
    A("s_load_dwordx16 s[16:31], s[0:1], 0")
    A("s_load_dwordx8 s[32:39], s[0:1], 64")
    stamp(0)
    A("v_lshrrev_b32 v2, 6, v0")
    A("v_and_b32 v1, 63, v0")
    A("v_readfirstlane_b32 s3, v2")
    A("s_mov_b32 s41, 0")
    A("s_lshr_b32 s4, s2, 6")
    A("s_and_b32 s5, s2, 63")
    A("s_and_b32 s6, s2, 7")
    A("s_lshr_b32 s7, s2, 3")
    A("s_cmp_eq_u32 s3, 0")
    A("s_cbranch_scc1 L_loader")
    if code_pf:
        A("s_getpc_b64 s[54:55]")
        A("L_pc:")
        A("v_subrev_u32 v2, 64, v0"); A("v_lshlrev_b32 v2, 7, v2"); A("v_min_u32 v2, L_codeend-L_pc-4, v2")
        A("global_load_dword v144, v2, s[54:55]")
    A("s_branch L_notloader")
    A("L_loader:")

    A("s_setprio 3")
    A("v_lshrrev_b32 v2, 5, v1"); A("v_lshlrev_b32 v2, 11, v2"); A("v_and_b32 v3, 31, v1"); A("v_lshl_add_u32 v4, v3, 4, v2")
    A("v_lshrrev_b32 v2, 3, v1"); A("v_and_b32 v2, 6, v2")
    A("v_and_b32 v3, 7, v1"); A("v_xor_b32 v3, v3, v2"); A("v_lshlrev_b32 v12, 4, v3")
    A("v_lshrrev_b32 v13, 3, v1")
    A("v_lshl_add_u32 v5, v13, 13, v12")
    A("s_lshl_b32 s8, s4, 9")
    A("s_lshl_b32 s9, s4, 21"); A("s_lshl_b32 s10, s5, 7"); A("s_add_u32 s9, s9, s10")
    A(f"s_mov_b32 s11, {XS}")
    A("s_waitcnt lgkmcnt(0)")
    srd(44, 16, 16384)
    srd(48, 22, 8 << 20)
    for i in range(4):
        A("s_mov_b32 m0, s11"); A("s_add_u32 s11, s11, 1024")
        A("buffer_load_dwordx4 v4, s[44:47], s8 offen lds"); A("s_add_u32 s8, s8, 4096")
    n = [4]
    A(f"v_mov_b32 v10, {FL}"); A("v_lshl_add_u32 v10, v1, 2, v10")
    barrier_done = [False]
    def seg(vregs, srdn, soff, step, ldsbase, count, D, label):
        first = 0
        A(f"s_mov_b32 s11, {ldsbase}")
        if not barrier_done[0]:
            burst = min(count, (D - n[0]) // 4 * 4)
            A(f"s_mov_b32 s13, {burst // 4}")
            A(f"{label}_b:")
            for u in range(4):
                A("s_mov_b32 m0, s11"); A("s_add_u32 s11, s11, 1024")
                A(f"buffer_load_dwordx4 {vregs[u]}, s[{srdn}:{srdn+3}], {soff} offen nt lds"); A(f"s_add_u32 {soff}, {soff}, {step}")
            A("s_sub_u32 s13, s13, 1"); A("s_cmp_lg_u32 s13, 0"); A(f"s_cbranch_scc1 {label}_b")
            n[0] += burst; first = burst
            post_burst()
            A("s_barrier")
            barrier_done[0] = True
            A(f"s_mov_b32 s14, {n[0]}")
        rem = count - first
        if rem:
            A(f"s_mov_b32 s13, {rem // 4}")
            A(f"{label}:")
            for u in range(4):
                A(f"s_waitcnt vmcnt({D-1})")
                if u == 3:
                    A(f"s_add_i32 s12, s14, {4 - D}"); A("s_max_i32 s12, s12, 0")
                    A("v_mov_b32 v11, s12"); A("ds_write_b32 v10, v11")
                A("s_mov_b32 m0, s11"); A("s_add_u32 s11, s11, 1024")
                A(f"buffer_load_dwordx4 {vregs[u]}, s[{srdn}:{srdn+3}], {soff} offen nt lds"); A(f"s_add_u32 {soff}, {soff}, {step}")
            A("s_add_u32 s14, s14, 4")
            A("s_sub_u32 s13, s13, 1"); A("s_cmp_lg_u32 s13, 0"); A(f"s_cbranch_scc1 {label}")
    def post_burst():
        srd(52, 18, 32 << 20)
        srd(56, 20, 32 << 20)
        srd(60, 28, 7 << 20)
        A("v_lshrrev_b32 v2, 4, v1"); A("v_and_b32 v3, 15, v1"); A("v_xor_b32 v6, v3, v2"); A("v_lshlrev_b32 v6, 4, v6")
        A("v_lshl_add_u32 v16, v2, 8, v6"); A("v_xor_b32 v17, 64, v16"); A("v_xor_b32 v18, 0x80, v16"); A("v_xor_b32 v19, 0xc0, v16")
        A("v_lshlrev_b32 v6, 1, v2"); A("v_xor_b32 v6, v3, v6"); A("v_lshlrev_b32 v6, 4, v6")
        A("v_lshl_add_u32 v20, v2, 8, v6"); A("v_xor_b32 v21, 0x80, v20")
        A("v_lshl_add_u32 v22, v2, 11, v6"); A("v_xor_b32 v23, 0x80, v22")
        A("v_mul_u32_u24 v24, 0x1c00, v13"); A("v_add_u32 v24, v24, v12")
        A("v_lshrrev_b32 v2, 5, v1"); A("v_and_b32 v3, 31, v1"); A("v_lshlrev_b32 v6, 1, v2"); A("v_xor_b32 v6, v3, v6"); A("v_lshlrev_b32 v6, 4, v6")
        A("v_lshl_add_u32 v25, v2, 11, v6"); A("v_xor_b32 v26, 64, v25"); A("v_xor_b32 v27, 0x80, v25"); A("v_xor_b32 v28, 0xc0, v25")
        A("s_lshr_b32 s8, s7, 3"); A("s_lshl_b32 s8, s8, 3"); A("s_add_u32 s8, s8, s6"); A("s_lshl_b32 s8, s8, 20")
        A("s_and_b32 s10, s7, 7"); A("s_lshl_b32 s10, s10, 15"); A("s_add_u32 s8, s8, s10"); A(f"s_add_u32 s8, s8, {3072*256}")
        A("s_mov_b32 s15, s8")
        A(f"s_mul_i32 s42, s4, {256*7168}"); A("s_lshl_b32 s10, s5, 7"); A("s_add_u32 s42, s42, s10")
        A(f"v_mov_b32 v29, {FL+256}"); A("v_and_b32 v2, 3, v1"); A("v_lshl_add_u32 v29, v2, 8, v29")
    seg(["v5"]*4, 48, "s9", 65536, R0, 32, D_early, "L_wq")
    seg(["v16", "v17", "v18", "v19"], 52, "s8", 1024, R1, 32, D_early, "L_k")
    seg(["v20", "v21", "v20", "v21"], 56, "s15", 1024, R2, 32, D_early, "L_v")
    A("s_cmp_ge_u32 s5, 56"); A("s_cbranch_scc1 L_now1")
    seg(["v24"]*4, 60, "s42", 8*7168, R3, 32, D_early, "L_w1")
    A("L_now1:")
    stamp(1)
    if D_early > 32:
        A("s_waitcnt vmcnt(32)"); A("s_sub_u32 s12, s14, 32"); A("v_mov_b32 v11, s12"); A("ds_write_b32 v10, v11")
    wait_lds("v29", 2)
    A("s_cmp_ge_u32 s7, 16"); A("s_cbranch_scc1 L_ldw2")
    srd(64, 24, 8 << 20)
    A("s_lshl_b32 s8, s6, 2"); A("s_lshr_b32 s10, s7, 2"); A("s_add_u32 s8, s8, s10"); A("s_lshl_b32 s8, s8, 18")
    A("s_and_b32 s10, s7, 3"); A("s_lshl_b32 s10, s10, 9"); A("s_add_u32 s8, s8, s10")
    seg(["v25", "v26", "v27", "v28"], 64, "s8", 4096, R0, 64, D_late, "L_wo")
    A("s_branch L_drain")
    A("L_ldw2:")
    srd(64, 30, 7 << 20)
    A("s_lshl_b32 s8, s6, 1"); A("s_bfe_u32 s10, s7, 0x10003"); A("s_add_u32 s8, s8, s10"); A(f"s_mul_i32 s8, s8, {224*2048}")
    A("s_and_b32 s10, s7, 7"); A("s_lshl_b32 s10, s10, 8"); A("s_add_u32 s8, s8, s10")
    seg(["v22", "v23", "v22", "v23"], 64, "s8", 8192, R0, 56, D_late, "L_w2")
    A("L_drain:")
    for k in range(D_late - 4, -1, -4):
        A(f"s_waitcnt vmcnt({k})")
        A(f"s_sub_u32 s12, s14, {k}"); A("v_mov_b32 v11, s12"); A("ds_write_b32 v10, v11")
    stamp(2)
    if diag:
        srd(44, 38, 0x800000)
        dump_stamps(3)
    A("L_exit:")
    A("s_endpgm")

    A("L_notloader:")
    A("v_and_b32 v4, 15, v1")
    A("v_lshrrev_b32 v5, 4, v1")
    A("v_and_b32 v6, 7, v1")
    A(f"v_mov_b32 v7, {FL}")
    A(f"v_mov_b32 v8, {FL+256}"); A("v_and_b32 v2, 3, v1"); A("v_lshl_add_u32 v8, v2, 8, v8")
    A("s_lshl_b32 s8, s3, 8"); A(f"s_add_u32 s8, s8, {FL}"); A("v_lshl_add_u32 v9, v1, 2, s8")
    A("v_lshlrev_b32 v10, 9, v6"); A("v_lshl_add_u32 v10, v5, 3, v10"); A(f"v_add_u32 v10, {XS}, v10")
    A("v_lshrrev_b32 v11, 2, v1")
    A("v_and_b32 v12, 3, v1"); A("v_lshlrev_b32 v12, 3, v12")
    A("s_mov_b32 s48, 0x00ff00ff"); A("s_mov_b32 s49, 0x00ff00ff")
    A("s_mov_b32 s50, 0xff00ff00"); A("s_mov_b32 s51, 0xff00ff00")
    A("s_cmp_lg_u32 s3, 8"); A("s_cbranch_scc1 L_noinit")
    A("v_mov_b32 v16, 0"); A("v_mov_b32 v17, 0"); A("v_mov_b32 v18, 0"); A("v_mov_b32 v19, 0")
    A(f"v_mov_b32 v2, {FL}"); A("v_lshl_add_u32 v2, v1, 4, v2")
    A("ds_write_b128 v2, v[16:19]"); A("ds_write_b128 v2, v[16:19] offset:1024")
    A("L_noinit:")
    A("s_waitcnt lgkmcnt(0)")
    srd(44, 38, 0x800000 if diag else WS_USED)
    A("s_cmp_ge_u32 s3, 5"); A("s_cbranch_scc1 L_B")

    def p1_gemv(region, qs, dst_base, hint_base, label):
        A("v_lshrrev_b32 v2, 1, v11"); A("v_and_b32 v2, 3, v2"); A(f"v_xor_b32 v2, {qs}, v2"); A("v_lshlrev_b32 v2, 5, v2")
        A("v_lshl_add_u32 v13, v11, 7, v2"); A("v_add_u32 v13, v13, v12")
        if region >= 0x10000:
            A(f"v_add_u32 v13, {region}, v13"); ro = 0
        else:
            ro = region
        return ro
    def p1_run(ro):
        for ks in range(8):
            A(f"ds_read_b64_tr_b16 v[{64+4*ks}:{65+4*ks}], v13 offset:{ro + ks*4096}")
            A(f"ds_read_b64_tr_b16 v[{66+4*ks}:{67+4*ks}], v13 offset:{ro + ks*4096 + 2048}")
        for ks in range(8):
            A(f"s_waitcnt lgkmcnt({min(15, 14 - 2*ks)})")
            c = "0" if ks == 0 else "v[16:19]"
            A(f"v_mfma_f32_16x16x32_bf16 v[16:19], v[{64+4*ks}:{67+4*ks}], v[{32+4*ks}:{35+4*ks}], {c}")
    def xfrags():
        wait_lds("v7", 4)
        for ks in range(8):
            A(f"ds_read2_b64 v[{32+4*ks}:{35+4*ks}], v10 offset0:{ks*8} offset1:{ks*8+4}")
    def p1_publish(qs, base, hint):
        A("v_cvt_pk_bf16_f32 v20, v16, v17"); A("v_cvt_pk_bf16_f32 v22, v18, v19")
        A("v_mov_b32 v21, v15"); A("v_mov_b32 v23, v15")
        A("s_mov_b64 exec, s[48:49]")
        A("buffer_store_dwordx4 v[20:23], v14, s[44:47], s52 offen sc1")
        A("s_mov_b64 exec, -1")
    def p1_addr(qs, base, hint):
        A("v_lshlrev_b32 v14, 14, v6"); A("v_lshl_add_u32 v14, v5, 4, v14")
        A("s_lshl_b32 s52, s4, 17"); A("s_lshl_b32 s8, s5, 8"); A("s_add_u32 s52, s52, s8")
        A(f"s_lshl_b32 s8, {qs}, 6"); A("s_add_u32 s52, s52, s8"); A(f"s_add_u32 s52, s52, {base}")
    def flag(stage):
        A(f"v_mov_b32 v2, {stage}"); A("ds_write_b32 v9, v2")
    def hint_poll(nblk, stride_tag):
        pass

    A("s_load_dword s40, s[38:39], 0")
    A("s_sub_u32 s9, s3, 1")
    ro = p1_gemv(R0, "s9", QP, HINTQ, "A")
    p1_addr("s9", QP, HINTQ)
    A("s_barrier")
    xfrags()
    A("s_waitcnt lgkmcnt(0)")
    A(f"s_add_u32 s40, s40, {TAGK:#x}"); A("s_mov_b32 s42, s40"); A("s_mov_b32 s43, s40")
    A("v_mov_b32 v15, s40")
    A("s_lshr_b32 s10, s7, 3"); A("s_lshl_b32 s10, s10, 3"); A("s_add_u32 s10, s10, s6")
    A("s_lshr_b32 s11, s10, 2")
    A("s_and_b32 s12, s10, 3")
    A("s_and_b32 s13, s7, 7")
    A("v_xor_b32 v2, v5, v4"); A("v_lshlrev_b32 v2, 4, v2"); A("v_lshl_add_u32 v24, v4, 8, v2")
    A("s_lshl_b32 s8, s9, 13"); A(f"s_add_u32 s8, s8, {R1}"); A("v_add_u32 v24, s8, v24")
    A("v_xor_b32 v25, 64, v24"); A("v_xor_b32 v26, 0x80, v24"); A("v_xor_b32 v27, 0xc0, v24")
    A("v_and_b32 v2, 7, v11"); A("v_lshlrev_b32 v2, 5, v2"); A("v_lshl_add_u32 v28, v11, 8, v2"); A("v_add_u32 v28, v28, v12")
    A("s_lshl_b32 s8, s9, 13"); A(f"s_add_u32 s8, s8, {R2}"); A("v_add_u32 v28, s8, v28")
    A("s_lshl_b32 s14, s9, 3"); A("s_add_u32 s15, s14, 76"); A("s_add_u32 s14, s14, 44")
    wait_lds("v7", 36)
    stamp(1)
    p1_run(ro)
    p1_publish("s9", QP, HINTQ)
    stamp(2)
    A(f"v_mov_b32 v3, {FL + 6*256}"); A("v_lshl_add_u32 v3, v1, 2, v3"); A("ds_write_b32 v3, v15")
    flag(1)
    wait_lds("v7", None, sth="s14")
    for t in range(2):
        for s in range(4):
            A(f"ds_read_b128 v[{32+16*t+4*s}:{35+16*t+4*s}], v{24+s} offset:{t*4096}")
    A("v_lshlrev_b32 v29, 4, v1")
    A("s_lshl_b32 s56, s11, 14"); A("s_lshl_b32 s8, s12, 12"); A("s_add_u32 s56, s56, s8"); A("s_lshl_b32 s8, s9, 10"); A("s_add_u32 s56, s56, s8")
    A(f"s_add_u32 s56, s56, {QP}"); A("s_add_u32 s57, s56, 0x20000"); A("s_add_u32 s58, s56, 0x40000"); A("s_add_u32 s59, s56, 0x60000")
    A("v_lshrrev_b32 v2, 5, v1"); A("v_mul_u32_u24 v2, 288, v2"); A("v_and_b32 v3, 31, v1"); A("v_lshl_add_u32 v30, v3, 3, v2")
    A("s_mul_i32 s8, s9, 576"); A(f"s_add_u32 s8, s8, {QB}"); A("v_add_u32 v30, s8, v30")
    A("v_mul_u32_u24 v31, 288, v6"); A("v_lshl_add_u32 v31, v5, 4, v31"); A(f"v_add_u32 v31, {QB}, v31")
    A("s_waitcnt lgkmcnt(0)")
    flag(2)
    stamp(3)
    def gather(loads, full="-1", tb=112):
        N = len(loads)
        L = A.lab("G"); Ld = L + "d"; Lc = L + "c"
        for d, t in loads: A(t)
        A(f"{Lc}:")
        A("s_waitcnt vmcnt(0)")
        for i, (d, t) in enumerate(loads):
            A(f"v_xor_b32 v{tb+i}, v{d+1}, v15"); A(f"v_bitop3_b32 v{tb+i}, v{tb+i}, v{d+3}, v15 bitop3:0xf6")
        A(f"v_or_b32 v2, v{tb}, v{tb+1}")
        for i in range(2, N, 2): A(f"v_or3_b32 v2, v2, v{tb+i}, v{tb+i+1}")
        A("v_cmp_ne_u32 vcc, 0, v2")
        A(f"s_cbranch_vccz {Ld}")
        A("s_add_u32 s41, s41, 64"); A(f"s_cmp_ge_u32 s41, {SPIN_LIMIT}"); A(f"s_cbranch_scc1 {Ld}")
        if hint_sleep: A(f"s_sleep {hint_sleep}")
        for i in range(N): A(f"v_cmp_ne_u32 s[{16+2*(i%8)}:{17+2*(i%8)}], 0, v{tb+i}" if i < 8 else f"v_cmp_ne_u32 s[{84+2*(i-8)}:{85+2*(i-8)}], 0, v{tb+i}")
        for i, (d, t) in enumerate(loads):
            m = 16 + 2*i if i < 8 else 84 + 2*(i-8)
            sk = A.lab("S")
            A(f"s_mov_b64 exec, s[{m}:{m+1}]"); A(f"s_cbranch_execz {sk}"); A(t.replace(gflags, "sc1") if gflags else t + " sc1"); A(f"{sk}:")
        A(f"s_mov_b64 exec, {full}")
        A(f"s_branch {Lc}")
        A(f"{Ld}:")
    stamp(4)
    gather([(64+4*sp, f"buffer_load_dwordx4 v[{64+4*sp}:{67+4*sp}], v29, s[44:47], s{56+sp} offen {gflags}") for sp in range(4)])
    stamp(5)
    def sum4(base, n, stride, out):
        for k, off in enumerate((0, 2)):
            for i in range(n):
                r = base + stride * i + off
                if i == 0:
                    A(f"v_lshlrev_b32 v{out+2*k}, 16, v{r}"); A(f"v_and_b32 v{out+2*k+1}, 0xffff0000, v{r}")
                else:
                    A(f"v_lshlrev_b32 v2, 16, v{r}"); A(f"v_and_b32 v3, 0xffff0000, v{r}")
                    A(f"v_add_f32 v{out+2*k}, v{out+2*k}, v2"); A(f"v_add_f32 v{out+2*k+1}, v{out+2*k+1}, v3")
    sum4(64, 4, 4, 16)
    A("v_cvt_pk_bf16_f32 v20, v16, v17"); A("v_cvt_pk_bf16_f32 v21, v18, v19")
    A("ds_write_b64 v30, v[20:21]")
    flag(3)
    wait_lds("v8", 3)
    for s in range(4):
        A(f"ds_read_b128 v[{64+4*s}:{67+4*s}], v31 offset:{s*64}")
    for s in range(4):
        A(f"s_waitcnt lgkmcnt({3-s})")
        for t in range(2):
            c = "0" if s == 0 else f"v[{16+4*t}:{19+4*t}]"
            A(f"v_mfma_f32_16x16x32_bf16 v[{16+4*t}:{19+4*t}], v[{32+16*t+4*s}:{35+16*t+4*s}], v[{64+4*s}:{67+4*s}], {c}")
    A(f"s_mov_b32 s60, {SCALE:#x}"); A(f"s_mov_b32 s61, {L2E:#x}")
    if mimic:
        for i in range(4):
            a, b = 16 + 2*i, 17 + 2*i
            A(f"v_cvt_pk_bf16_f32 v2, v{a}, v{b}")
            A(f"v_lshlrev_b32 v{a}, 16, v2"); A(f"v_and_b32 v{b}, 0xffff0000, v2")
            A(f"v_mul_f32 v{a}, s60, v{a}"); A(f"v_mul_f32 v{b}, s60, v{b}")
            A(f"v_cvt_pk_bf16_f32 v2, v{a}, v{b}")
            A(f"v_lshlrev_b32 v{a}, 16, v2"); A(f"v_and_b32 v{b}, 0xffff0000, v2")
    else:
        for i in range(8): A(f"v_mul_f32 v{16+i}, s60, v{16+i}")
    A("v_max3_f32 v2, v16, v17, v18"); A("v_max3_f32 v3, v19, v20, v21"); A("v_max3_f32 v2, v2, v22, v23"); A("v_max_f32 v2, v2, v3")
    A("v_mov_b32 v3, v2"); A("v_permlane16_swap_b32 v2, v3"); A("v_max_f32 v2, v2, v3")
    A("v_mov_b32 v3, v2"); A("v_permlane32_swap_b32 v2, v3"); A("v_max_f32 v2, v2, v3")
    A("v_mul_f32 v96, s61, v2")
    for i in range(8):
        A(f"v_fma_f32 v{16+i}, v{16+i}, s61, -v96")
    for i in range(8):
        A(f"v_exp_f32 v{16+i}, v{16+i}")
    for i in range(4):
        A(f"v_cvt_pk_bf16_f32 v{100+i}, v{16+2*i}, v{17+2*i}")
    A("v_add_f32 v2, v16, v17"); A("v_add_f32 v3, v18, v19"); A("v_add_f32 v2, v2, v20"); A("v_add_f32 v3, v3, v21")
    A("v_add_f32 v2, v2, v22"); A("v_add_f32 v3, v3, v23"); A("v_add_f32 v97, v2, v3")
    A("v_mov_b32 v3, v97"); A("v_permlane16_swap_b32 v97, v3"); A("v_add_f32 v97, v97, v3")
    A("v_mov_b32 v3, v97"); A("v_permlane32_swap_b32 v97, v3"); A("v_add_f32 v97, v97, v3")
    stamp(6)
    wait_lds("v7", None, sth="s15")
    for q in range(8):
        if q: A(f"v_xor_b32 v3, {q*32}, v28")
        ad = "v3" if q else "v28"
        A(f"ds_read_b64_tr_b16 v[{32+4*q}:{33+4*q}], {ad}")
        A(f"ds_read_b64_tr_b16 v[{34+4*q}:{35+4*q}], {ad} offset:4096")
    A("v_mul_u32_u24 v24, 528, v6"); A("v_lshl_add_u32 v24, v5, 4, v24")
    A("s_mul_i32 s8, s9, 4224"); A(f"s_add_u32 s8, s8, {AC}"); A("v_add_u32 v24, s8, v24")
    A("s_lshl_b32 s8, s9, 2"); A(f"s_add_u32 s8, s8, {ST}"); A("v_lshl_add_u32 v25, v6, 5, s8")
    for q in range(8):
        A(f"s_waitcnt lgkmcnt({min(15, 14-2*q)})")
        A(f"v_mfma_f32_16x16x32_bf16 v[{64+4*q}:{67+4*q}], v[{32+4*q}:{35+4*q}], v[100:103], 0")
    A("s_mov_b64 exec, 0xff")
    A("ds_write2_b32 v25, v96, v97 offset0:0 offset1:4")
    A("s_mov_b64 exec, s[48:49]")
    for q in range(8):
        A(f"ds_write_b128 v24, v[{64+4*q}:{67+4*q}] offset:{q*64}")
    A("s_mov_b64 exec, -1")
    flag(4)
    A("v_lshrrev_b32 v2, 5, v1"); A("s_lshl_b32 s8, s9, 1"); A("v_add_u32 v2, s8, v2")
    A("v_mul_u32_u24 v26, 528, v2"); A("v_and_b32 v3, 31, v1"); A("v_lshl_add_u32 v26, v3, 4, v26"); A(f"v_add_u32 v26, {AC}, v26")
    A("v_lshlrev_b32 v27, 5, v2"); A(f"v_add_u32 v27, {ST}, v27")
    A("v_lshlrev_b32 v30, 15, v2"); A("v_lshl_add_u32 v30, v3, 4, v30")
    A("s_lshl_b32 s56, s12, 18"); A("s_lshl_b32 s8, s11, 12"); A("s_add_u32 s56, s56, s8"); A("s_lshl_b32 s8, s13, 9"); A("s_add_u32 s56, s56, s8")
    A("s_lshr_b32 s57, s56, 12"); A("s_lshl_b32 s57, s57, 6"); A("s_and_b32 s8, s13, 1"); A("s_lshl_b32 s8, s8, 5"); A("s_add_u32 s57, s57, s8")
    A("s_lshr_b32 s8, s13, 1"); A("s_lshl_b32 s8, s8, 3"); A("s_add_u32 s57, s57, s8")
    A(f"s_add_u32 s56, s56, {OP}"); A(f"s_add_u32 s57, s57, {LSE}")
    A("v_lshlrev_b32 v31, 9, v2")
    wait_lds("v8", 4)
    A("ds_read_b128 v[16:19], v27"); A("ds_read_b128 v[20:23], v27 offset:16")
    for i in range(4):
        A(f"ds_read_b128 v[{32+4*i}:{35+4*i}], v26 offset:{i*4224}")
    A("s_waitcnt lgkmcnt(4)")
    A("v_max3_f32 v2, v16, v17, v18"); A("v_max_f32 v2, v2, v19")
    for i in range(4): A(f"v_sub_f32 v{16+i}, v{16+i}, v2")
    for i in range(4): A(f"v_exp_f32 v{16+i}, v{16+i}")
    A("v_mul_f32 v3, v16, v20")
    for i in range(1, 4): A(f"v_fmac_f32 v3, v{16+i}, v{20+i}")
    A("v_rcp_f32 v20, v3"); A("v_log_f32 v21, v3")
    for i in range(4): A(f"v_mul_f32 v{16+i}, v{16+i}, v20")
    A("v_add_f32 v22, v2, v21"); A("v_mov_b32 v23, v15")
    A("s_waitcnt lgkmcnt(0)")
    for k in range(4):
        A(f"v_mul_f32 v{48+k}, v16, v{32+k}")
    for i in range(1, 4):
        for k in range(4):
            A(f"v_fmac_f32 v{48+k}, v{16+i}, v{32+4*i+k}")
    A("v_cvt_pk_bf16_f32 v52, v48, v49"); A("v_cvt_pk_bf16_f32 v54, v50, v51"); A("v_mov_b32 v53, v15"); A("v_mov_b32 v55, v15")
    A("buffer_store_dwordx4 v[52:55], v30, s[44:47], s56 offen sc1")
    A("s_mov_b32 exec_lo, 1"); A("s_mov_b32 exec_hi, 1")
    A("buffer_store_dwordx2 v[22:23], v31, s[44:47], s57 offen sc1")
    A("s_mov_b64 exec, -1")
    stamp(7)
    def unitpos(dst, u):
        A(f"v_lshrrev_b32 v2, 3, {u}"); A(f"v_lshlrev_b32 {dst}, 6, v2")
        A(f"v_and_b32 v2, 3, {u}"); A(f"v_lshl_add_u32 {dst}, v2, 4, {dst}")
        A(f"v_bfe_u32 v2, {u}, 2, 1"); A(f"v_lshl_add_u32 {dst}, v2, 3, {dst}")
    A("s_cmp_ge_u32 s7, 16"); A("s_cbranch_scc1 L_gh")
    A("s_lshl_b32 s10, s6, 2"); A("s_lshr_b32 s8, s7, 2"); A("s_add_u32 s10, s10, s8")
    A("s_lshl_b32 s56, s10, 15"); A("s_lshl_b32 s8, s9, 13"); A("s_add_u32 s56, s56, s8")
    A("s_lshr_b32 s58, s56, 6"); A(f"s_add_u32 s58, s58, {LSE}"); A("v_and_b32 v31, 32, v1")
    A(f"s_add_u32 s56, s56, {OP}"); A("s_add_u32 s57, s56, 4096")
    A("v_and_b32 v3, 31, v1"); unitpos("v30", "v3")
    A("v_lshrrev_b32 v2, 5, v1"); A("v_mul_u32_u24 v2, 544, v2"); A("v_add_u32 v30, v30, v2")
    A("s_mul_i32 s8, s9, 1088"); A(f"s_add_u32 s8, s8, {OB}"); A("v_add_u32 v30, s8, v30")
    stamp(8)
    lo = [(80+8*bb+4*k, f"buffer_load_dwordx4 v[{80+8*bb+4*k}:{83+8*bb+4*k}], v31, s[44:47], s58 offen offset:{bb*64+k*16} {gflags}") for bb in range(2) for k in range(2)]
    lo += [(32+16*bb+4*i, f"buffer_load_dwordx4 v[{32+16*bb+4*i}:{35+16*bb+4*i}], v29, s[44:47], s{56+bb} offen offset:{i*1024} {gflags}") for bb in range(2) for i in range(4)]
    gather(lo)
    for bb in range(2):
        for i in range(4): A(f"v_mov_b32 v{16+4*bb+i}, v{80+8*bb+2*i}")
    for bb in range(2):
        o = 16 + 4*bb
        A(f"v_max3_f32 v2, v{o}, v{o+1}, v{o+2}"); A(f"v_max_f32 v2, v2, v{o+3}")
        A("v_mov_b32 v3, v2"); A("v_permlane32_swap_b32 v2, v3"); A("v_max_f32 v2, v2, v3")
        for i in range(4): A(f"v_sub_f32 v{o+i}, v{o+i}, v2")
        for i in range(4): A(f"v_exp_f32 v{o+i}, v{o+i}")
        A(f"v_add_f32 v2, v{o}, v{o+1}"); A(f"v_add_f32 v3, v{o+2}, v{o+3}"); A("v_add_f32 v2, v2, v3")
        A("v_mov_b32 v3, v2"); A("v_permlane32_swap_b32 v2, v3"); A("v_add_f32 v2, v2, v3")
        A("v_rcp_f32 v2, v2")
        for i in range(4): A(f"v_mul_f32 v{o+i}, v{o+i}, v2")
    for bb in range(2):
        for k, off in enumerate((0, 2)):
            for i in range(4):
                r = 32 + 16*bb + 4*i + off; w = 16 + 4*bb + i; o = 64 + 4*bb + 2*k
                A(f"v_lshlrev_b32 v2, 16, v{r}"); A(f"v_and_b32 v3, 0xffff0000, v{r}")
                if i == 0:
                    A(f"v_mul_f32 v{o}, v{w}, v2"); A(f"v_mul_f32 v{o+1}, v{w}, v3")
                else:
                    A(f"v_fmac_f32 v{o}, v{w}, v2"); A(f"v_fmac_f32 v{o+1}, v{w}, v3")
    for k in range(4): A(f"v_permlane32_swap_b32 v{64+k}, v{68+k}")
    for k in range(4): A(f"v_add_f32 v{64+k}, v{64+k}, v{68+k}")
    A("v_cvt_pk_bf16_f32 v20, v64, v65"); A("v_cvt_pk_bf16_f32 v21, v66, v67")
    A("ds_write_b64 v30, v[20:21]")
    A("s_branch L_gdone")
    A("L_gh:")
    A("s_lshl_b32 s10, s6, 1"); A("s_bfe_u32 s8, s7, 0x10003"); A("s_add_u32 s10, s10, s8")
    A("s_mul_i32 s56, s10, 896"); A("s_lshl_b32 s8, s9, 15"); A("s_add_u32 s56, s56, s8"); A(f"s_add_u32 s56, s56, {HP}")
    A("s_add_u32 s57, s56, 0x20000"); A("s_add_u32 s58, s56, 0x40000"); A("s_add_u32 s59, s56, 0x60000")
    A("v_add_u32 v31, 0x4000, v29")
    unitpos("v30", "v1")
    A("s_mul_i32 s8, s9, 1088"); A(f"s_add_u32 s8, s8, {OB}"); A("v_add_u32 v30, s8, v30")
    wait_lds("v7", h_start)
    stamp(8)
    A("s_mov_b32 s54, -1"); A("s_mov_b32 s55, 0x00ffffff")
    A("s_mov_b64 exec, s[54:55]")
    gather([(32+16*bb+4*sp, f"buffer_load_dwordx4 v[{32+16*bb+4*sp}:{35+16*bb+4*sp}], v{29 if bb == 0 else 31}, s[44:47], s{56+sp} offen {gflags}") for bb in range(2) for sp in range(4)], full="s[54:55]")
    for bb in range(2):
        sum4(32 + 16*bb, 4, 4, 64 + 4*bb)
        for k in range(4): A(f"v_max_f32 v{64+4*bb+k}, 0, v{64+4*bb+k}")
        A(f"v_cvt_pk_bf16_f32 v{20+2*bb}, v{64+4*bb}, v{65+4*bb}"); A(f"v_cvt_pk_bf16_f32 v{21+2*bb}, v{66+4*bb}, v{67+4*bb}")
        A(f"ds_write_b64 v30, v[{20+2*bb}:{21+2*bb}] offset:{544*bb}")
    A("s_mov_b64 exec, -1")
    A("L_gdone:")
    flag(5)
    stamp(9)
    A("s_cmp_lg_u32 s9, 0"); A("s_cbranch_scc1 L_Aend")
    A("v_lshrrev_b32 v2, 3, v1"); A("v_lshlrev_b32 v29, 15, v2"); A("v_lshl_add_u32 v29, v6, 4, v29")
    A("s_lshr_b32 s10, s2, 5"); A("s_lshl_b32 s56, s10, 12"); A("s_and_b32 s11, s2, 31"); A("s_lshl_b32 s8, s11, 7"); A("s_add_u32 s56, s56, s8")
    A(f"s_add_u32 s56, s56, {FP}")
    for i in range(1, 6): A(f"s_add_u32 s{56+i}, s56, {i*0x40000}")
    srd(64, 34, 16384)
    A("s_lshl_b32 s12, s10, 11"); A("s_lshl_b32 s8, s11, 6"); A("s_add_u32 s12, s12, s8")
    A("v_lshlrev_b32 v30, 3, v6")
    A(f"v_mov_b32 v3, {FL+5*256}")
    wait_lds("v3", 1)
    A(f"v_mov_b32 v3, {FL+7*256}")
    A("ds_read_b64 v[24:25], v3")
    wait_lds("v7", r_start)
    gather([(32+4*i, f"buffer_load_dwordx4 v[{32+4*i}:{35+4*i}], v29, s[44:47], s{56+i} offen {gflags}") for i in range(6)])
    stamp(10)
    sum4(32, 4, 4, 64)
    sum4(48, 2, 4, 68)
    for k in range(8): A(f"v_add_f32_dpp v{64+k}, v{64+k}, v{64+k} row_ror:8 row_mask:0xf bank_mask:0xf")
    for sw in ("v_permlane16_swap_b32", "v_permlane32_swap_b32"):
        for k in range(8): A(f"v_mov_b32 v{72+k}, v{64+k}")
        for k in range(8): A(f"{sw} v{64+k}, v{72+k}")
        for k in range(8): A(f"v_add_f32 v{64+k}, v{64+k}, v{72+k}")
    A("s_waitcnt lgkmcnt(0)")
    for base, gv in ((64, "v24"), (68, "v25")):
        for p in range(2):
            a, b = base + 2*p, base + 2*p + 1
            A(f"v_cvt_pk_bf16_f32 v2, v{a}, v{b}")
            A(f"v_lshlrev_b32 v{a}, 16, v2"); A(f"v_and_b32 v{b}, 0xffff0000, v2")
            A(f"v_mul_f32 v{a}, {gv}, v{a}"); A(f"v_mul_f32 v{b}, {gv}, v{b}")
            A(f"v_cvt_pk_bf16_f32 v2, v{a}, v{b}")
            A(f"v_lshlrev_b32 v{a}, 16, v2"); A(f"v_and_b32 v{b}, 0xffff0000, v2")
    for k in range(4): A(f"v_add_f32 v{64+k}, v{64+k}, v{68+k}")
    A("v_cvt_pk_bf16_f32 v20, v64, v65"); A("v_cvt_pk_bf16_f32 v21, v66, v67")
    A("s_mov_b64 exec, 0xff")
    A("buffer_store_dwordx2 v[20:21], v30, s[64:67], s12 offen")
    A("s_cmp_lg_u32 s2, 0"); A("s_cbranch_scc1 L_Aend")
    A("s_mov_b64 exec, 1")
    A("v_mov_b32 v2, 0")
    A("buffer_store_dword v15, v2, s[44:47], 0 offen sc1")
    A("L_Aend:")
    stamp(11)
    dump_stamps(12)
    A("s_endpgm")

    A("L_B:")
    A("s_sub_u32 s9, s3, 5")
    ro = p1_gemv(R3, "s9", HP, HINTH, "B")
    p1_addr("s9", HP, HINTH)
    A("s_cmp_lg_u32 s9, 0"); A("s_cbranch_scc1 L_nogate0")
    srd(64, 16, 16384)
    srd(84, 32, 2048)
    A("s_lshr_b32 s10, s2, 5"); A("s_lshl_b32 s10, s10, 11")
    A("v_lshlrev_b32 v2, 5, v1")
    A("buffer_load_dwordx4 v[96:99], v2, s[64:67], s10 offen"); A("buffer_load_dwordx4 v[100:103], v2, s[64:67], s10 offen offset:16")
    A("buffer_load_dwordx4 v[104:107], v2, s[84:87], 0 offen"); A("buffer_load_dwordx4 v[108:111], v2, s[84:87], 0 offen offset:16")
    A("L_nogate0:")
    A("s_barrier")
    xfrags()
    A("s_cmp_lg_u32 s9, 0"); A("s_cbranch_scc1 L_nogate")
    A("s_waitcnt vmcnt(0)")
    A("v_mov_b32 v16, 0"); A("v_mov_b32 v17, 0")
    for i in range(8):
        x, gw = 96 + i, 104 + i
        A(f"v_lshlrev_b32 v18, 16, v{x}"); A(f"v_and_b32 v19, 0xffff0000, v{x}")
        A(f"v_lshlrev_b32 v20, 16, v{gw}"); A(f"v_and_b32 v21, 0xffff0000, v{gw}")
        A("v_mul_f32 v18, v18, v20"); A("v_mul_f32 v19, v19, v21")
        A("v_cvt_pk_bf16_f32 v18, v18, v19")
        A("v_and_b32 v19, 0xffff0000, v18"); A("v_lshlrev_b32 v18, 16, v18")
        A("v_add_f32 v16, v16, v18"); A("v_add_f32 v17, v17, v19")
    A("v_add_f32 v16, v16, v17")
    for r in (1, 2, 4, 8): A(f"v_add_f32_dpp v16, v16, v16 row_ror:{r} row_mask:0xf bank_mask:0xf")
    for sw in ("v_permlane16_swap_b32", "v_permlane32_swap_b32"):
        A("v_mov_b32 v17, v16"); A(f"{sw} v16, v17"); A("v_add_f32 v16, v16, v17")
    A("v_cvt_pk_bf16_f32 v16, v16, v16"); A("v_lshlrev_b32 v16, 16, v16")
    A(f"v_mul_f32 v16, {0xBFB8AA3B:#x}, v16"); A("v_exp_f32 v16, v16"); A("v_add_f32 v16, 1.0, v16"); A("v_rcp_f32 v16, v16")
    A("v_cvt_pk_bf16_f32 v16, v16, v16"); A("v_lshlrev_b32 v16, 16, v16")
    A("v_sub_f32 v17, 1.0, v16"); A("v_cvt_pk_bf16_f32 v17, v17, v17"); A("v_lshlrev_b32 v17, 16, v17")
    A(f"v_mov_b32 v3, {FL+7*256}")
    A("s_mov_b64 exec, 1"); A("ds_write_b64 v3, v[16:17]"); A("s_mov_b64 exec, -1")
    flag(1)
    A("L_nogate:")
    wait_lds("v8", 1)
    A(f"v_mov_b32 v3, {FL+6*256}"); A("ds_read_b32 v15, v3")
    A("s_mov_b32 s14, 100")
    A("s_cmp_ge_u32 s5, 56"); A("s_cbranch_scc1 L_Bnow1")
    A("s_mov_b32 s14, 132")
    wait_lds("v7", 132)
    stamp(1)
    p1_run(ro)
    p1_publish("s9", HP, HINTH)
    A("L_Bnow1:")
    stamp(2)
    A("v_mul_u32_u24 v31, 544, v6"); A("v_lshl_add_u32 v31, v5, 4, v31"); A(f"v_add_u32 v31, {OB}, v31")
    A("v_lshlrev_b32 v30, 12, v6"); A("v_lshl_add_u32 v30, v5, 4, v30"); A("v_lshrrev_b32 v2, 3, v4"); A("v_lshl_add_u32 v30, v2, 6, v30")
    def final(P, nq, nks, lpk, label):
        sh = P.bit_length() - 1
        A("v_and_b32 v2, 7, v11"); A("v_lshlrev_b32 v2, 5, v2"); A(f"v_lshl_add_u32 v24, v11, {sh}, v2"); A("v_add_u32 v24, v24, v12")
        A(f"s_mul_i32 s8, s9, {nq*32}"); A("v_xor_b32 v24, s8, v24")
        for q in range(1, nq): A(f"v_xor_b32 v{24+q}, {q*32}, v24")
        fr = lambda ks, q: 64 + (ks * nq + q) * 4
        def reads(ks):
            A(f"s_add_u32 s14, s14, {lpk}")
            wait_lds("v7", None, sth="s14")
            for q in range(nq):
                A(f"ds_read_b64_tr_b16 v[{fr(ks,q)}:{fr(ks,q)+1}], v{24+q} offset:{ks*32*P}")
                A(f"ds_read_b64_tr_b16 v[{fr(ks,q)+2}:{fr(ks,q)+3}], v{24+q} offset:{ks*32*P + 16*P}")
        def mm(ks):
            for q in range(nq):
                c = "0" if ks == 0 else f"v[{128+4*q}:{131+4*q}]"
                A(f"v_mfma_f32_16x16x32_bf16 v[{128+4*q}:{131+4*q}], v[{fr(ks,q)}:{fr(ks,q)+3}], v[{32+4*ks}:{35+4*ks}], {c}")
        for ks in range(nks - 1): reads(ks)
        stamp(3)
        wait_lds("v8", 5)
        stamp(4)
        for ks in range(nks): A(f"ds_read_b128 v[{32+4*ks}:{35+4*ks}], v31 offset:{ks*64}")
        A("s_waitcnt lgkmcnt(0)")
        for ks in range(nks - 1): mm(ks)
        reads(nks - 1)
        stamp(5)
        A("s_waitcnt lgkmcnt(0)")
        mm(nks - 1)
        for q in range(nq):
            A(f"v_cvt_pk_bf16_f32 v{16+2*q}, v{128+4*q}, v{129+4*q}"); A(f"v_cvt_pk_bf16_f32 v{17+2*q}, v{130+4*q}, v{131+4*q}")
        for pr in range(nq // 2):
            d = 32 + 4*pr
            A(f"v_cndmask_b32 v{d}, v{16+4*pr}, v{18+4*pr}, s[50:51]"); A(f"v_cndmask_b32 v{d+2}, v{17+4*pr}, v{19+4*pr}, s[50:51]")
            A(f"v_mov_b32 v{d+1}, v15"); A(f"v_mov_b32 v{d+3}, v15")
            A(f"buffer_store_dwordx4 v[{d}:{d+3}], v30, s[44:47], s56 offen offset:{pr*128} sc1")
    A("s_cmp_ge_u32 s7, 16"); A("s_cbranch_scc1 L_Bw2")
    A("s_lshl_b32 s10, s6, 2"); A("s_lshr_b32 s8, s7, 2"); A("s_add_u32 s10, s10, s8"); A("s_lshl_b32 s56, s10, 15")
    A("s_and_b32 s8, s7, 3"); A("s_lshl_b32 s8, s8, 10"); A("s_add_u32 s56, s56, s8"); A("s_lshl_b32 s8, s9, 8"); A("s_add_u32 s56, s56, s8")
    A(f"s_add_u32 s56, s56, {FP}")
    final(512, 4, 4, 16, "wo")
    A("s_branch L_Bend")
    A("L_Bw2:")
    A("s_lshl_b32 s10, s6, 1"); A("s_bfe_u32 s8, s7, 0x10003"); A("s_add_u32 s10, s10, s8"); A("s_add_u32 s10, s10, 32"); A("s_lshl_b32 s56, s10, 15")
    A("s_and_b32 s8, s7, 7"); A("s_lshl_b32 s8, s8, 9"); A("s_add_u32 s56, s56, s8"); A("s_lshl_b32 s8, s9, 7"); A("s_add_u32 s56, s56, s8")
    A(f"s_add_u32 s56, s56, {FP}")
    final(256, 2, 7, 8, "w2")
    A("L_Bend:")
    stamp(6)
    dump_stamps(7)
    A("s_endpgm")
    A("L_codeend:")

    body = A.render()
    out = HEADER
    out += f"; @launch grid=(256,1,1) block=(576,1,1) lds={LDS_BYTES}\n"
    out += '.amdgcn_target "amdgcn-amd-amdhsa--gfx950"\n.text\n'
    out += f".globl {NAME}\n.p2align 8\n.type {NAME},@function\n"
    out += body
    out += f""".section .rodata,"a"
.p2align 6
.amdhsa_kernel {NAME}
  .amdhsa_next_free_vgpr 152
  .amdhsa_next_free_sgpr 102
  .amdhsa_accum_offset 152
  .amdhsa_group_segment_fixed_size 0
  .amdhsa_kernarg_size 96
  .amdhsa_user_sgpr_count 2
  .amdhsa_user_sgpr_kernarg_segment_ptr 1
  .amdhsa_system_sgpr_workgroup_id_x 1
  .amdhsa_float_denorm_mode_32 3
.end_amdhsa_kernel
"""
    return out

if __name__ == "__main__":
    import json
    kw = json.loads(sys.argv[2]) if len(sys.argv) > 2 else {}
    open(sys.argv[1], "w").write(gen(**kw))
```

```python
import sys
sys.path.insert(0, "work")
from asmlib import Asm

NAME = "gated_mix__sliding_block_cached__dense_activation_relu__decode_kernel"
HEADER = open("gated_mix__sliding_block_cached__dense_activation_relu__decode.s.ref").read().split("; Override launch")[0]

EPOCH = 0
HINTQ = 0x1000
HINTH = 0x2000
QP = 0x10000
HP = 0x90000
OP = 0x110000
LSE = 0x210000
FP = 0x220000
WS_USED = 0x400000
DIAG = 0x400000
R0, R1, R2, R3, M = 0x0, 0x8000, 0x10000, 0x18000, 0x20000
XS = M
QB = M + 0x1000
OB = M + 0x1A00
AC = M + 0x2C00
ST = M + 0x6E00
FL = M + 0x7000
LDS_BYTES = 160 * 1024
TAGK = 0x9E3779B1
SPIN_LIMIT = 400000
L2E = 0x3FB8AA3B
SCALE = 0x3DB504F3

def gen(D_early=32, D_late=32, diag=False, mimic=True, gflags="sc1", hint_sleep=0, code_pf=True, h_start=132, r_start=156, dbg=False):
    if dbg: diag = True
    A = Asm()
    nst = [0]
    SP = [68, 70, 72, 74, 76, 78, 80, 82, 62, 100, 32, 36]
    def stamp(i):
        if diag: A(f"s_memrealtime s[{SP[i]}:{SP[i]+1}]")
    def dump_stamps(n, dbgmap=()):
        if not diag: return
        A("s_waitcnt lgkmcnt(0)")
        if dbg:
            A("s_load_dwordx2 s[60:61], s[0:1], 80")
            A("s_waitcnt lgkmcnt(0)")
            A("s_mov_b64 exec, 1")
            A("v_mov_b32 v2, 0")
            for slot, i in dbgmap:
                if i == 0:
                    A(f"s_not_b32 s8, s{SP[0]}"); A("v_mov_b32 v3, s8")
                    A(f"global_atomic_umax v2, v3, s[60:61] offset:0")
                A(f"v_mov_b32 v3, s{SP[i]}")
                A(f"global_atomic_umax v2, v3, s[60:61] offset:{4*slot}")
                A("s_nop 1")
            return
        A("s_lshl_b32 s60, s2, 4"); A("s_add_u32 s60, s60, s3"); A("s_lshl_b32 s60, s60, 6"); A(f"s_add_u32 s60, s60, {DIAG}")
        A("s_mov_b64 exec, 1")
        A("v_mov_b32 v2, 0")
        for i in range(n):
            A(f"v_mov_b32 v3, s{SP[i]}")
            A(f"buffer_store_dword v3, v2, s[44:47], s60 offen offset:{4*i}")
    def spin_tail(L, Ld):
        A("s_add_u32 s41, s41, 1"); A(f"s_cmp_lt_u32 s41, {SPIN_LIMIT}"); A(f"s_cbranch_scc1 {L}"); A(f"{Ld}:")
    def wait_lds(vaddr, th, vt="v2", sth=None):
        L = A.lab("W"); Ld = L + "d"
        A(f"{L}:")
        A(f"ds_read_b32 {vt}, {vaddr}")
        A("s_waitcnt lgkmcnt(0)")
        A(f"v_cmp_gt_u32 vcc, {sth if sth else th}, {vt}")
        A(f"s_cbranch_vccz {Ld}")
        spin_tail(L, Ld)
    def srd(d, b, size):
        A(f"s_mov_b32 s{d}, s{b}"); A(f"s_mov_b32 s{d+1}, s{b+1}"); A(f"s_mov_b32 s{d+2}, {size:#x}"); A(f"s_mov_b32 s{d+3}, 0x20000")

    A(f"{NAME}:")
    A("s_cmp_ge_u32 s2, 256")
    A("s_cbranch_scc1 L_exit")
    A("s_load_dwordx16 s[16:31], s[0:1], 0")
    A("s_load_dwordx8 s[32:39], s[0:1], 64")
    stamp(0)
    A("v_lshrrev_b32 v2, 6, v0")
    A("v_and_b32 v1, 63, v0")
    A("v_readfirstlane_b32 s3, v2")
    A("s_mov_b32 s41, 0")
    A("s_lshr_b32 s4, s2, 6")
    A("s_and_b32 s5, s2, 63")
    A("s_and_b32 s6, s2, 7")
    A("s_lshr_b32 s7, s2, 3")
    A("s_cmp_eq_u32 s3, 0")
    A("s_cbranch_scc1 L_loader")
    if code_pf:
        A("s_getpc_b64 s[54:55]")
        A("L_pc:")
        A("v_subrev_u32 v2, 64, v0"); A("v_lshlrev_b32 v2, 7, v2"); A("v_min_u32 v2, L_codeend-L_pc-4, v2")
        A("global_load_dword v144, v2, s[54:55]")
    A("s_branch L_notloader")
    A("L_loader:")

    A("s_setprio 3")
    A("v_lshrrev_b32 v2, 5, v1"); A("v_lshlrev_b32 v2, 11, v2"); A("v_and_b32 v3, 31, v1"); A("v_lshl_add_u32 v4, v3, 4, v2")
    A("v_lshrrev_b32 v2, 3, v1"); A("v_and_b32 v2, 6, v2")
    A("v_and_b32 v3, 7, v1"); A("v_xor_b32 v3, v3, v2"); A("v_lshlrev_b32 v12, 4, v3")
    A("v_lshrrev_b32 v13, 3, v1")
    A("v_lshl_add_u32 v5, v13, 13, v12")
    A("s_lshl_b32 s8, s4, 9")
    A("s_lshl_b32 s9, s4, 21"); A("s_lshl_b32 s10, s5, 7"); A("s_add_u32 s9, s9, s10")
    A(f"s_mov_b32 s11, {XS}")
    A("s_waitcnt lgkmcnt(0)")
    srd(44, 16, 16384)
    srd(48, 22, 8 << 20)
    for i in range(4):
        A("s_mov_b32 m0, s11"); A("s_add_u32 s11, s11, 1024")
        A("buffer_load_dwordx4 v4, s[44:47], s8 offen lds"); A("s_add_u32 s8, s8, 4096")
    n = [4]
    A(f"v_mov_b32 v10, {FL}"); A("v_lshl_add_u32 v10, v1, 2, v10")
    barrier_done = [False]
    def seg(vregs, srdn, soff, step, ldsbase, count, D, label):
        first = 0
        A(f"s_mov_b32 s11, {ldsbase}")
        if not barrier_done[0]:
            burst = min(count, (D - n[0]) // 4 * 4)
            A(f"s_mov_b32 s13, {burst // 4}")
            A(f"{label}_b:")
            for u in range(4):
                A("s_mov_b32 m0, s11"); A("s_add_u32 s11, s11, 1024")
                A(f"buffer_load_dwordx4 {vregs[u]}, s[{srdn}:{srdn+3}], {soff} offen nt lds"); A(f"s_add_u32 {soff}, {soff}, {step}")
            A("s_sub_u32 s13, s13, 1"); A("s_cmp_lg_u32 s13, 0"); A(f"s_cbranch_scc1 {label}_b")
            n[0] += burst; first = burst
            post_burst()
            A("s_barrier")
            barrier_done[0] = True
            A(f"s_mov_b32 s14, {n[0]}")
        rem = count - first
        if rem:
            A(f"s_mov_b32 s13, {rem // 4}")
            A(f"{label}:")
            for u in range(4):
                A(f"s_waitcnt vmcnt({D-1})")
                if u == 3:
                    A(f"s_add_i32 s12, s14, {4 - D}"); A("s_max_i32 s12, s12, 0")
                    A("v_mov_b32 v11, s12"); A("ds_write_b32 v10, v11")
                A("s_mov_b32 m0, s11"); A("s_add_u32 s11, s11, 1024")
                A(f"buffer_load_dwordx4 {vregs[u]}, s[{srdn}:{srdn+3}], {soff} offen nt lds"); A(f"s_add_u32 {soff}, {soff}, {step}")
            A("s_add_u32 s14, s14, 4")
            A("s_sub_u32 s13, s13, 1"); A("s_cmp_lg_u32 s13, 0"); A(f"s_cbranch_scc1 {label}")
    def post_burst():
        srd(52, 18, 32 << 20)
        srd(56, 20, 32 << 20)
        srd(60, 28, 7 << 20)
        A("v_lshrrev_b32 v2, 4, v1"); A("v_and_b32 v3, 15, v1"); A("v_xor_b32 v6, v3, v2"); A("v_lshlrev_b32 v6, 4, v6")
        A("v_lshl_add_u32 v16, v2, 8, v6"); A("v_xor_b32 v17, 64, v16"); A("v_xor_b32 v18, 0x80, v16"); A("v_xor_b32 v19, 0xc0, v16")
        A("v_lshlrev_b32 v6, 1, v2"); A("v_xor_b32 v6, v3, v6"); A("v_lshlrev_b32 v6, 4, v6")
        A("v_lshl_add_u32 v20, v2, 8, v6"); A("v_xor_b32 v21, 0x80, v20")
        A("v_lshl_add_u32 v22, v2, 11, v6"); A("v_xor_b32 v23, 0x80, v22")
        A("v_mul_u32_u24 v24, 0x1c00, v13"); A("v_add_u32 v24, v24, v12")
        A("v_lshrrev_b32 v2, 5, v1"); A("v_and_b32 v3, 31, v1"); A("v_lshlrev_b32 v6, 1, v2"); A("v_xor_b32 v6, v3, v6"); A("v_lshlrev_b32 v6, 4, v6")
        A("v_lshl_add_u32 v25, v2, 11, v6"); A("v_xor_b32 v26, 64, v25"); A("v_xor_b32 v27, 0x80, v25"); A("v_xor_b32 v28, 0xc0, v25")
        A("s_lshr_b32 s8, s7, 3"); A("s_lshl_b32 s8, s8, 3"); A("s_add_u32 s8, s8, s6"); A("s_lshl_b32 s8, s8, 20")
        A("s_and_b32 s10, s7, 7"); A("s_lshl_b32 s10, s10, 15"); A("s_add_u32 s8, s8, s10"); A(f"s_add_u32 s8, s8, {3072*256}")
        A("s_mov_b32 s15, s8")
        A(f"s_mul_i32 s42, s4, {256*7168}"); A("s_lshl_b32 s10, s5, 7"); A("s_add_u32 s42, s42, s10")
        A(f"v_mov_b32 v29, {FL+256}"); A("v_and_b32 v2, 3, v1"); A("v_lshl_add_u32 v29, v2, 8, v29")
    seg(["v5"]*4, 48, "s9", 65536, R0, 32, D_early, "L_wq")
    seg(["v16", "v17", "v18", "v19"], 52, "s8", 1024, R1, 32, D_early, "L_k")
    seg(["v20", "v21", "v20", "v21"], 56, "s15", 1024, R2, 32, D_early, "L_v")
    A("s_cmp_ge_u32 s5, 56"); A("s_cbranch_scc1 L_now1")
    seg(["v24"]*4, 60, "s42", 8*7168, R3, 32, D_early, "L_w1")
    A("L_now1:")
    stamp(1)
    if D_early > 32:
        A("s_waitcnt vmcnt(32)"); A("s_sub_u32 s12, s14, 32"); A("v_mov_b32 v11, s12"); A("ds_write_b32 v10, v11")
    wait_lds("v29", 2)
    A("s_cmp_ge_u32 s7, 16"); A("s_cbranch_scc1 L_ldw2")
    srd(64, 24, 8 << 20)
    A("s_lshl_b32 s8, s6, 2"); A("s_lshr_b32 s10, s7, 2"); A("s_add_u32 s8, s8, s10"); A("s_lshl_b32 s8, s8, 18")
    A("s_and_b32 s10, s7, 3"); A("s_lshl_b32 s10, s10, 9"); A("s_add_u32 s8, s8, s10")
    seg(["v25", "v26", "v27", "v28"], 64, "s8", 4096, R0, 64, D_late, "L_wo")
    A("s_branch L_drain")
    A("L_ldw2:")
    srd(64, 30, 7 << 20)
    A("s_lshl_b32 s8, s6, 1"); A("s_bfe_u32 s10, s7, 0x10003"); A("s_add_u32 s8, s8, s10"); A(f"s_mul_i32 s8, s8, {224*2048}")
    A("s_and_b32 s10, s7, 7"); A("s_lshl_b32 s10, s10, 8"); A("s_add_u32 s8, s8, s10")
    seg(["v22", "v23", "v22", "v23"], 64, "s8", 8192, R0, 56, D_late, "L_w2")
    A("L_drain:")
    for k in range(D_late - 4, -1, -4):
        A(f"s_waitcnt vmcnt({k})")
        A(f"s_sub_u32 s12, s14, {k}"); A("v_mov_b32 v11, s12"); A("ds_write_b32 v10, v11")
    stamp(2)
    if diag:
        srd(44, 38, 0x800000)
        dump_stamps(3, [(1,0),(2,1),(3,2)])
    A("L_exit:")
    A("s_endpgm")

    A("L_notloader:")
    A("v_and_b32 v4, 15, v1")
    A("v_lshrrev_b32 v5, 4, v1")
    A("v_and_b32 v6, 7, v1")
    A(f"v_mov_b32 v7, {FL}")
    A(f"v_mov_b32 v8, {FL+256}"); A("v_and_b32 v2, 3, v1"); A("v_lshl_add_u32 v8, v2, 8, v8")
    A("s_lshl_b32 s8, s3, 8"); A(f"s_add_u32 s8, s8, {FL}"); A("v_lshl_add_u32 v9, v1, 2, s8")
    A("v_lshlrev_b32 v10, 9, v6"); A("v_lshl_add_u32 v10, v5, 3, v10"); A(f"v_add_u32 v10, {XS}, v10")
    A("v_lshrrev_b32 v11, 2, v1")
    A("v_and_b32 v12, 3, v1"); A("v_lshlrev_b32 v12, 3, v12")
    A("s_mov_b32 s48, 0x00ff00ff"); A("s_mov_b32 s49, 0x00ff00ff")
    A("s_mov_b32 s50, 0xff00ff00"); A("s_mov_b32 s51, 0xff00ff00")
    A("s_cmp_lg_u32 s3, 8"); A("s_cbranch_scc1 L_noinit")
    A("v_mov_b32 v16, 0"); A("v_mov_b32 v17, 0"); A("v_mov_b32 v18, 0"); A("v_mov_b32 v19, 0")
    A(f"v_mov_b32 v2, {FL}"); A("v_lshl_add_u32 v2, v1, 4, v2")
    A("ds_write_b128 v2, v[16:19]"); A("ds_write_b128 v2, v[16:19] offset:1024")
    A("L_noinit:")
    A("s_waitcnt lgkmcnt(0)")
    srd(44, 38, 0x800000 if diag else WS_USED)
    A("s_cmp_ge_u32 s3, 5"); A("s_cbranch_scc1 L_B")

    def p1_gemv(region, qs, dst_base, hint_base, label):
        A("v_lshrrev_b32 v2, 1, v11"); A("v_and_b32 v2, 3, v2"); A(f"v_xor_b32 v2, {qs}, v2"); A("v_lshlrev_b32 v2, 5, v2")
        A("v_lshl_add_u32 v13, v11, 7, v2"); A("v_add_u32 v13, v13, v12")
        if region >= 0x10000:
            A(f"v_add_u32 v13, {region}, v13"); ro = 0
        else:
            ro = region
        return ro
    def p1_run(ro):
        for ks in range(8):
            A(f"ds_read_b64_tr_b16 v[{64+4*ks}:{65+4*ks}], v13 offset:{ro + ks*4096}")
            A(f"ds_read_b64_tr_b16 v[{66+4*ks}:{67+4*ks}], v13 offset:{ro + ks*4096 + 2048}")
        for ks in range(8):
            A(f"s_waitcnt lgkmcnt({min(15, 14 - 2*ks)})")
            c = "0" if ks == 0 else "v[16:19]"
            A(f"v_mfma_f32_16x16x32_bf16 v[16:19], v[{64+4*ks}:{67+4*ks}], v[{32+4*ks}:{35+4*ks}], {c}")
    def xfrags():
        wait_lds("v7", 4)
        for ks in range(8):
            A(f"ds_read2_b64 v[{32+4*ks}:{35+4*ks}], v10 offset0:{ks*8} offset1:{ks*8+4}")
    def p1_publish(qs, base, hint):
        A("v_cvt_pk_bf16_f32 v20, v16, v17"); A("v_cvt_pk_bf16_f32 v22, v18, v19")
        A("v_mov_b32 v21, v15"); A("v_mov_b32 v23, v15")
        A("s_mov_b64 exec, s[48:49]")
        A("buffer_store_dwordx4 v[20:23], v14, s[44:47], s52 offen sc1")
        A("s_mov_b64 exec, -1")
    def p1_addr(qs, base, hint):
        A("v_lshlrev_b32 v14, 14, v6"); A("v_lshl_add_u32 v14, v5, 4, v14")
        A("s_lshl_b32 s52, s4, 17"); A("s_lshl_b32 s8, s5, 8"); A("s_add_u32 s52, s52, s8")
        A(f"s_lshl_b32 s8, {qs}, 6"); A("s_add_u32 s52, s52, s8"); A(f"s_add_u32 s52, s52, {base}")
    def flag(stage):
        A(f"v_mov_b32 v2, {stage}"); A("ds_write_b32 v9, v2")
    def hint_poll(nblk, stride_tag):
        pass

    A("s_load_dword s40, s[38:39], 0")
    A("s_sub_u32 s9, s3, 1")
    ro = p1_gemv(R0, "s9", QP, HINTQ, "A")
    p1_addr("s9", QP, HINTQ)
    A("s_barrier")
    xfrags()
    A("s_waitcnt lgkmcnt(0)")
    A(f"s_add_u32 s40, s40, {TAGK:#x}"); A("s_mov_b32 s42, s40"); A("s_mov_b32 s43, s40")
    A("v_mov_b32 v15, s40")
    A("s_lshr_b32 s10, s7, 3"); A("s_lshl_b32 s10, s10, 3"); A("s_add_u32 s10, s10, s6")
    A("s_lshr_b32 s11, s10, 2")
    A("s_and_b32 s12, s10, 3")
    A("s_and_b32 s13, s7, 7")
    A("v_xor_b32 v2, v5, v4"); A("v_lshlrev_b32 v2, 4, v2"); A("v_lshl_add_u32 v24, v4, 8, v2")
    A("s_lshl_b32 s8, s9, 13"); A(f"s_add_u32 s8, s8, {R1}"); A("v_add_u32 v24, s8, v24")
    A("v_xor_b32 v25, 64, v24"); A("v_xor_b32 v26, 0x80, v24"); A("v_xor_b32 v27, 0xc0, v24")
    A("v_and_b32 v2, 7, v11"); A("v_lshlrev_b32 v2, 5, v2"); A("v_lshl_add_u32 v28, v11, 8, v2"); A("v_add_u32 v28, v28, v12")
    A("s_lshl_b32 s8, s9, 13"); A(f"s_add_u32 s8, s8, {R2}"); A("v_add_u32 v28, s8, v28")
    A("s_lshl_b32 s14, s9, 3"); A("s_add_u32 s15, s14, 76"); A("s_add_u32 s14, s14, 44")
    wait_lds("v7", 36)
    stamp(1)
    p1_run(ro)
    p1_publish("s9", QP, HINTQ)
    stamp(2)
    A(f"v_mov_b32 v3, {FL + 6*256}"); A("v_lshl_add_u32 v3, v1, 2, v3"); A("ds_write_b32 v3, v15")
    flag(1)
    wait_lds("v7", None, sth="s14")
    for t in range(2):
        for s in range(4):
            A(f"ds_read_b128 v[{32+16*t+4*s}:{35+16*t+4*s}], v{24+s} offset:{t*4096}")
    A("v_lshlrev_b32 v29, 4, v1")
    A("s_lshl_b32 s56, s11, 14"); A("s_lshl_b32 s8, s12, 12"); A("s_add_u32 s56, s56, s8"); A("s_lshl_b32 s8, s9, 10"); A("s_add_u32 s56, s56, s8")
    A(f"s_add_u32 s56, s56, {QP}"); A("s_add_u32 s57, s56, 0x20000"); A("s_add_u32 s58, s56, 0x40000"); A("s_add_u32 s59, s56, 0x60000")
    A("v_lshrrev_b32 v2, 5, v1"); A("v_mul_u32_u24 v2, 288, v2"); A("v_and_b32 v3, 31, v1"); A("v_lshl_add_u32 v30, v3, 3, v2")
    A("s_mul_i32 s8, s9, 576"); A(f"s_add_u32 s8, s8, {QB}"); A("v_add_u32 v30, s8, v30")
    A("v_mul_u32_u24 v31, 288, v6"); A("v_lshl_add_u32 v31, v5, 4, v31"); A(f"v_add_u32 v31, {QB}, v31")
    A("s_waitcnt lgkmcnt(0)")
    flag(2)
    stamp(3)
    def gather(loads, full="-1", tb=112):
        N = len(loads)
        L = A.lab("G"); Ld = L + "d"; Lc = L + "c"
        for d, t in loads: A(t)
        A(f"{Lc}:")
        A("s_waitcnt vmcnt(0)")
        for i, (d, t) in enumerate(loads):
            A(f"v_xor_b32 v{tb+i}, v{d+1}, v15"); A(f"v_bitop3_b32 v{tb+i}, v{tb+i}, v{d+3}, v15 bitop3:0xf6")
        A(f"v_or_b32 v2, v{tb}, v{tb+1}")
        for i in range(2, N, 2): A(f"v_or3_b32 v2, v2, v{tb+i}, v{tb+i+1}")
        A("v_cmp_ne_u32 vcc, 0, v2")
        A(f"s_cbranch_vccz {Ld}")
        A("s_add_u32 s41, s41, 64"); A(f"s_cmp_ge_u32 s41, {SPIN_LIMIT}"); A(f"s_cbranch_scc1 {Ld}")
        if hint_sleep: A(f"s_sleep {hint_sleep}")
        for i in range(N): A(f"v_cmp_ne_u32 s[{16+2*(i%8)}:{17+2*(i%8)}], 0, v{tb+i}" if i < 8 else f"v_cmp_ne_u32 s[{84+2*(i-8)}:{85+2*(i-8)}], 0, v{tb+i}")
        for i, (d, t) in enumerate(loads):
            m = 16 + 2*i if i < 8 else 84 + 2*(i-8)
            sk = A.lab("S")
            A(f"s_mov_b64 exec, s[{m}:{m+1}]"); A(f"s_cbranch_execz {sk}"); A(t.replace(gflags, "sc1") if gflags else t + " sc1"); A(f"{sk}:")
        A(f"s_mov_b64 exec, {full}")
        A(f"s_branch {Lc}")
        A(f"{Ld}:")
    stamp(4)
    gather([(64+4*sp, f"buffer_load_dwordx4 v[{64+4*sp}:{67+4*sp}], v29, s[44:47], s{56+sp} offen {gflags}") for sp in range(4)])
    stamp(5)
    def sum4(base, n, stride, out):
        for k, off in enumerate((0, 2)):
            for i in range(n):
                r = base + stride * i + off
                if i == 0:
                    A(f"v_lshlrev_b32 v{out+2*k}, 16, v{r}"); A(f"v_and_b32 v{out+2*k+1}, 0xffff0000, v{r}")
                else:
                    A(f"v_lshlrev_b32 v2, 16, v{r}"); A(f"v_and_b32 v3, 0xffff0000, v{r}")
                    A(f"v_add_f32 v{out+2*k}, v{out+2*k}, v2"); A(f"v_add_f32 v{out+2*k+1}, v{out+2*k+1}, v3")
    sum4(64, 4, 4, 16)
    A("v_cvt_pk_bf16_f32 v20, v16, v17"); A("v_cvt_pk_bf16_f32 v21, v18, v19")
    A("ds_write_b64 v30, v[20:21]")
    flag(3)
    wait_lds("v8", 3)
    for s in range(4):
        A(f"ds_read_b128 v[{64+4*s}:{67+4*s}], v31 offset:{s*64}")
    for s in range(4):
        A(f"s_waitcnt lgkmcnt({3-s})")
        for t in range(2):
            c = "0" if s == 0 else f"v[{16+4*t}:{19+4*t}]"
            A(f"v_mfma_f32_16x16x32_bf16 v[{16+4*t}:{19+4*t}], v[{32+16*t+4*s}:{35+16*t+4*s}], v[{64+4*s}:{67+4*s}], {c}")
    A(f"s_mov_b32 s60, {SCALE:#x}"); A(f"s_mov_b32 s61, {L2E:#x}")
    if mimic:
        for i in range(4):
            a, b = 16 + 2*i, 17 + 2*i
            A(f"v_cvt_pk_bf16_f32 v2, v{a}, v{b}")
            A(f"v_lshlrev_b32 v{a}, 16, v2"); A(f"v_and_b32 v{b}, 0xffff0000, v2")
            A(f"v_mul_f32 v{a}, s60, v{a}"); A(f"v_mul_f32 v{b}, s60, v{b}")
            A(f"v_cvt_pk_bf16_f32 v2, v{a}, v{b}")
            A(f"v_lshlrev_b32 v{a}, 16, v2"); A(f"v_and_b32 v{b}, 0xffff0000, v2")
    else:
        for i in range(8): A(f"v_mul_f32 v{16+i}, s60, v{16+i}")
    A("v_max3_f32 v2, v16, v17, v18"); A("v_max3_f32 v3, v19, v20, v21"); A("v_max3_f32 v2, v2, v22, v23"); A("v_max_f32 v2, v2, v3")
    A("v_mov_b32 v3, v2"); A("v_permlane16_swap_b32 v2, v3"); A("v_max_f32 v2, v2, v3")
    A("v_mov_b32 v3, v2"); A("v_permlane32_swap_b32 v2, v3"); A("v_max_f32 v2, v2, v3")
    A("v_mul_f32 v96, s61, v2")
    for i in range(8):
        A(f"v_fma_f32 v{16+i}, v{16+i}, s61, -v96")
    for i in range(8):
        A(f"v_exp_f32 v{16+i}, v{16+i}")
    for i in range(4):
        A(f"v_cvt_pk_bf16_f32 v{100+i}, v{16+2*i}, v{17+2*i}")
    A("v_add_f32 v2, v16, v17"); A("v_add_f32 v3, v18, v19"); A("v_add_f32 v2, v2, v20"); A("v_add_f32 v3, v3, v21")
    A("v_add_f32 v2, v2, v22"); A("v_add_f32 v3, v3, v23"); A("v_add_f32 v97, v2, v3")
    A("v_mov_b32 v3, v97"); A("v_permlane16_swap_b32 v97, v3"); A("v_add_f32 v97, v97, v3")
    A("v_mov_b32 v3, v97"); A("v_permlane32_swap_b32 v97, v3"); A("v_add_f32 v97, v97, v3")
    stamp(6)
    wait_lds("v7", None, sth="s15")
    for q in range(8):
        if q: A(f"v_xor_b32 v3, {q*32}, v28")
        ad = "v3" if q else "v28"
        A(f"ds_read_b64_tr_b16 v[{32+4*q}:{33+4*q}], {ad}")
        A(f"ds_read_b64_tr_b16 v[{34+4*q}:{35+4*q}], {ad} offset:4096")
    A("v_mul_u32_u24 v24, 528, v6"); A("v_lshl_add_u32 v24, v5, 4, v24")
    A("s_mul_i32 s8, s9, 4224"); A(f"s_add_u32 s8, s8, {AC}"); A("v_add_u32 v24, s8, v24")
    A("s_lshl_b32 s8, s9, 2"); A(f"s_add_u32 s8, s8, {ST}"); A("v_lshl_add_u32 v25, v6, 5, s8")
    for q in range(8):
        A(f"s_waitcnt lgkmcnt({min(15, 14-2*q)})")
        A(f"v_mfma_f32_16x16x32_bf16 v[{64+4*q}:{67+4*q}], v[{32+4*q}:{35+4*q}], v[100:103], 0")
    A("s_mov_b64 exec, 0xff")
    A("ds_write2_b32 v25, v96, v97 offset0:0 offset1:4")
    A("s_mov_b64 exec, s[48:49]")
    for q in range(8):
        A(f"ds_write_b128 v24, v[{64+4*q}:{67+4*q}] offset:{q*64}")
    A("s_mov_b64 exec, -1")
    flag(4)
    A("v_lshrrev_b32 v2, 5, v1"); A("s_lshl_b32 s8, s9, 1"); A("v_add_u32 v2, s8, v2")
    A("v_mul_u32_u24 v26, 528, v2"); A("v_and_b32 v3, 31, v1"); A("v_lshl_add_u32 v26, v3, 4, v26"); A(f"v_add_u32 v26, {AC}, v26")
    A("v_lshlrev_b32 v27, 5, v2"); A(f"v_add_u32 v27, {ST}, v27")
    A("v_lshlrev_b32 v30, 15, v2"); A("v_lshl_add_u32 v30, v3, 4, v30")
    A("s_lshl_b32 s56, s12, 18"); A("s_lshl_b32 s8, s11, 12"); A("s_add_u32 s56, s56, s8"); A("s_lshl_b32 s8, s13, 9"); A("s_add_u32 s56, s56, s8")
    A("s_lshr_b32 s57, s56, 12"); A("s_lshl_b32 s57, s57, 6"); A("s_and_b32 s8, s13, 1"); A("s_lshl_b32 s8, s8, 5"); A("s_add_u32 s57, s57, s8")
    A("s_lshr_b32 s8, s13, 1"); A("s_lshl_b32 s8, s8, 3"); A("s_add_u32 s57, s57, s8")
    A(f"s_add_u32 s56, s56, {OP}"); A(f"s_add_u32 s57, s57, {LSE}")
    A("v_lshlrev_b32 v31, 9, v2")
    wait_lds("v8", 4)
    A("ds_read_b128 v[16:19], v27"); A("ds_read_b128 v[20:23], v27 offset:16")
    for i in range(4):
        A(f"ds_read_b128 v[{32+4*i}:{35+4*i}], v26 offset:{i*4224}")
    A("s_waitcnt lgkmcnt(4)")
    A("v_max3_f32 v2, v16, v17, v18"); A("v_max_f32 v2, v2, v19")
    for i in range(4): A(f"v_sub_f32 v{16+i}, v{16+i}, v2")
    for i in range(4): A(f"v_exp_f32 v{16+i}, v{16+i}")
    A("v_mul_f32 v3, v16, v20")
    for i in range(1, 4): A(f"v_fmac_f32 v3, v{16+i}, v{20+i}")
    A("v_rcp_f32 v20, v3"); A("v_log_f32 v21, v3")
    for i in range(4): A(f"v_mul_f32 v{16+i}, v{16+i}, v20")
    A("v_add_f32 v22, v2, v21"); A("v_mov_b32 v23, v15")
    A("s_waitcnt lgkmcnt(0)")
    for k in range(4):
        A(f"v_mul_f32 v{48+k}, v16, v{32+k}")
    for i in range(1, 4):
        for k in range(4):
            A(f"v_fmac_f32 v{48+k}, v{16+i}, v{32+4*i+k}")
    A("v_cvt_pk_bf16_f32 v52, v48, v49"); A("v_cvt_pk_bf16_f32 v54, v50, v51"); A("v_mov_b32 v53, v15"); A("v_mov_b32 v55, v15")
    A("buffer_store_dwordx4 v[52:55], v30, s[44:47], s56 offen sc1")
    A("s_mov_b32 exec_lo, 1"); A("s_mov_b32 exec_hi, 1")
    A("buffer_store_dwordx2 v[22:23], v31, s[44:47], s57 offen sc1")
    A("s_mov_b64 exec, -1")
    stamp(7)
    def unitpos(dst, u):
        A(f"v_lshrrev_b32 v2, 3, {u}"); A(f"v_lshlrev_b32 {dst}, 6, v2")
        A(f"v_and_b32 v2, 3, {u}"); A(f"v_lshl_add_u32 {dst}, v2, 4, {dst}")
        A(f"v_bfe_u32 v2, {u}, 2, 1"); A(f"v_lshl_add_u32 {dst}, v2, 3, {dst}")
    A("s_cmp_ge_u32 s7, 16"); A("s_cbranch_scc1 L_gh")
    A("s_lshl_b32 s10, s6, 2"); A("s_lshr_b32 s8, s7, 2"); A("s_add_u32 s10, s10, s8")
    A("s_lshl_b32 s56, s10, 15"); A("s_lshl_b32 s8, s9, 13"); A("s_add_u32 s56, s56, s8")
    A("s_lshr_b32 s58, s56, 6"); A(f"s_add_u32 s58, s58, {LSE}"); A("v_and_b32 v31, 32, v1")
    A(f"s_add_u32 s56, s56, {OP}"); A("s_add_u32 s57, s56, 4096")
    A("v_and_b32 v3, 31, v1"); unitpos("v30", "v3")
    A("v_lshrrev_b32 v2, 5, v1"); A("v_mul_u32_u24 v2, 544, v2"); A("v_add_u32 v30, v30, v2")
    A("s_mul_i32 s8, s9, 1088"); A(f"s_add_u32 s8, s8, {OB}"); A("v_add_u32 v30, s8, v30")
    stamp(8)
    lo = [(80+8*bb+4*k, f"buffer_load_dwordx4 v[{80+8*bb+4*k}:{83+8*bb+4*k}], v31, s[44:47], s58 offen offset:{bb*64+k*16} {gflags}") for bb in range(2) for k in range(2)]
    lo += [(32+16*bb+4*i, f"buffer_load_dwordx4 v[{32+16*bb+4*i}:{35+16*bb+4*i}], v29, s[44:47], s{56+bb} offen offset:{i*1024} {gflags}") for bb in range(2) for i in range(4)]
    gather(lo)
    for bb in range(2):
        for i in range(4): A(f"v_mov_b32 v{16+4*bb+i}, v{80+8*bb+2*i}")
    for bb in range(2):
        o = 16 + 4*bb
        A(f"v_max3_f32 v2, v{o}, v{o+1}, v{o+2}"); A(f"v_max_f32 v2, v2, v{o+3}")
        A("v_mov_b32 v3, v2"); A("v_permlane32_swap_b32 v2, v3"); A("v_max_f32 v2, v2, v3")
        for i in range(4): A(f"v_sub_f32 v{o+i}, v{o+i}, v2")
        for i in range(4): A(f"v_exp_f32 v{o+i}, v{o+i}")
        A(f"v_add_f32 v2, v{o}, v{o+1}"); A(f"v_add_f32 v3, v{o+2}, v{o+3}"); A("v_add_f32 v2, v2, v3")
        A("v_mov_b32 v3, v2"); A("v_permlane32_swap_b32 v2, v3"); A("v_add_f32 v2, v2, v3")
        A("v_rcp_f32 v2, v2")
        for i in range(4): A(f"v_mul_f32 v{o+i}, v{o+i}, v2")
    for bb in range(2):
        for k, off in enumerate((0, 2)):
            for i in range(4):
                r = 32 + 16*bb + 4*i + off; w = 16 + 4*bb + i; o = 64 + 4*bb + 2*k
                A(f"v_lshlrev_b32 v2, 16, v{r}"); A(f"v_and_b32 v3, 0xffff0000, v{r}")
                if i == 0:
                    A(f"v_mul_f32 v{o}, v{w}, v2"); A(f"v_mul_f32 v{o+1}, v{w}, v3")
                else:
                    A(f"v_fmac_f32 v{o}, v{w}, v2"); A(f"v_fmac_f32 v{o+1}, v{w}, v3")
    for k in range(4): A(f"v_permlane32_swap_b32 v{64+k}, v{68+k}")
    for k in range(4): A(f"v_add_f32 v{64+k}, v{64+k}, v{68+k}")
    A("v_cvt_pk_bf16_f32 v20, v64, v65"); A("v_cvt_pk_bf16_f32 v21, v66, v67")
    A("ds_write_b64 v30, v[20:21]")
    A("s_branch L_gdone")
    A("L_gh:")
    A("s_lshl_b32 s10, s6, 1"); A("s_bfe_u32 s8, s7, 0x10003"); A("s_add_u32 s10, s10, s8")
    A("s_mul_i32 s56, s10, 896"); A("s_lshl_b32 s8, s9, 15"); A("s_add_u32 s56, s56, s8"); A(f"s_add_u32 s56, s56, {HP}")
    A("s_add_u32 s57, s56, 0x20000"); A("s_add_u32 s58, s56, 0x40000"); A("s_add_u32 s59, s56, 0x60000")
    A("v_add_u32 v31, 0x4000, v29")
    unitpos("v30", "v1")
    A("s_mul_i32 s8, s9, 1088"); A(f"s_add_u32 s8, s8, {OB}"); A("v_add_u32 v30, s8, v30")
    wait_lds("v7", h_start)
    stamp(8)
    A("s_mov_b32 s54, -1"); A("s_mov_b32 s55, 0x00ffffff")
    A("s_mov_b64 exec, s[54:55]")
    gather([(32+16*bb+4*sp, f"buffer_load_dwordx4 v[{32+16*bb+4*sp}:{35+16*bb+4*sp}], v{29 if bb == 0 else 31}, s[44:47], s{56+sp} offen {gflags}") for bb in range(2) for sp in range(4)], full="s[54:55]")
    for bb in range(2):
        sum4(32 + 16*bb, 4, 4, 64 + 4*bb)
        for k in range(4): A(f"v_max_f32 v{64+4*bb+k}, 0, v{64+4*bb+k}")
        A(f"v_cvt_pk_bf16_f32 v{20+2*bb}, v{64+4*bb}, v{65+4*bb}"); A(f"v_cvt_pk_bf16_f32 v{21+2*bb}, v{66+4*bb}, v{67+4*bb}")
        A(f"ds_write_b64 v30, v[{20+2*bb}:{21+2*bb}] offset:{544*bb}")
    A("s_mov_b64 exec, -1")
    A("L_gdone:")
    flag(5)
    stamp(9)
    A("s_cmp_lg_u32 s9, 0"); A("s_cbranch_scc1 L_Aend")
    A("v_lshrrev_b32 v2, 3, v1"); A("v_lshlrev_b32 v29, 15, v2"); A("v_lshl_add_u32 v29, v6, 4, v29")
    A("s_lshr_b32 s10, s2, 5"); A("s_lshl_b32 s56, s10, 12"); A("s_and_b32 s11, s2, 31"); A("s_lshl_b32 s8, s11, 7"); A("s_add_u32 s56, s56, s8")
    A(f"s_add_u32 s56, s56, {FP}")
    for i in range(1, 6): A(f"s_add_u32 s{56+i}, s56, {i*0x40000}")
    srd(64, 34, 16384)
    A("s_lshl_b32 s12, s10, 11"); A("s_lshl_b32 s8, s11, 6"); A("s_add_u32 s12, s12, s8")
    A("v_lshlrev_b32 v30, 3, v6")
    A(f"v_mov_b32 v3, {FL+5*256}")
    wait_lds("v3", 1)
    A(f"v_mov_b32 v3, {FL+7*256}")
    A("ds_read_b64 v[24:25], v3")
    wait_lds("v7", r_start)
    gather([(32+4*i, f"buffer_load_dwordx4 v[{32+4*i}:{35+4*i}], v29, s[44:47], s{56+i} offen {gflags}") for i in range(6)])
    stamp(10)
    sum4(32, 4, 4, 64)
    sum4(48, 2, 4, 68)
    for k in range(8): A(f"v_add_f32_dpp v{64+k}, v{64+k}, v{64+k} row_ror:8 row_mask:0xf bank_mask:0xf")
    for sw in ("v_permlane16_swap_b32", "v_permlane32_swap_b32"):
        for k in range(8): A(f"v_mov_b32 v{72+k}, v{64+k}")
        for k in range(8): A(f"{sw} v{64+k}, v{72+k}")
        for k in range(8): A(f"v_add_f32 v{64+k}, v{64+k}, v{72+k}")
    A("s_waitcnt lgkmcnt(0)")
    for base, gv in ((64, "v24"), (68, "v25")):
        for p in range(2):
            a, b = base + 2*p, base + 2*p + 1
            A(f"v_cvt_pk_bf16_f32 v2, v{a}, v{b}")
            A(f"v_lshlrev_b32 v{a}, 16, v2"); A(f"v_and_b32 v{b}, 0xffff0000, v2")
            A(f"v_mul_f32 v{a}, {gv}, v{a}"); A(f"v_mul_f32 v{b}, {gv}, v{b}")
            A(f"v_cvt_pk_bf16_f32 v2, v{a}, v{b}")
            A(f"v_lshlrev_b32 v{a}, 16, v2"); A(f"v_and_b32 v{b}, 0xffff0000, v2")
    for k in range(4): A(f"v_add_f32 v{64+k}, v{64+k}, v{68+k}")
    A("v_cvt_pk_bf16_f32 v20, v64, v65"); A("v_cvt_pk_bf16_f32 v21, v66, v67")
    A("s_mov_b64 exec, 0xff")
    A("buffer_store_dwordx2 v[20:21], v30, s[64:67], s12 offen")
    A("s_cmp_lg_u32 s2, 0"); A("s_cbranch_scc1 L_Aend")
    A("s_mov_b64 exec, 1")
    A("v_mov_b32 v2, 0")
    A("buffer_store_dword v15, v2, s[44:47], 0 offen sc1")
    A("L_Aend:")
    stamp(11)
    dump_stamps(12, [(4,1),(5,2),(6,3),(7,5),(8,7),(9,9),(10,11)])
    A("s_endpgm")

    A("L_B:")
    A("s_sub_u32 s9, s3, 5")
    ro = p1_gemv(R3, "s9", HP, HINTH, "B")
    p1_addr("s9", HP, HINTH)
    A("s_cmp_lg_u32 s9, 0"); A("s_cbranch_scc1 L_nogate0")
    srd(64, 16, 16384)
    srd(84, 32, 2048)
    A("s_lshr_b32 s10, s2, 5"); A("s_lshl_b32 s10, s10, 11")
    A("v_lshlrev_b32 v2, 5, v1")
    A("buffer_load_dwordx4 v[96:99], v2, s[64:67], s10 offen"); A("buffer_load_dwordx4 v[100:103], v2, s[64:67], s10 offen offset:16")
    A("buffer_load_dwordx4 v[104:107], v2, s[84:87], 0 offen"); A("buffer_load_dwordx4 v[108:111], v2, s[84:87], 0 offen offset:16")
    A("L_nogate0:")
    A("s_barrier")
    xfrags()
    A("s_cmp_lg_u32 s9, 0"); A("s_cbranch_scc1 L_nogate")
    A("s_waitcnt vmcnt(0)")
    A("v_mov_b32 v16, 0"); A("v_mov_b32 v17, 0")
    for i in range(8):
        x, gw = 96 + i, 104 + i
        A(f"v_lshlrev_b32 v18, 16, v{x}"); A(f"v_and_b32 v19, 0xffff0000, v{x}")
        A(f"v_lshlrev_b32 v20, 16, v{gw}"); A(f"v_and_b32 v21, 0xffff0000, v{gw}")
        A("v_mul_f32 v18, v18, v20"); A("v_mul_f32 v19, v19, v21")
        A("v_cvt_pk_bf16_f32 v18, v18, v19")
        A("v_and_b32 v19, 0xffff0000, v18"); A("v_lshlrev_b32 v18, 16, v18")
        A("v_add_f32 v16, v16, v18"); A("v_add_f32 v17, v17, v19")
    A("v_add_f32 v16, v16, v17")
    for r in (1, 2, 4, 8): A(f"v_add_f32_dpp v16, v16, v16 row_ror:{r} row_mask:0xf bank_mask:0xf")
    for sw in ("v_permlane16_swap_b32", "v_permlane32_swap_b32"):
        A("v_mov_b32 v17, v16"); A(f"{sw} v16, v17"); A("v_add_f32 v16, v16, v17")
    A("v_cvt_pk_bf16_f32 v16, v16, v16"); A("v_lshlrev_b32 v16, 16, v16")
    A(f"v_mul_f32 v16, {0xBFB8AA3B:#x}, v16"); A("v_exp_f32 v16, v16"); A("v_add_f32 v16, 1.0, v16"); A("v_rcp_f32 v16, v16")
    A("v_cvt_pk_bf16_f32 v16, v16, v16"); A("v_lshlrev_b32 v16, 16, v16")
    A("v_sub_f32 v17, 1.0, v16"); A("v_cvt_pk_bf16_f32 v17, v17, v17"); A("v_lshlrev_b32 v17, 16, v17")
    A(f"v_mov_b32 v3, {FL+7*256}")
    A("s_mov_b64 exec, 1"); A("ds_write_b64 v3, v[16:17]"); A("s_mov_b64 exec, -1")
    flag(1)
    A("L_nogate:")
    wait_lds("v8", 1)
    A(f"v_mov_b32 v3, {FL+6*256}"); A("ds_read_b32 v15, v3")
    A("s_mov_b32 s14, 100")
    A("s_cmp_ge_u32 s5, 56"); A("s_cbranch_scc1 L_Bnow1")
    A("s_mov_b32 s14, 132")
    wait_lds("v7", 132)
    stamp(1)
    p1_run(ro)
    p1_publish("s9", HP, HINTH)
    A("L_Bnow1:")
    stamp(2)
    A("v_mul_u32_u24 v31, 544, v6"); A("v_lshl_add_u32 v31, v5, 4, v31"); A(f"v_add_u32 v31, {OB}, v31")
    A("v_lshlrev_b32 v30, 12, v6"); A("v_lshl_add_u32 v30, v5, 4, v30"); A("v_lshrrev_b32 v2, 3, v4"); A("v_lshl_add_u32 v30, v2, 6, v30")
    def final(P, nq, nks, lpk, label):
        sh = P.bit_length() - 1
        A("v_and_b32 v2, 7, v11"); A("v_lshlrev_b32 v2, 5, v2"); A(f"v_lshl_add_u32 v24, v11, {sh}, v2"); A("v_add_u32 v24, v24, v12")
        A(f"s_mul_i32 s8, s9, {nq*32}"); A("v_xor_b32 v24, s8, v24")
        for q in range(1, nq): A(f"v_xor_b32 v{24+q}, {q*32}, v24")
        fr = lambda ks, q: 64 + (ks * nq + q) * 4
        def reads(ks):
            A(f"s_add_u32 s14, s14, {lpk}")
            wait_lds("v7", None, sth="s14")
            for q in range(nq):
                A(f"ds_read_b64_tr_b16 v[{fr(ks,q)}:{fr(ks,q)+1}], v{24+q} offset:{ks*32*P}")
                A(f"ds_read_b64_tr_b16 v[{fr(ks,q)+2}:{fr(ks,q)+3}], v{24+q} offset:{ks*32*P + 16*P}")
        def mm(ks):
            for q in range(nq):
                c = "0" if ks == 0 else f"v[{128+4*q}:{131+4*q}]"
                A(f"v_mfma_f32_16x16x32_bf16 v[{128+4*q}:{131+4*q}], v[{fr(ks,q)}:{fr(ks,q)+3}], v[{32+4*ks}:{35+4*ks}], {c}")
        for ks in range(nks - 1): reads(ks)
        stamp(3)
        wait_lds("v8", 5)
        stamp(4)
        for ks in range(nks): A(f"ds_read_b128 v[{32+4*ks}:{35+4*ks}], v31 offset:{ks*64}")
        A("s_waitcnt lgkmcnt(0)")
        for ks in range(nks - 1): mm(ks)
        reads(nks - 1)
        stamp(5)
        A("s_waitcnt lgkmcnt(0)")
        mm(nks - 1)
        for q in range(nq):
            A(f"v_cvt_pk_bf16_f32 v{16+2*q}, v{128+4*q}, v{129+4*q}"); A(f"v_cvt_pk_bf16_f32 v{17+2*q}, v{130+4*q}, v{131+4*q}")
        for pr in range(nq // 2):
            d = 32 + 4*pr
            A(f"v_cndmask_b32 v{d}, v{16+4*pr}, v{18+4*pr}, s[50:51]"); A(f"v_cndmask_b32 v{d+2}, v{17+4*pr}, v{19+4*pr}, s[50:51]")
            A(f"v_mov_b32 v{d+1}, v15"); A(f"v_mov_b32 v{d+3}, v15")
            A(f"buffer_store_dwordx4 v[{d}:{d+3}], v30, s[44:47], s56 offen offset:{pr*128} sc1")
    A("s_cmp_ge_u32 s7, 16"); A("s_cbranch_scc1 L_Bw2")
    A("s_lshl_b32 s10, s6, 2"); A("s_lshr_b32 s8, s7, 2"); A("s_add_u32 s10, s10, s8"); A("s_lshl_b32 s56, s10, 15")
    A("s_and_b32 s8, s7, 3"); A("s_lshl_b32 s8, s8, 10"); A("s_add_u32 s56, s56, s8"); A("s_lshl_b32 s8, s9, 8"); A("s_add_u32 s56, s56, s8")
    A(f"s_add_u32 s56, s56, {FP}")
    final(512, 4, 4, 16, "wo")
    A("s_branch L_Bend")
    A("L_Bw2:")
    A("s_lshl_b32 s10, s6, 1"); A("s_bfe_u32 s8, s7, 0x10003"); A("s_add_u32 s10, s10, s8"); A("s_add_u32 s10, s10, 32"); A("s_lshl_b32 s56, s10, 15")
    A("s_and_b32 s8, s7, 7"); A("s_lshl_b32 s8, s8, 9"); A("s_add_u32 s56, s56, s8"); A("s_lshl_b32 s8, s9, 7"); A("s_add_u32 s56, s56, s8")
    A(f"s_add_u32 s56, s56, {FP}")
    final(256, 2, 7, 8, "w2")
    A("L_Bend:")
    stamp(6)
    dump_stamps(7, [(11,2),(12,6)])
    A("s_endpgm")
    A("L_codeend:")

    body = A.render()
    out = HEADER
    out += f"; @launch grid=(256,1,1) block=(576,1,1) lds={LDS_BYTES}\n"
    out += '.amdgcn_target "amdgcn-amd-amdhsa--gfx950"\n.text\n'
    out += f".globl {NAME}\n.p2align 8\n.type {NAME},@function\n"
    out += body
    out += f""".section .rodata,"a"
.p2align 6
.amdhsa_kernel {NAME}
  .amdhsa_next_free_vgpr 152
  .amdhsa_next_free_sgpr 102
  .amdhsa_accum_offset 152
  .amdhsa_group_segment_fixed_size 0
  .amdhsa_kernarg_size 96
  .amdhsa_user_sgpr_count 2
  .amdhsa_user_sgpr_kernarg_segment_ptr 1
  .amdhsa_system_sgpr_workgroup_id_x 1
  .amdhsa_float_denorm_mode_32 3
.end_amdhsa_kernel
"""
    return out

if __name__ == "__main__":
    import json
    kw = json.loads(sys.argv[2]) if len(sys.argv) > 2 else {}
    open(sys.argv[1], "w").write(gen(**kw))
```

```python
import sys
sys.path.insert(0, "work")
from asmlib import Asm

NAME = "gated_mix__sliding_block_cached__dense_activation_relu__decode_kernel"
HEADER = open("gated_mix__sliding_block_cached__dense_activation_relu__decode.s.ref").read().split("; Override launch")[0]

EPOCH = 0
HINTQ = 0x1000
HINTH = 0x2000
QP = 0x10000
HP = 0x90000
OP = 0x110000
LSE = 0x210000
FP = 0x220000
WS_USED = 0x400000
DIAG = 0x400000
R0, R1, R2, R3, M = 0x0, 0x8000, 0x10000, 0x18000, 0x20000
XS = M
QB = M + 0x1000
OB = M + 0x1A00
AC = M + 0x2C00
ST = M + 0x6E00
FL = M + 0x7000
LDS_BYTES = 160 * 1024
TAGK = 0x9E3779B1
SPIN_LIMIT = 400000
L2E = 0x3FB8AA3B
SCALE = 0x3DB504F3

def gen(D_early=32, D_late=32, diag=False, mimic=True, gflags="sc1", hint_sleep=0, code_pf=True, h_start=132, r_start=156, dbg=False, pad=0):
    if dbg: diag = True
    A = Asm()
    nst = [0]
    SP = [68, 70, 72, 74, 76, 78, 80, 82, 62, 100, 32, 36]
    def stamp(i):
        if diag: A(f"s_memrealtime s[{SP[i]}:{SP[i]+1}]")
    def dump_stamps(n, dbgmap=()):
        if not diag: return
        A("s_waitcnt lgkmcnt(0)")
        if dbg:
            A("s_load_dwordx2 s[60:61], s[0:1], 80")
            A("s_waitcnt lgkmcnt(0)")
            A("s_mov_b64 exec, 1")
            A("v_mov_b32 v2, 0")
            for slot, i in dbgmap:
                if i == 0:
                    A(f"s_not_b32 s8, s{SP[0]}"); A("v_mov_b32 v3, s8")
                    A(f"global_atomic_umax v2, v3, s[60:61] offset:0")
                A(f"v_mov_b32 v3, s{SP[i]}")
                A(f"global_atomic_umax v2, v3, s[60:61] offset:{4*slot}")
                A("s_nop 1")
            return
        A("s_lshl_b32 s60, s2, 4"); A("s_add_u32 s60, s60, s3"); A("s_lshl_b32 s60, s60, 6"); A(f"s_add_u32 s60, s60, {DIAG}")
        A("s_mov_b64 exec, 1")
        A("v_mov_b32 v2, 0")
        for i in range(n):
            A(f"v_mov_b32 v3, s{SP[i]}")
            A(f"buffer_store_dword v3, v2, s[44:47], s60 offen offset:{4*i}")
    def spin_tail(L, Ld):
        A("s_add_u32 s41, s41, 1"); A(f"s_cmp_lt_u32 s41, {SPIN_LIMIT}"); A(f"s_cbranch_scc1 {L}"); A(f"{Ld}:")
    def wait_lds(vaddr, th, vt="v2", sth=None):
        L = A.lab("W"); Ld = L + "d"
        A(f"{L}:")
        A(f"ds_read_b32 {vt}, {vaddr}")
        A("s_waitcnt lgkmcnt(0)")
        A(f"v_cmp_gt_u32 vcc, {sth if sth else th}, {vt}")
        A(f"s_cbranch_vccz {Ld}")
        spin_tail(L, Ld)
    def srd(d, b, size):
        A(f"s_mov_b32 s{d}, s{b}"); A(f"s_mov_b32 s{d+1}, s{b+1}"); A(f"s_mov_b32 s{d+2}, {size:#x}"); A(f"s_mov_b32 s{d+3}, 0x20000")

    A(f"{NAME}:")
    A("s_cmp_ge_u32 s2, 256")
    A("s_cbranch_scc1 L_exit")
    A("s_load_dwordx16 s[16:31], s[0:1], 0")
    A("s_load_dwordx8 s[32:39], s[0:1], 64")
    stamp(0)
    if pad: A("s_memrealtime s[68:69]")
    A("v_lshrrev_b32 v2, 6, v0")
    A("v_and_b32 v1, 63, v0")
    A("v_readfirstlane_b32 s3, v2")
    A("s_mov_b32 s41, 0")
    A("s_lshr_b32 s4, s2, 6")
    A("s_and_b32 s5, s2, 63")
    A("s_and_b32 s6, s2, 7")
    A("s_lshr_b32 s7, s2, 3")
    A("s_cmp_eq_u32 s3, 0")
    A("s_cbranch_scc1 L_loader")
    if code_pf:
        A("s_getpc_b64 s[54:55]")
        A("L_pc:")
        A("v_subrev_u32 v2, 64, v0"); A("v_lshlrev_b32 v2, 7, v2"); A("v_min_u32 v2, L_codeend-L_pc-4, v2")
        A("global_load_dword v144, v2, s[54:55]")
    A("s_branch L_notloader")
    A("L_loader:")

    A("s_setprio 3")
    A("v_lshrrev_b32 v2, 5, v1"); A("v_lshlrev_b32 v2, 11, v2"); A("v_and_b32 v3, 31, v1"); A("v_lshl_add_u32 v4, v3, 4, v2")
    A("v_lshrrev_b32 v2, 3, v1"); A("v_and_b32 v2, 6, v2")
    A("v_and_b32 v3, 7, v1"); A("v_xor_b32 v3, v3, v2"); A("v_lshlrev_b32 v12, 4, v3")
    A("v_lshrrev_b32 v13, 3, v1")
    A("v_lshl_add_u32 v5, v13, 13, v12")
    A("s_lshl_b32 s8, s4, 9")
    A("s_lshl_b32 s9, s4, 21"); A("s_lshl_b32 s10, s5, 7"); A("s_add_u32 s9, s9, s10")
    A(f"s_mov_b32 s11, {XS}")
    A("s_waitcnt lgkmcnt(0)")
    srd(44, 16, 16384)
    srd(48, 22, 8 << 20)
    for i in range(4):
        A("s_mov_b32 m0, s11"); A("s_add_u32 s11, s11, 1024")
        A("buffer_load_dwordx4 v4, s[44:47], s8 offen lds"); A("s_add_u32 s8, s8, 4096")
    n = [4]
    A(f"v_mov_b32 v10, {FL}"); A("v_lshl_add_u32 v10, v1, 2, v10")
    barrier_done = [False]
    def seg(vregs, srdn, soff, step, ldsbase, count, D, label):
        first = 0
        A(f"s_mov_b32 s11, {ldsbase}")
        if not barrier_done[0]:
            burst = min(count, (D - n[0]) // 4 * 4)
            A(f"s_mov_b32 s13, {burst // 4}")
            A(f"{label}_b:")
            for u in range(4):
                A("s_mov_b32 m0, s11"); A("s_add_u32 s11, s11, 1024")
                A(f"buffer_load_dwordx4 {vregs[u]}, s[{srdn}:{srdn+3}], {soff} offen nt lds"); A(f"s_add_u32 {soff}, {soff}, {step}")
            A("s_sub_u32 s13, s13, 1"); A("s_cmp_lg_u32 s13, 0"); A(f"s_cbranch_scc1 {label}_b")
            n[0] += burst; first = burst
            post_burst()
            A("s_barrier")
            barrier_done[0] = True
            A(f"s_mov_b32 s14, {n[0]}")
        rem = count - first
        if rem:
            A(f"s_mov_b32 s13, {rem // 4}")
            A(f"{label}:")
            for u in range(4):
                A(f"s_waitcnt vmcnt({D-1})")
                if u == 3:
                    A(f"s_add_i32 s12, s14, {4 - D}"); A("s_max_i32 s12, s12, 0")
                    A("v_mov_b32 v11, s12"); A("ds_write_b32 v10, v11")
                A("s_mov_b32 m0, s11"); A("s_add_u32 s11, s11, 1024")
                A(f"buffer_load_dwordx4 {vregs[u]}, s[{srdn}:{srdn+3}], {soff} offen nt lds"); A(f"s_add_u32 {soff}, {soff}, {step}")
            A("s_add_u32 s14, s14, 4")
            A("s_sub_u32 s13, s13, 1"); A("s_cmp_lg_u32 s13, 0"); A(f"s_cbranch_scc1 {label}")
    def post_burst():
        srd(52, 18, 32 << 20)
        srd(56, 20, 32 << 20)
        srd(60, 28, 7 << 20)
        A("v_lshrrev_b32 v2, 4, v1"); A("v_and_b32 v3, 15, v1"); A("v_xor_b32 v6, v3, v2"); A("v_lshlrev_b32 v6, 4, v6")
        A("v_lshl_add_u32 v16, v2, 8, v6"); A("v_xor_b32 v17, 64, v16"); A("v_xor_b32 v18, 0x80, v16"); A("v_xor_b32 v19, 0xc0, v16")
        A("v_lshlrev_b32 v6, 1, v2"); A("v_xor_b32 v6, v3, v6"); A("v_lshlrev_b32 v6, 4, v6")
        A("v_lshl_add_u32 v20, v2, 8, v6"); A("v_xor_b32 v21, 0x80, v20")
        A("v_lshl_add_u32 v22, v2, 11, v6"); A("v_xor_b32 v23, 0x80, v22")
        A("v_mul_u32_u24 v24, 0x1c00, v13"); A("v_add_u32 v24, v24, v12")
        A("v_lshrrev_b32 v2, 5, v1"); A("v_and_b32 v3, 31, v1"); A("v_lshlrev_b32 v6, 1, v2"); A("v_xor_b32 v6, v3, v6"); A("v_lshlrev_b32 v6, 4, v6")
        A("v_lshl_add_u32 v25, v2, 11, v6"); A("v_xor_b32 v26, 64, v25"); A("v_xor_b32 v27, 0x80, v25"); A("v_xor_b32 v28, 0xc0, v25")
        A("s_lshr_b32 s8, s7, 3"); A("s_lshl_b32 s8, s8, 3"); A("s_add_u32 s8, s8, s6"); A("s_lshl_b32 s8, s8, 20")
        A("s_and_b32 s10, s7, 7"); A("s_lshl_b32 s10, s10, 15"); A("s_add_u32 s8, s8, s10"); A(f"s_add_u32 s8, s8, {3072*256}")
        A("s_mov_b32 s15, s8")
        A(f"s_mul_i32 s42, s4, {256*7168}"); A("s_lshl_b32 s10, s5, 7"); A("s_add_u32 s42, s42, s10")
        A(f"v_mov_b32 v29, {FL+256}"); A("v_and_b32 v2, 3, v1"); A("v_lshl_add_u32 v29, v2, 8, v29")
    seg(["v5"]*4, 48, "s9", 65536, R0, 32, D_early, "L_wq")
    seg(["v16", "v17", "v18", "v19"], 52, "s8", 1024, R1, 32, D_early, "L_k")
    seg(["v20", "v21", "v20", "v21"], 56, "s15", 1024, R2, 32, D_early, "L_v")
    A("s_cmp_ge_u32 s5, 56"); A("s_cbranch_scc1 L_now1")
    seg(["v24"]*4, 60, "s42", 8*7168, R3, 32, D_early, "L_w1")
    A("L_now1:")
    stamp(1)
    if D_early > 32:
        A("s_waitcnt vmcnt(32)"); A("s_sub_u32 s12, s14, 32"); A("v_mov_b32 v11, s12"); A("ds_write_b32 v10, v11")
    wait_lds("v29", 2)
    A("s_cmp_ge_u32 s7, 16"); A("s_cbranch_scc1 L_ldw2")
    srd(64, 24, 8 << 20)
    A("s_lshl_b32 s8, s6, 2"); A("s_lshr_b32 s10, s7, 2"); A("s_add_u32 s8, s8, s10"); A("s_lshl_b32 s8, s8, 18")
    A("s_and_b32 s10, s7, 3"); A("s_lshl_b32 s10, s10, 9"); A("s_add_u32 s8, s8, s10")
    seg(["v25", "v26", "v27", "v28"], 64, "s8", 4096, R0, 64, D_late, "L_wo")
    A("s_branch L_drain")
    A("L_ldw2:")
    srd(64, 30, 7 << 20)
    A("s_lshl_b32 s8, s6, 1"); A("s_bfe_u32 s10, s7, 0x10003"); A("s_add_u32 s8, s8, s10"); A(f"s_mul_i32 s8, s8, {224*2048}")
    A("s_and_b32 s10, s7, 7"); A("s_lshl_b32 s10, s10, 8"); A("s_add_u32 s8, s8, s10")
    seg(["v22", "v23", "v22", "v23"], 64, "s8", 8192, R0, 56, D_late, "L_w2")
    A("L_drain:")
    for k in range(D_late - 4, -1, -4):
        A(f"s_waitcnt vmcnt({k})")
        A(f"s_sub_u32 s12, s14, {k}"); A("v_mov_b32 v11, s12"); A("ds_write_b32 v10, v11")
    stamp(2)
    if diag:
        srd(44, 38, 0x800000)
        dump_stamps(3, [(1,0),(2,1),(3,2)])
    A("L_exit:")
    A("s_endpgm")

    A("L_notloader:")
    A("v_and_b32 v4, 15, v1")
    A("v_lshrrev_b32 v5, 4, v1")
    A("v_and_b32 v6, 7, v1")
    A(f"v_mov_b32 v7, {FL}")
    A(f"v_mov_b32 v8, {FL+256}"); A("v_and_b32 v2, 3, v1"); A("v_lshl_add_u32 v8, v2, 8, v8")
    A("s_lshl_b32 s8, s3, 8"); A(f"s_add_u32 s8, s8, {FL}"); A("v_lshl_add_u32 v9, v1, 2, s8")
    A("v_lshlrev_b32 v10, 9, v6"); A("v_lshl_add_u32 v10, v5, 3, v10"); A(f"v_add_u32 v10, {XS}, v10")
    A("v_lshrrev_b32 v11, 2, v1")
    A("v_and_b32 v12, 3, v1"); A("v_lshlrev_b32 v12, 3, v12")
    A("s_mov_b32 s48, 0x00ff00ff"); A("s_mov_b32 s49, 0x00ff00ff")
    A("s_mov_b32 s50, 0xff00ff00"); A("s_mov_b32 s51, 0xff00ff00")
    A("s_cmp_lg_u32 s3, 8"); A("s_cbranch_scc1 L_noinit")
    A("v_mov_b32 v16, 0"); A("v_mov_b32 v17, 0"); A("v_mov_b32 v18, 0"); A("v_mov_b32 v19, 0")
    A(f"v_mov_b32 v2, {FL}"); A("v_lshl_add_u32 v2, v1, 4, v2")
    A("ds_write_b128 v2, v[16:19]"); A("ds_write_b128 v2, v[16:19] offset:1024")
    A("L_noinit:")
    A("s_waitcnt lgkmcnt(0)")
    srd(44, 38, 0x800000 if diag else WS_USED)
    A("s_cmp_ge_u32 s3, 5"); A("s_cbranch_scc1 L_B")

    def p1_gemv(region, qs, dst_base, hint_base, label):
        A("v_lshrrev_b32 v2, 1, v11"); A("v_and_b32 v2, 3, v2"); A(f"v_xor_b32 v2, {qs}, v2"); A("v_lshlrev_b32 v2, 5, v2")
        A("v_lshl_add_u32 v13, v11, 7, v2"); A("v_add_u32 v13, v13, v12")
        if region >= 0x10000:
            A(f"v_add_u32 v13, {region}, v13"); ro = 0
        else:
            ro = region
        return ro
    def p1_run(ro):
        for ks in range(8):
            A(f"ds_read_b64_tr_b16 v[{64+4*ks}:{65+4*ks}], v13 offset:{ro + ks*4096}")
            A(f"ds_read_b64_tr_b16 v[{66+4*ks}:{67+4*ks}], v13 offset:{ro + ks*4096 + 2048}")
        for ks in range(8):
            A(f"s_waitcnt lgkmcnt({min(15, 14 - 2*ks)})")
            c = "0" if ks == 0 else "v[16:19]"
            A(f"v_mfma_f32_16x16x32_bf16 v[16:19], v[{64+4*ks}:{67+4*ks}], v[{32+4*ks}:{35+4*ks}], {c}")
    def xfrags():
        wait_lds("v7", 4)
        for ks in range(8):
            A(f"ds_read2_b64 v[{32+4*ks}:{35+4*ks}], v10 offset0:{ks*8} offset1:{ks*8+4}")
    def p1_publish(qs, base, hint):
        A("v_cvt_pk_bf16_f32 v20, v16, v17"); A("v_cvt_pk_bf16_f32 v22, v18, v19")
        A("v_mov_b32 v21, v15"); A("v_mov_b32 v23, v15")
        A("s_mov_b64 exec, s[48:49]")
        A("buffer_store_dwordx4 v[20:23], v14, s[44:47], s52 offen sc1")
        A("s_mov_b64 exec, -1")
    def p1_addr(qs, base, hint):
        A("v_lshlrev_b32 v14, 14, v6"); A("v_lshl_add_u32 v14, v5, 4, v14")
        A("s_lshl_b32 s52, s4, 17"); A("s_lshl_b32 s8, s5, 8"); A("s_add_u32 s52, s52, s8")
        A(f"s_lshl_b32 s8, {qs}, 6"); A("s_add_u32 s52, s52, s8"); A(f"s_add_u32 s52, s52, {base}")
    def flag(stage):
        A(f"v_mov_b32 v2, {stage}"); A("ds_write_b32 v9, v2")
    def hint_poll(nblk, stride_tag):
        pass

    A("s_load_dword s40, s[38:39], 0")
    A("s_sub_u32 s9, s3, 1")
    ro = p1_gemv(R0, "s9", QP, HINTQ, "A")
    p1_addr("s9", QP, HINTQ)
    A("s_barrier")
    xfrags()
    A("s_waitcnt lgkmcnt(0)")
    A(f"s_add_u32 s40, s40, {TAGK:#x}"); A("s_mov_b32 s42, s40"); A("s_mov_b32 s43, s40")
    A("v_mov_b32 v15, s40")
    A("s_lshr_b32 s10, s7, 3"); A("s_lshl_b32 s10, s10, 3"); A("s_add_u32 s10, s10, s6")
    A("s_lshr_b32 s11, s10, 2")
    A("s_and_b32 s12, s10, 3")
    A("s_and_b32 s13, s7, 7")
    A("v_xor_b32 v2, v5, v4"); A("v_lshlrev_b32 v2, 4, v2"); A("v_lshl_add_u32 v24, v4, 8, v2")
    A("s_lshl_b32 s8, s9, 13"); A(f"s_add_u32 s8, s8, {R1}"); A("v_add_u32 v24, s8, v24")
    A("v_xor_b32 v25, 64, v24"); A("v_xor_b32 v26, 0x80, v24"); A("v_xor_b32 v27, 0xc0, v24")
    A("v_and_b32 v2, 7, v11"); A("v_lshlrev_b32 v2, 5, v2"); A("v_lshl_add_u32 v28, v11, 8, v2"); A("v_add_u32 v28, v28, v12")
    A("s_lshl_b32 s8, s9, 13"); A(f"s_add_u32 s8, s8, {R2}"); A("v_add_u32 v28, s8, v28")
    A("s_lshl_b32 s14, s9, 3"); A("s_add_u32 s15, s14, 76"); A("s_add_u32 s14, s14, 44")
    wait_lds("v7", 36)
    stamp(1)
    p1_run(ro)
    p1_publish("s9", QP, HINTQ)
    stamp(2)
    A(f"v_mov_b32 v3, {FL + 6*256}"); A("v_lshl_add_u32 v3, v1, 2, v3"); A("ds_write_b32 v3, v15")
    flag(1)
    wait_lds("v7", None, sth="s14")
    for t in range(2):
        for s in range(4):
            A(f"ds_read_b128 v[{32+16*t+4*s}:{35+16*t+4*s}], v{24+s} offset:{t*4096}")
    A("v_lshlrev_b32 v29, 4, v1")
    A("s_lshl_b32 s56, s11, 14"); A("s_lshl_b32 s8, s12, 12"); A("s_add_u32 s56, s56, s8"); A("s_lshl_b32 s8, s9, 10"); A("s_add_u32 s56, s56, s8")
    A(f"s_add_u32 s56, s56, {QP}"); A("s_add_u32 s57, s56, 0x20000"); A("s_add_u32 s58, s56, 0x40000"); A("s_add_u32 s59, s56, 0x60000")
    A("v_lshrrev_b32 v2, 5, v1"); A("v_mul_u32_u24 v2, 288, v2"); A("v_and_b32 v3, 31, v1"); A("v_lshl_add_u32 v30, v3, 3, v2")
    A("s_mul_i32 s8, s9, 576"); A(f"s_add_u32 s8, s8, {QB}"); A("v_add_u32 v30, s8, v30")
    A("v_mul_u32_u24 v31, 288, v6"); A("v_lshl_add_u32 v31, v5, 4, v31"); A(f"v_add_u32 v31, {QB}, v31")
    A("s_waitcnt lgkmcnt(0)")
    flag(2)
    stamp(3)
    def gather(loads, full="-1", tb=112):
        N = len(loads)
        L = A.lab("G"); Ld = L + "d"; Lc = L + "c"
        for d, t in loads: A(t)
        A(f"{Lc}:")
        A("s_waitcnt vmcnt(0)")
        for i, (d, t) in enumerate(loads):
            A(f"v_xor_b32 v{tb+i}, v{d+1}, v15"); A(f"v_bitop3_b32 v{tb+i}, v{tb+i}, v{d+3}, v15 bitop3:0xf6")
        A(f"v_or_b32 v2, v{tb}, v{tb+1}")
        for i in range(2, N, 2): A(f"v_or3_b32 v2, v2, v{tb+i}, v{tb+i+1}")
        A("v_cmp_ne_u32 vcc, 0, v2")
        A(f"s_cbranch_vccz {Ld}")
        A("s_add_u32 s41, s41, 64"); A(f"s_cmp_ge_u32 s41, {SPIN_LIMIT}"); A(f"s_cbranch_scc1 {Ld}")
        if hint_sleep: A(f"s_sleep {hint_sleep}")
        for i in range(N): A(f"v_cmp_ne_u32 s[{16+2*(i%8)}:{17+2*(i%8)}], 0, v{tb+i}" if i < 8 else f"v_cmp_ne_u32 s[{84+2*(i-8)}:{85+2*(i-8)}], 0, v{tb+i}")
        for i, (d, t) in enumerate(loads):
            m = 16 + 2*i if i < 8 else 84 + 2*(i-8)
            sk = A.lab("S")
            A(f"s_mov_b64 exec, s[{m}:{m+1}]"); A(f"s_cbranch_execz {sk}"); A(t.replace(gflags, "sc1") if gflags else t + " sc1"); A(f"{sk}:")
        A(f"s_mov_b64 exec, {full}")
        A(f"s_branch {Lc}")
        A(f"{Ld}:")
    stamp(4)
    gather([(64+4*sp, f"buffer_load_dwordx4 v[{64+4*sp}:{67+4*sp}], v29, s[44:47], s{56+sp} offen {gflags}") for sp in range(4)])
    stamp(5)
    def sum4(base, n, stride, out):
        for k, off in enumerate((0, 2)):
            for i in range(n):
                r = base + stride * i + off
                if i == 0:
                    A(f"v_lshlrev_b32 v{out+2*k}, 16, v{r}"); A(f"v_and_b32 v{out+2*k+1}, 0xffff0000, v{r}")
                else:
                    A(f"v_lshlrev_b32 v2, 16, v{r}"); A(f"v_and_b32 v3, 0xffff0000, v{r}")
                    A(f"v_add_f32 v{out+2*k}, v{out+2*k}, v2"); A(f"v_add_f32 v{out+2*k+1}, v{out+2*k+1}, v3")
    sum4(64, 4, 4, 16)
    A("v_cvt_pk_bf16_f32 v20, v16, v17"); A("v_cvt_pk_bf16_f32 v21, v18, v19")
    A("ds_write_b64 v30, v[20:21]")
    flag(3)
    wait_lds("v8", 3)
    for s in range(4):
        A(f"ds_read_b128 v[{64+4*s}:{67+4*s}], v31 offset:{s*64}")
    for s in range(4):
        A(f"s_waitcnt lgkmcnt({3-s})")
        for t in range(2):
            c = "0" if s == 0 else f"v[{16+4*t}:{19+4*t}]"
            A(f"v_mfma_f32_16x16x32_bf16 v[{16+4*t}:{19+4*t}], v[{32+16*t+4*s}:{35+16*t+4*s}], v[{64+4*s}:{67+4*s}], {c}")
    A(f"s_mov_b32 s60, {SCALE:#x}"); A(f"s_mov_b32 s61, {L2E:#x}")
    if mimic:
        for i in range(4):
            a, b = 16 + 2*i, 17 + 2*i
            A(f"v_cvt_pk_bf16_f32 v2, v{a}, v{b}")
            A(f"v_lshlrev_b32 v{a}, 16, v2"); A(f"v_and_b32 v{b}, 0xffff0000, v2")
            A(f"v_mul_f32 v{a}, s60, v{a}"); A(f"v_mul_f32 v{b}, s60, v{b}")
            A(f"v_cvt_pk_bf16_f32 v2, v{a}, v{b}")
            A(f"v_lshlrev_b32 v{a}, 16, v2"); A(f"v_and_b32 v{b}, 0xffff0000, v2")
    else:
        for i in range(8): A(f"v_mul_f32 v{16+i}, s60, v{16+i}")
    A("v_max3_f32 v2, v16, v17, v18"); A("v_max3_f32 v3, v19, v20, v21"); A("v_max3_f32 v2, v2, v22, v23"); A("v_max_f32 v2, v2, v3")
    A("v_mov_b32 v3, v2"); A("v_permlane16_swap_b32 v2, v3"); A("v_max_f32 v2, v2, v3")
    A("v_mov_b32 v3, v2"); A("v_permlane32_swap_b32 v2, v3"); A("v_max_f32 v2, v2, v3")
    A("v_mul_f32 v96, s61, v2")
    for i in range(8):
        A(f"v_fma_f32 v{16+i}, v{16+i}, s61, -v96")
    for i in range(8):
        A(f"v_exp_f32 v{16+i}, v{16+i}")
    for i in range(4):
        A(f"v_cvt_pk_bf16_f32 v{100+i}, v{16+2*i}, v{17+2*i}")
    A("v_add_f32 v2, v16, v17"); A("v_add_f32 v3, v18, v19"); A("v_add_f32 v2, v2, v20"); A("v_add_f32 v3, v3, v21")
    A("v_add_f32 v2, v2, v22"); A("v_add_f32 v3, v3, v23"); A("v_add_f32 v97, v2, v3")
    A("v_mov_b32 v3, v97"); A("v_permlane16_swap_b32 v97, v3"); A("v_add_f32 v97, v97, v3")
    A("v_mov_b32 v3, v97"); A("v_permlane32_swap_b32 v97, v3"); A("v_add_f32 v97, v97, v3")
    stamp(6)
    wait_lds("v7", None, sth="s15")
    for q in range(8):
        if q: A(f"v_xor_b32 v3, {q*32}, v28")
        ad = "v3" if q else "v28"
        A(f"ds_read_b64_tr_b16 v[{32+4*q}:{33+4*q}], {ad}")
        A(f"ds_read_b64_tr_b16 v[{34+4*q}:{35+4*q}], {ad} offset:4096")
    A("v_mul_u32_u24 v24, 528, v6"); A("v_lshl_add_u32 v24, v5, 4, v24")
    A("s_mul_i32 s8, s9, 4224"); A(f"s_add_u32 s8, s8, {AC}"); A("v_add_u32 v24, s8, v24")
    A("s_lshl_b32 s8, s9, 2"); A(f"s_add_u32 s8, s8, {ST}"); A("v_lshl_add_u32 v25, v6, 5, s8")
    for q in range(8):
        A(f"s_waitcnt lgkmcnt({min(15, 14-2*q)})")
        A(f"v_mfma_f32_16x16x32_bf16 v[{64+4*q}:{67+4*q}], v[{32+4*q}:{35+4*q}], v[100:103], 0")
    A("s_mov_b64 exec, 0xff")
    A("ds_write2_b32 v25, v96, v97 offset0:0 offset1:4")
    A("s_mov_b64 exec, s[48:49]")
    for q in range(8):
        A(f"ds_write_b128 v24, v[{64+4*q}:{67+4*q}] offset:{q*64}")
    A("s_mov_b64 exec, -1")
    flag(4)
    A("v_lshrrev_b32 v2, 5, v1"); A("s_lshl_b32 s8, s9, 1"); A("v_add_u32 v2, s8, v2")
    A("v_mul_u32_u24 v26, 528, v2"); A("v_and_b32 v3, 31, v1"); A("v_lshl_add_u32 v26, v3, 4, v26"); A(f"v_add_u32 v26, {AC}, v26")
    A("v_lshlrev_b32 v27, 5, v2"); A(f"v_add_u32 v27, {ST}, v27")
    A("v_lshlrev_b32 v30, 15, v2"); A("v_lshl_add_u32 v30, v3, 4, v30")
    A("s_lshl_b32 s56, s12, 18"); A("s_lshl_b32 s8, s11, 12"); A("s_add_u32 s56, s56, s8"); A("s_lshl_b32 s8, s13, 9"); A("s_add_u32 s56, s56, s8")
    A("s_lshr_b32 s57, s56, 12"); A("s_lshl_b32 s57, s57, 6"); A("s_and_b32 s8, s13, 1"); A("s_lshl_b32 s8, s8, 5"); A("s_add_u32 s57, s57, s8")
    A("s_lshr_b32 s8, s13, 1"); A("s_lshl_b32 s8, s8, 3"); A("s_add_u32 s57, s57, s8")
    A(f"s_add_u32 s56, s56, {OP}"); A(f"s_add_u32 s57, s57, {LSE}")
    A("v_lshlrev_b32 v31, 9, v2")
    wait_lds("v8", 4)
    A("ds_read_b128 v[16:19], v27"); A("ds_read_b128 v[20:23], v27 offset:16")
    for i in range(4):
        A(f"ds_read_b128 v[{32+4*i}:{35+4*i}], v26 offset:{i*4224}")
    A("s_waitcnt lgkmcnt(4)")
    A("v_max3_f32 v2, v16, v17, v18"); A("v_max_f32 v2, v2, v19")
    for i in range(4): A(f"v_sub_f32 v{16+i}, v{16+i}, v2")
    for i in range(4): A(f"v_exp_f32 v{16+i}, v{16+i}")
    A("v_mul_f32 v3, v16, v20")
    for i in range(1, 4): A(f"v_fmac_f32 v3, v{16+i}, v{20+i}")
    A("v_rcp_f32 v20, v3"); A("v_log_f32 v21, v3")
    for i in range(4): A(f"v_mul_f32 v{16+i}, v{16+i}, v20")
    A("v_add_f32 v22, v2, v21"); A("v_mov_b32 v23, v15")
    A("s_waitcnt lgkmcnt(0)")
    for k in range(4):
        A(f"v_mul_f32 v{48+k}, v16, v{32+k}")
    for i in range(1, 4):
        for k in range(4):
            A(f"v_fmac_f32 v{48+k}, v{16+i}, v{32+4*i+k}")
    A("v_cvt_pk_bf16_f32 v52, v48, v49"); A("v_cvt_pk_bf16_f32 v54, v50, v51"); A("v_mov_b32 v53, v15"); A("v_mov_b32 v55, v15")
    A("buffer_store_dwordx4 v[52:55], v30, s[44:47], s56 offen sc1")
    A("s_mov_b32 exec_lo, 1"); A("s_mov_b32 exec_hi, 1")
    A("buffer_store_dwordx2 v[22:23], v31, s[44:47], s57 offen sc1")
    A("s_mov_b64 exec, -1")
    stamp(7)
    def unitpos(dst, u):
        A(f"v_lshrrev_b32 v2, 3, {u}"); A(f"v_lshlrev_b32 {dst}, 6, v2")
        A(f"v_and_b32 v2, 3, {u}"); A(f"v_lshl_add_u32 {dst}, v2, 4, {dst}")
        A(f"v_bfe_u32 v2, {u}, 2, 1"); A(f"v_lshl_add_u32 {dst}, v2, 3, {dst}")
    A("s_cmp_ge_u32 s7, 16"); A("s_cbranch_scc1 L_gh")
    A("s_lshl_b32 s10, s6, 2"); A("s_lshr_b32 s8, s7, 2"); A("s_add_u32 s10, s10, s8")
    A("s_lshl_b32 s56, s10, 15"); A("s_lshl_b32 s8, s9, 13"); A("s_add_u32 s56, s56, s8")
    A("s_lshr_b32 s58, s56, 6"); A(f"s_add_u32 s58, s58, {LSE}"); A("v_and_b32 v31, 32, v1")
    A(f"s_add_u32 s56, s56, {OP}"); A("s_add_u32 s57, s56, 4096")
    A("v_and_b32 v3, 31, v1"); unitpos("v30", "v3")
    A("v_lshrrev_b32 v2, 5, v1"); A("v_mul_u32_u24 v2, 544, v2"); A("v_add_u32 v30, v30, v2")
    A("s_mul_i32 s8, s9, 1088"); A(f"s_add_u32 s8, s8, {OB}"); A("v_add_u32 v30, s8, v30")
    stamp(8)
    lo = [(80+8*bb+4*k, f"buffer_load_dwordx4 v[{80+8*bb+4*k}:{83+8*bb+4*k}], v31, s[44:47], s58 offen offset:{bb*64+k*16} {gflags}") for bb in range(2) for k in range(2)]
    lo += [(32+16*bb+4*i, f"buffer_load_dwordx4 v[{32+16*bb+4*i}:{35+16*bb+4*i}], v29, s[44:47], s{56+bb} offen offset:{i*1024} {gflags}") for bb in range(2) for i in range(4)]
    gather(lo)
    for bb in range(2):
        for i in range(4): A(f"v_mov_b32 v{16+4*bb+i}, v{80+8*bb+2*i}")
    for bb in range(2):
        o = 16 + 4*bb
        A(f"v_max3_f32 v2, v{o}, v{o+1}, v{o+2}"); A(f"v_max_f32 v2, v2, v{o+3}")
        A("v_mov_b32 v3, v2"); A("v_permlane32_swap_b32 v2, v3"); A("v_max_f32 v2, v2, v3")
        for i in range(4): A(f"v_sub_f32 v{o+i}, v{o+i}, v2")
        for i in range(4): A(f"v_exp_f32 v{o+i}, v{o+i}")
        A(f"v_add_f32 v2, v{o}, v{o+1}"); A(f"v_add_f32 v3, v{o+2}, v{o+3}"); A("v_add_f32 v2, v2, v3")
        A("v_mov_b32 v3, v2"); A("v_permlane32_swap_b32 v2, v3"); A("v_add_f32 v2, v2, v3")
        A("v_rcp_f32 v2, v2")
        for i in range(4): A(f"v_mul_f32 v{o+i}, v{o+i}, v2")
    for bb in range(2):
        for k, off in enumerate((0, 2)):
            for i in range(4):
                r = 32 + 16*bb + 4*i + off; w = 16 + 4*bb + i; o = 64 + 4*bb + 2*k
                A(f"v_lshlrev_b32 v2, 16, v{r}"); A(f"v_and_b32 v3, 0xffff0000, v{r}")
                if i == 0:
                    A(f"v_mul_f32 v{o}, v{w}, v2"); A(f"v_mul_f32 v{o+1}, v{w}, v3")
                else:
                    A(f"v_fmac_f32 v{o}, v{w}, v2"); A(f"v_fmac_f32 v{o+1}, v{w}, v3")
    for k in range(4): A(f"v_permlane32_swap_b32 v{64+k}, v{68+k}")
    for k in range(4): A(f"v_add_f32 v{64+k}, v{64+k}, v{68+k}")
    A("v_cvt_pk_bf16_f32 v20, v64, v65"); A("v_cvt_pk_bf16_f32 v21, v66, v67")
    A("ds_write_b64 v30, v[20:21]")
    A("s_branch L_gdone")
    A("L_gh:")
    A("s_lshl_b32 s10, s6, 1"); A("s_bfe_u32 s8, s7, 0x10003"); A("s_add_u32 s10, s10, s8")
    A("s_mul_i32 s56, s10, 896"); A("s_lshl_b32 s8, s9, 15"); A("s_add_u32 s56, s56, s8"); A(f"s_add_u32 s56, s56, {HP}")
    A("s_add_u32 s57, s56, 0x20000"); A("s_add_u32 s58, s56, 0x40000"); A("s_add_u32 s59, s56, 0x60000")
    A("v_add_u32 v31, 0x4000, v29")
    unitpos("v30", "v1")
    A("s_mul_i32 s8, s9, 1088"); A(f"s_add_u32 s8, s8, {OB}"); A("v_add_u32 v30, s8, v30")
    wait_lds("v7", h_start)
    stamp(8)
    A("s_mov_b32 s54, -1"); A("s_mov_b32 s55, 0x00ffffff")
    A("s_mov_b64 exec, s[54:55]")
    gather([(32+16*bb+4*sp, f"buffer_load_dwordx4 v[{32+16*bb+4*sp}:{35+16*bb+4*sp}], v{29 if bb == 0 else 31}, s[44:47], s{56+sp} offen {gflags}") for bb in range(2) for sp in range(4)], full="s[54:55]")
    for bb in range(2):
        sum4(32 + 16*bb, 4, 4, 64 + 4*bb)
        for k in range(4): A(f"v_max_f32 v{64+4*bb+k}, 0, v{64+4*bb+k}")
        A(f"v_cvt_pk_bf16_f32 v{20+2*bb}, v{64+4*bb}, v{65+4*bb}"); A(f"v_cvt_pk_bf16_f32 v{21+2*bb}, v{66+4*bb}, v{67+4*bb}")
        A(f"ds_write_b64 v30, v[{20+2*bb}:{21+2*bb}] offset:{544*bb}")
    A("s_mov_b64 exec, -1")
    A("L_gdone:")
    flag(5)
    stamp(9)
    A("s_cmp_lg_u32 s9, 0"); A("s_cbranch_scc1 L_Aend")
    A("v_lshrrev_b32 v2, 3, v1"); A("v_lshlrev_b32 v29, 15, v2"); A("v_lshl_add_u32 v29, v6, 4, v29")
    A("s_lshr_b32 s10, s2, 5"); A("s_lshl_b32 s56, s10, 12"); A("s_and_b32 s11, s2, 31"); A("s_lshl_b32 s8, s11, 7"); A("s_add_u32 s56, s56, s8")
    A(f"s_add_u32 s56, s56, {FP}")
    for i in range(1, 6): A(f"s_add_u32 s{56+i}, s56, {i*0x40000}")
    srd(64, 34, 16384)
    A("s_lshl_b32 s12, s10, 11"); A("s_lshl_b32 s8, s11, 6"); A("s_add_u32 s12, s12, s8")
    A("v_lshlrev_b32 v30, 3, v6")
    A(f"v_mov_b32 v3, {FL+5*256}")
    wait_lds("v3", 1)
    A(f"v_mov_b32 v3, {FL+7*256}")
    A("ds_read_b64 v[24:25], v3")
    wait_lds("v7", r_start)
    gather([(32+4*i, f"buffer_load_dwordx4 v[{32+4*i}:{35+4*i}], v29, s[44:47], s{56+i} offen {gflags}") for i in range(6)])
    stamp(10)
    sum4(32, 4, 4, 64)
    sum4(48, 2, 4, 68)
    for k in range(8): A(f"v_add_f32_dpp v{64+k}, v{64+k}, v{64+k} row_ror:8 row_mask:0xf bank_mask:0xf")
    for sw in ("v_permlane16_swap_b32", "v_permlane32_swap_b32"):
        for k in range(8): A(f"v_mov_b32 v{72+k}, v{64+k}")
        for k in range(8): A(f"{sw} v{64+k}, v{72+k}")
        for k in range(8): A(f"v_add_f32 v{64+k}, v{64+k}, v{72+k}")
    A("s_waitcnt lgkmcnt(0)")
    for base, gv in ((64, "v24"), (68, "v25")):
        for p in range(2):
            a, b = base + 2*p, base + 2*p + 1
            A(f"v_cvt_pk_bf16_f32 v2, v{a}, v{b}")
            A(f"v_lshlrev_b32 v{a}, 16, v2"); A(f"v_and_b32 v{b}, 0xffff0000, v2")
            A(f"v_mul_f32 v{a}, {gv}, v{a}"); A(f"v_mul_f32 v{b}, {gv}, v{b}")
            A(f"v_cvt_pk_bf16_f32 v2, v{a}, v{b}")
            A(f"v_lshlrev_b32 v{a}, 16, v2"); A(f"v_and_b32 v{b}, 0xffff0000, v2")
    for k in range(4): A(f"v_add_f32 v{64+k}, v{64+k}, v{68+k}")
    A("v_cvt_pk_bf16_f32 v20, v64, v65"); A("v_cvt_pk_bf16_f32 v21, v66, v67")
    A("s_mov_b64 exec, 0xff")
    A("buffer_store_dwordx2 v[20:21], v30, s[64:67], s12 offen")
    A("s_cmp_lg_u32 s2, 0"); A("s_cbranch_scc1 L_Aend")
    A("s_mov_b64 exec, 1")
    A("v_mov_b32 v2, 0")
    A("buffer_store_dword v15, v2, s[44:47], 0 offen sc1")
    A("L_Aend:")
    if pad:
        A("L_pad:"); A("s_memrealtime s[70:71]"); A("s_waitcnt lgkmcnt(0)"); A("s_sub_u32 s72, s70, s68"); A(f"s_cmp_lt_u32 s72, {pad}"); A("s_cbranch_scc1 L_pad")
    stamp(11)
    dump_stamps(12, [(4,1),(5,2),(6,3),(7,5),(8,7),(9,9),(10,11)])
    A("s_endpgm")

    A("L_B:")
    A("s_sub_u32 s9, s3, 5")
    ro = p1_gemv(R3, "s9", HP, HINTH, "B")
    p1_addr("s9", HP, HINTH)
    A("s_cmp_lg_u32 s9, 0"); A("s_cbranch_scc1 L_nogate0")
    srd(64, 16, 16384)
    srd(84, 32, 2048)
    A("s_lshr_b32 s10, s2, 5"); A("s_lshl_b32 s10, s10, 11")
    A("v_lshlrev_b32 v2, 5, v1")
    A("buffer_load_dwordx4 v[96:99], v2, s[64:67], s10 offen"); A("buffer_load_dwordx4 v[100:103], v2, s[64:67], s10 offen offset:16")
    A("buffer_load_dwordx4 v[104:107], v2, s[84:87], 0 offen"); A("buffer_load_dwordx4 v[108:111], v2, s[84:87], 0 offen offset:16")
    A("L_nogate0:")
    A("s_barrier")
    xfrags()
    A("s_cmp_lg_u32 s9, 0"); A("s_cbranch_scc1 L_nogate")
    A("s_waitcnt vmcnt(0)")
    A("v_mov_b32 v16, 0"); A("v_mov_b32 v17, 0")
    for i in range(8):
        x, gw = 96 + i, 104 + i
        A(f"v_lshlrev_b32 v18, 16, v{x}"); A(f"v_and_b32 v19, 0xffff0000, v{x}")
        A(f"v_lshlrev_b32 v20, 16, v{gw}"); A(f"v_and_b32 v21, 0xffff0000, v{gw}")
        A("v_mul_f32 v18, v18, v20"); A("v_mul_f32 v19, v19, v21")
        A("v_cvt_pk_bf16_f32 v18, v18, v19")
        A("v_and_b32 v19, 0xffff0000, v18"); A("v_lshlrev_b32 v18, 16, v18")
        A("v_add_f32 v16, v16, v18"); A("v_add_f32 v17, v17, v19")
    A("v_add_f32 v16, v16, v17")
    for r in (1, 2, 4, 8): A(f"v_add_f32_dpp v16, v16, v16 row_ror:{r} row_mask:0xf bank_mask:0xf")
    for sw in ("v_permlane16_swap_b32", "v_permlane32_swap_b32"):
        A("v_mov_b32 v17, v16"); A(f"{sw} v16, v17"); A("v_add_f32 v16, v16, v17")
    A("v_cvt_pk_bf16_f32 v16, v16, v16"); A("v_lshlrev_b32 v16, 16, v16")
    A(f"v_mul_f32 v16, {0xBFB8AA3B:#x}, v16"); A("v_exp_f32 v16, v16"); A("v_add_f32 v16, 1.0, v16"); A("v_rcp_f32 v16, v16")
    A("v_cvt_pk_bf16_f32 v16, v16, v16"); A("v_lshlrev_b32 v16, 16, v16")
    A("v_sub_f32 v17, 1.0, v16"); A("v_cvt_pk_bf16_f32 v17, v17, v17"); A("v_lshlrev_b32 v17, 16, v17")
    A(f"v_mov_b32 v3, {FL+7*256}")
    A("s_mov_b64 exec, 1"); A("ds_write_b64 v3, v[16:17]"); A("s_mov_b64 exec, -1")
    flag(1)
    A("L_nogate:")
    wait_lds("v8", 1)
    A(f"v_mov_b32 v3, {FL+6*256}"); A("ds_read_b32 v15, v3")
    A("s_mov_b32 s14, 100")
    A("s_cmp_ge_u32 s5, 56"); A("s_cbranch_scc1 L_Bnow1")
    A("s_mov_b32 s14, 132")
    wait_lds("v7", 132)
    stamp(1)
    p1_run(ro)
    p1_publish("s9", HP, HINTH)
    A("L_Bnow1:")
    stamp(2)
    A("v_mul_u32_u24 v31, 544, v6"); A("v_lshl_add_u32 v31, v5, 4, v31"); A(f"v_add_u32 v31, {OB}, v31")
    A("v_lshlrev_b32 v30, 12, v6"); A("v_lshl_add_u32 v30, v5, 4, v30"); A("v_lshrrev_b32 v2, 3, v4"); A("v_lshl_add_u32 v30, v2, 6, v30")
    def final(P, nq, nks, lpk, label):
        sh = P.bit_length() - 1
        A("v_and_b32 v2, 7, v11"); A("v_lshlrev_b32 v2, 5, v2"); A(f"v_lshl_add_u32 v24, v11, {sh}, v2"); A("v_add_u32 v24, v24, v12")
        A(f"s_mul_i32 s8, s9, {nq*32}"); A("v_xor_b32 v24, s8, v24")
        for q in range(1, nq): A(f"v_xor_b32 v{24+q}, {q*32}, v24")
        fr = lambda ks, q: 64 + (ks * nq + q) * 4
        def reads(ks):
            A(f"s_add_u32 s14, s14, {lpk}")
            wait_lds("v7", None, sth="s14")
            for q in range(nq):
                A(f"ds_read_b64_tr_b16 v[{fr(ks,q)}:{fr(ks,q)+1}], v{24+q} offset:{ks*32*P}")
                A(f"ds_read_b64_tr_b16 v[{fr(ks,q)+2}:{fr(ks,q)+3}], v{24+q} offset:{ks*32*P + 16*P}")
        def mm(ks):
            for q in range(nq):
                c = "0" if ks == 0 else f"v[{128+4*q}:{131+4*q}]"
                A(f"v_mfma_f32_16x16x32_bf16 v[{128+4*q}:{131+4*q}], v[{fr(ks,q)}:{fr(ks,q)+3}], v[{32+4*ks}:{35+4*ks}], {c}")
        for ks in range(nks - 1): reads(ks)
        stamp(3)
        wait_lds("v8", 5)
        stamp(4)
        for ks in range(nks): A(f"ds_read_b128 v[{32+4*ks}:{35+4*ks}], v31 offset:{ks*64}")
        A("s_waitcnt lgkmcnt(0)")
        for ks in range(nks - 1): mm(ks)
        reads(nks - 1)
        stamp(5)
        A("s_waitcnt lgkmcnt(0)")
        mm(nks - 1)
        for q in range(nq):
            A(f"v_cvt_pk_bf16_f32 v{16+2*q}, v{128+4*q}, v{129+4*q}"); A(f"v_cvt_pk_bf16_f32 v{17+2*q}, v{130+4*q}, v{131+4*q}")
        for pr in range(nq // 2):
            d = 32 + 4*pr
            A(f"v_cndmask_b32 v{d}, v{16+4*pr}, v{18+4*pr}, s[50:51]"); A(f"v_cndmask_b32 v{d+2}, v{17+4*pr}, v{19+4*pr}, s[50:51]")
            A(f"v_mov_b32 v{d+1}, v15"); A(f"v_mov_b32 v{d+3}, v15")
            A(f"buffer_store_dwordx4 v[{d}:{d+3}], v30, s[44:47], s56 offen offset:{pr*128} sc1")
    A("s_cmp_ge_u32 s7, 16"); A("s_cbranch_scc1 L_Bw2")
    A("s_lshl_b32 s10, s6, 2"); A("s_lshr_b32 s8, s7, 2"); A("s_add_u32 s10, s10, s8"); A("s_lshl_b32 s56, s10, 15")
    A("s_and_b32 s8, s7, 3"); A("s_lshl_b32 s8, s8, 10"); A("s_add_u32 s56, s56, s8"); A("s_lshl_b32 s8, s9, 8"); A("s_add_u32 s56, s56, s8")
    A(f"s_add_u32 s56, s56, {FP}")
    final(512, 4, 4, 16, "wo")
    A("s_branch L_Bend")
    A("L_Bw2:")
    A("s_lshl_b32 s10, s6, 1"); A("s_bfe_u32 s8, s7, 0x10003"); A("s_add_u32 s10, s10, s8"); A("s_add_u32 s10, s10, 32"); A("s_lshl_b32 s56, s10, 15")
    A("s_and_b32 s8, s7, 7"); A("s_lshl_b32 s8, s8, 9"); A("s_add_u32 s56, s56, s8"); A("s_lshl_b32 s8, s9, 7"); A("s_add_u32 s56, s56, s8")
    A(f"s_add_u32 s56, s56, {FP}")
    final(256, 2, 7, 8, "w2")
    A("L_Bend:")
    stamp(6)
    dump_stamps(7, [(11,2),(12,6)])
    A("s_endpgm")
    A("L_codeend:")

    body = A.render()
    out = HEADER
    out += f"; @launch grid=(256,1,1) block=(576,1,1) lds={LDS_BYTES}\n"
    out += '.amdgcn_target "amdgcn-amd-amdhsa--gfx950"\n.text\n'
    out += f".globl {NAME}\n.p2align 8\n.type {NAME},@function\n"
    out += body
    out += f""".section .rodata,"a"
.p2align 6
.amdhsa_kernel {NAME}
  .amdhsa_next_free_vgpr 152
  .amdhsa_next_free_sgpr 102
  .amdhsa_accum_offset 152
  .amdhsa_group_segment_fixed_size 0
  .amdhsa_kernarg_size 96
  .amdhsa_user_sgpr_count 2
  .amdhsa_user_sgpr_kernarg_segment_ptr 1
  .amdhsa_system_sgpr_workgroup_id_x 1
  .amdhsa_float_denorm_mode_32 3
.end_amdhsa_kernel
"""
    return out

if __name__ == "__main__":
    import json
    kw = json.loads(sys.argv[2]) if len(sys.argv) > 2 else {}
    open(sys.argv[1], "w").write(gen(**kw))
```

```python
import sys
sys.path.insert(0, "work")
from asmlib import Asm

NAME = "gated_mix__sliding_block_cached__dense_activation_relu__decode_kernel"
HEADER = open("gated_mix__sliding_block_cached__dense_activation_relu__decode.s.ref").read().split("; Override launch")[0]

HQ = 0x10000
HH = 0x30000
LSE = 0x40000
QP = 0x80000
HP = 0x100000
OP = 0x180000
FP = 0x280000
WS_USED = 0x400000
DIAG = 0x400000
R0, R1, R2, R3, M = 0x0, 0x8000, 0x10000, 0x18000, 0x20000
XS = M
QB = M + 0x1000
OB = M + 0x1A00
AC = M + 0x2C00
ST = M + 0x6E00
FL = M + 0x7000
LDS_BYTES = 160 * 1024
TAGK = 0x9E3779B1
SPIN_LIMIT = 400000
L2E = 0x3FB8AA3B
SCALE = 0x3DB504F3

def gen(D=(24, 24), rot=1, etouch=0, pf_wait=True, q_hint=True, q_start=76, diag=False, mimic=True, gflags="sc1", hint_sleep=0, code_pf=True, r_start=0, touch=True, pad=0, elim=0, lsleep=0, gate_late=True, probe=0):
    A = Asm()
    rotc = {0: "", 1: "s_mov_b32 s14, s7", 2: "s_mov_b32 s14, s6", 3: "s_add_u32 s14, s6, s7"}[rot]
    SP = [68, 70, 72, 74, 76, 78, 80, 82, 62, 100, 32, 36]
    def stamp(i):
        if diag: A(f"s_memrealtime s[{SP[i]}:{SP[i]+1}]")
    def dump_stamps(n, extra=()):
        if not diag: return
        A("s_waitcnt lgkmcnt(0)")
        A("s_lshl_b32 s60, s2, 4"); A("s_add_u32 s60, s60, s3"); A("s_lshl_b32 s60, s60, 6"); A(f"s_add_u32 s60, s60, {DIAG}")
        A("s_mov_b64 exec, 1")
        A("v_mov_b32 v2, 0")
        for i in range(n):
            A(f"v_mov_b32 v3, s{SP[i]}")
            A(f"buffer_store_dword v3, v2, s[44:47], s60 offen offset:{4*i}")
        for k, r in enumerate(extra):
            A(f"buffer_store_dword {r}, v2, s[44:47], s60 offen offset:{48+4*k}")
    def spin_tail(L, Ld, inc=1):
        A(f"s_add_u32 s41, s41, {inc}"); A(f"s_cmp_lt_u32 s41, {SPIN_LIMIT}"); A(f"s_cbranch_scc1 {L}"); A(f"{Ld}:")
    def wait_lds(vaddr, th, vt="v2", off=0):
        L = A.lab("W"); Ld = L + "d"
        A(f"{L}:")
        A(f"ds_read_b32 {vt}, {vaddr}" + (f" offset:{off}" if off else ""))
        A("s_waitcnt lgkmcnt(0)")
        A(f"v_cmp_gt_i32 vcc, {th}, {vt}")
        A(f"s_cbranch_vccz {Ld}")
        if lsleep: A(f"s_sleep {lsleep}")
        spin_tail(L, Ld)
    def srd(d, b, size):
        A(f"s_mov_b32 s{d}, s{b}"); A(f"s_mov_b32 s{d+1}, s{b+1}"); A(f"s_mov_b32 s{d+2}, {size:#x}"); A(f"s_mov_b32 s{d+3}, 0x20000")

    A(f"{NAME}:")
    A("s_cmp_ge_u32 s2, 256")
    A("s_cbranch_scc1 L_exit")
    A("v_readfirstlane_b32 s3, v0")
    stamp(0)
    if pad: A("s_memrealtime s[68:69]")
    A("v_and_b32 v1, 63, v0")
    A("s_mov_b32 s41, 0")
    A("s_lshr_b32 s4, s2, 6")
    A("s_and_b32 s5, s2, 63")
    A("s_and_b32 s6, s2, 7")
    A("s_lshr_b32 s7, s2, 3")
    A("s_lshr_b32 s3, s3, 6")
    A("s_cbranch_scc0 L_loader")
    A("s_getpc_b64 s[54:55]")
    A("L_pc:")
    A("v_subrev_u32 v2, 64, v0"); A("v_lshlrev_b32 v2, 7, v2"); A("v_min_u32 v2, L_codeend-L_pc-4, v2")
    A("global_load_dword v160, v2, s[54:55]")
    A("v_mov_b32 v3, 0")
    A(f"v_lshlrev_b32 v9, 2, v0"); A(f"v_add_u32 v9, {FL}, v9")
    A(f"v_lshlrev_b32 v2, 2, v1"); A(f"v_add_u32 v2, {FL}, v2")
    A("ds_write_b32 v9, v3"); A("ds_write_b32 v2, v3")
    A("s_waitcnt lgkmcnt(0)")
    A("s_barrier")
    if elim == 1: A("s_endpgm")
    A("s_load_dwordx16 s[16:31], s[0:1], 0")
    A("s_load_dwordx8 s[32:39], s[0:1], 64")
    A("s_waitcnt vmcnt(0) lgkmcnt(0)" if pf_wait else "s_waitcnt lgkmcnt(0)")
    A("s_branch L_notloader")

    A("L_loader:")
    A("s_load_dwordx16 s[16:31], s[0:1], 0")
    if diag: A("s_load_dwordx8 s[32:39], s[0:1], 64")
    A("s_setprio 3")
    A("v_lshrrev_b32 v14, 5, v1"); A("v_and_b32 v15, 31, v1"); A("v_lshlrev_b32 v2, 11, v14"); A("v_lshl_add_u32 v4, v15, 4, v2")
    A("v_lshrrev_b32 v13, 3, v1"); A("v_and_b32 v2, 6, v13"); A("v_and_b32 v3, 7, v1"); A("v_xor_b32 v3, v3, v2"); A("v_lshlrev_b32 v12, 4, v3")
    A("v_lshl_add_u32 v5, v13, 13, v12"); A("v_mov_b32 v6, v5"); A("v_mov_b32 v7, v5"); A("v_mov_b32 v8, v5")
    A("v_mul_u32_u24 v24, 0x1c00, v13"); A("v_add_u32 v24, v24, v12")
    A("v_lshrrev_b32 v2, 4, v1"); A("v_and_b32 v3, 15, v1"); A("v_xor_b32 v9, v3, v2"); A("v_lshlrev_b32 v9, 4, v9"); A("v_lshl_add_u32 v16, v2, 8, v9")
    A("v_lshlrev_b32 v9, 1, v2"); A("v_xor_b32 v9, v3, v9"); A("v_lshlrev_b32 v9, 4, v9"); A("v_lshl_add_u32 v20, v2, 8, v9")
    A("v_lshl_add_u32 v22, v2, 11, v9")
    A("v_lshlrev_b32 v9, 5, v14"); A("v_xor_b32 v25, v4, v9")
    A("v_lshlrev_b32 v9, 4, v14"); A("v_xor_b32 v4, v4, v9"); A("v_xor_b32 v17, 32, v4"); A("v_xor_b32 v18, 64, v4"); A("v_xor_b32 v19, 32, v18")
    A(f"v_mov_b32 v29, {FL}"); A("v_lshl_add_u32 v10, v1, 2, v29"); A("v_and_b32 v2, 3, v1"); A("v_mul_u32_u24 v2, 0x104, v2"); A("v_add_u32 v29, v2, v29")
    A("s_lshl_b32 s8, s4, 9")
    A("s_lshl_b32 s10, s5, 7"); A("s_lshl_b32 s9, s4, 21"); A("s_add_u32 s9, s9, s10")
    A(f"s_mul_i32 s42, s4, {256*7168}"); A("s_add_u32 s42, s42, s10")
    A("s_and_b32 s15, s7, 24"); A("s_add_u32 s15, s15, s6"); A("s_lshl_b32 s15, s15, 5"); A("s_and_b32 s12, s7, 7"); A("s_add_u32 s15, s15, s12")
    A("s_add_u32 s15, s15, 24"); A("s_lshl_b32 s15, s15, 15")
    A(f"s_mov_b32 m0, {XS}")
    A("s_movk_i32 s46, 0x4000"); A("s_mov_b32 s47, 0x20000"); A("s_mov_b32 s50, 0x800000"); A("s_mov_b32 s51, 0x20000")
    A(f"s_mov_b32 s43, {4 + 4 - D[0]}"); A("s_mov_b32 s11, 0xfc00"); A("s_mov_b32 s13, 8")
    A("s_barrier")
    A("s_waitcnt lgkmcnt(0)")
    stamp(3)
    A("s_mov_b64 s[44:45], s[16:17]"); A("s_mov_b64 s[48:49], s[22:23]")
    for i in range(4):
        A(f"buffer_load_dwordx4 v{4 if i == 0 else 16+i}, s[44:47], s8 offen offset:{i*1024} lds")
        if i < 3: A("s_addk_i32 s8, 0xc00")
    A("s_mov_b32 m0, 0")
    if etouch:
        A("s_load_dword s54, s[18:19], s15"); A("s_load_dword s55, s[20:21], s15"); A("s_load_dword s56, s[28:29], s42")
    A("s_call_b64 s[52:53], L_loop")
    stamp(6)
    A("s_mov_b64 s[48:49], s[18:19]"); A("s_mov_b32 s50, 0x2000000"); A("s_mov_b32 s9, s15"); A("s_mov_b32 s11, 0"); A("s_mov_b32 s13, 8")
    A("v_mov_b32 v5, v16"); A("v_xor_b32 v6, 64, v16"); A("v_xor_b32 v7, 0x80, v16"); A("v_xor_b32 v8, 64, v7")
    if rot:
        A(rotc); A("s_and_b32 s14, s14, 7"); A("s_lshl_b32 s14, s14, 12"); A(f"s_mov_b32 s10, {R1}")
    A(f"s_call_b64 s[52:53], {'L_loopx' if rot else 'L_loop'}")
    stamp(7)
    A("s_mov_b64 s[48:49], s[20:21]"); A("s_mov_b32 s9, s15"); A("s_mov_b32 s13, 8")
    A("v_mov_b32 v5, v20"); A("v_xor_b32 v6, 0x80, v20"); A("v_mov_b32 v7, v20"); A("v_mov_b32 v8, v6")
    A(f"s_call_b64 s[52:53], {'L_loopx' if rot else 'L_loop'}")
    if rot: A(f"s_mov_b32 m0, {R3}")
    stamp(9)
    A("s_mov_b32 s50, 0x700000")
    A("s_cmp_ge_u32 s5, 56"); A("s_cbranch_scc1 L_now1")
    A("s_mov_b64 s[48:49], s[28:29]"); A("s_mov_b32 s9, s42"); A(f"s_mov_b32 s11, {8*7168-1024}"); A("s_mov_b32 s13, 8")
    A("v_mov_b32 v5, v24"); A("v_mov_b32 v6, v24"); A("v_mov_b32 v7, v24"); A("v_mov_b32 v8, v24")
    A("s_call_b64 s[52:53], L_loop")
    A("L_now1:")
    stamp(1)
    assert D[0] <= 32
    A("s_cmp_ge_u32 s7, 16"); A("s_cbranch_scc1 L_ldw2")
    A("s_mov_b64 s[48:49], s[24:25]"); A("s_mov_b32 s50, 0x800000")
    A("s_lshl_b32 s9, s6, 2"); A("s_lshr_b32 s10, s7, 2"); A("s_add_u32 s9, s9, s10"); A("s_lshl_b32 s9, s9, 9")
    A("s_and_b32 s10, s7, 3"); A("s_add_u32 s9, s9, s10"); A("s_lshl_b32 s9, s9, 9")
    A("s_movk_i32 s11, 0xc00"); A("s_mov_b32 s13, 16")
    A("v_mov_b32 v5, v25"); A("v_xor_b32 v6, 64, v25"); A("v_xor_b32 v7, 0x80, v25"); A("v_xor_b32 v8, 64, v7")
    A("s_branch L_ldfin")
    A("L_ldw2:")
    A("s_mov_b64 s[48:49], s[30:31]")
    A("s_lshl_b32 s9, s6, 1"); A("s_bfe_u32 s10, s7, 0x10003"); A("s_add_u32 s9, s9, s10"); A(f"s_mul_i32 s9, s9, {224*8}")
    A("s_add_u32 s9, s9, s12"); A("s_lshl_b32 s9, s9, 8")
    A("s_movk_i32 s11, 0x1c00"); A("s_mov_b32 s13, 14")
    A("v_mov_b32 v5, v22"); A("v_xor_b32 v6, 0x80, v22"); A("v_mov_b32 v7, v22"); A("v_mov_b32 v8, v6")
    A("L_ldfin:")
    A("s_mov_b32 m0, 0")
    if not elim: wait_lds("v29", 2, off=256)
    if D[1] != D[0]:
        A(f"s_add_i32 s43, s43, {D[0] - D[1]}")
    A(f"s_call_b64 s[52:53], {'L_loop2' if D[1] != D[0] else 'L_loop'}")
    Dl = D[1]
    ks = [k for k in range(Dl - 4, -1, -4) if k % 8 == 0]
    prev = Dl - 4
    for k in ks:
        A(f"s_waitcnt vmcnt({k})")
        if prev != k: A(f"s_add_i32 s43, s43, {prev - k}")
        prev = k
        A("v_mov_b32 v11, s43"); A("ds_write_b32 v10, v11")
    stamp(2)
    if diag: A("s_branch L_ldump")
    A("L_exit:")
    A("s_endpgm")
    if rot:
        A("L_loopx:")
        A("s_xor_b32 m0, s10, s14"); A("s_xor_b32 s8, s9, s14")
        for u in range(4):
            A(f"s_waitcnt vmcnt({D[0]-1})")
            if u == 3:
                A("v_mov_b32 v11, s43"); A("ds_write_b32 v10, v11")
            A(f"buffer_load_dwordx4 v{5+u}, s[48:51], s8 offen offset:{u*1024} nt lds")
        A("s_addk_i32 s9, 0x1000"); A("s_addk_i32 s10, 0x1000"); A("s_add_i32 s43, s43, 4")
        A("s_sub_u32 s13, s13, 1"); A("s_cmp_lg_u32 s13, 0"); A("s_cbranch_scc1 L_loopx")
        A("s_setpc_b64 s[52:53]")
    for lab, Dd in (("L_loop", D[0]), ("L_loop2", D[1])):
        if lab == "L_loop2" and D[1] == D[0]: continue
        A(f"{lab}:")
        for u in range(4):
            A(f"s_waitcnt vmcnt({Dd-1})")
            if u == 3:
                A("v_mov_b32 v11, s43"); A("ds_write_b32 v10, v11")
            A(f"buffer_load_dwordx4 v{5+u}, s[48:51], s9 offen offset:{u*1024} nt lds")
            A("s_add_u32 s9, s9, s11")
        A("s_addk_i32 s9, 0x1000"); A("s_add_u32 m0, m0, 0x1000"); A("s_add_i32 s43, s43, 4")
        A("s_sub_u32 s13, s13, 1"); A("s_cmp_lg_u32 s13, 0"); A(f"s_cbranch_scc1 {lab}")
        A("s_setpc_b64 s[52:53]")

    A("L_notloader:")
    srd(44, 38, 0x800000 if diag else WS_USED)
    A("v_and_b32 v4, 15, v1"); A("v_lshrrev_b32 v5, 4, v1"); A("v_and_b32 v6, 7, v1")
    A(f"v_mov_b32 v7, {FL}")
    A("v_and_b32 v2, 3, v1"); A("v_mul_u32_u24 v2, 0x104, v2"); A(f"v_add_u32 v8, {FL+256}, v2")
    A("v_lshrrev_b32 v2, 1, v5"); A("v_xor_b32 v2, v2, v6"); A("v_lshlrev_b32 v2, 4, v2"); A("v_lshl_add_u32 v10, v6, 9, v2")
    A("v_and_b32 v2, 1, v5"); A("v_lshl_add_u32 v10, v2, 3, v10"); A(f"v_add_u32 v10, {XS}, v10")
    A("v_lshrrev_b32 v11, 2, v1")
    A("v_and_b32 v12, 3, v1"); A("v_lshlrev_b32 v12, 3, v12")
    A("s_mov_b32 s48, 0x00ff00ff"); A("s_mov_b32 s49, 0x00ff00ff")
    A("s_mov_b32 s50, 0xff00ff00"); A("s_mov_b32 s51, 0xff00ff00")
    A("s_sub_u32 s9, s3, 1"); A("s_and_b32 s9, s9, 3")
    A("v_lshrrev_b32 v2, 1, v11"); A("v_and_b32 v2, 3, v2"); A("v_xor_b32 v2, s9, v2"); A("v_lshlrev_b32 v2, 5, v2")
    A("v_lshl_add_u32 v13, v11, 7, v2"); A("v_add_u32 v13, v13, v12")
    A("v_lshlrev_b32 v14, 14, v6"); A("v_lshl_add_u32 v14, v5, 4, v14")
    A("s_lshl_b32 s52, s4, 17"); A("s_lshl_b32 s8, s5, 8"); A("s_add_u32 s52, s52, s8")
    A("s_lshl_b32 s8, s9, 6"); A("s_add_u32 s52, s52, s8")
    if diag:
        A("v_mov_b32 v161, 0"); A("v_mov_b32 v162, 0"); A("v_mov_b32 v163, 0")
    if elim == 2:
        wait_lds("v7", 156); A("s_endpgm")
    A("s_cmp_ge_u32 s3, 5"); A("s_cbranch_scc1 L_B")

    def p1_run():
        for ks in range(8):
            A(f"ds_read_b64_tr_b16 v[{64+4*ks}:{65+4*ks}], v13 offset:{ks*4096}")
            A(f"ds_read_b64_tr_b16 v[{66+4*ks}:{67+4*ks}], v13 offset:{ks*4096 + 2048}")
        for ks in range(8):
            A(f"s_waitcnt lgkmcnt({min(15, 14 - 2*ks)})")
            c = "0" if ks == 0 else "v[16:19]"
            A(f"v_mfma_f32_16x16x32_bf16 v[16:19], v[{64+4*ks}:{67+4*ks}], v[{32+4*ks}:{35+4*ks}], {c}")
        A("v_cvt_pk_bf16_f32 v20, v16, v17"); A("v_cvt_pk_bf16_f32 v22, v18, v19")
        A("s_mov_b64 exec, s[48:49]")
        A("buffer_store_dwordx4 v[20:23], v14, s[44:47], s52 offen sc1")
        A("s_mov_b64 exec, -1")
    def xfrags():
        wait_lds("v7", 4)
        for var in range(4):
            if var: A(f"v_xor_b32 v3, {var*32}, v10")
            for kk in range(4):
                ks = kk*2 + (var >> 1); hh = var & 1
                A(f"ds_read_b64 v[{32+4*ks+2*hh}:{33+4*ks+2*hh}], {'v3' if var else 'v10'} offset:{kk*128}")
    def flag(stage):
        A(f"v_mov_b32 v2, {stage}"); A("ds_write_b32 v9, v2")
    def hint16():
        L = A.lab("P"); Ld = L + "d"; Lr = L + "r"
        A(f"{L}:")
        A("s_load_dwordx16 s[84:99], s[54:55], 0 glc")
        A("s_waitcnt lgkmcnt(0)")
        for i in range(8):
            A(f"s_cmp_eq_u64 s[{84+2*i}:{85+2*i}], s[42:43]"); A(f"s_cbranch_scc0 {Lr}")
        A(f"s_branch {Ld}")
        A(f"{Lr}:")
        if hint_sleep: A(f"s_sleep {hint_sleep}")
        spin_tail(L, Ld, 16)
    def gather(loads, full="-1", tb=112, mid=None, cnt=None):
        N = len(loads)
        L = A.lab("G"); Ld = L + "d"; Lc = L + "c"
        for d, t in loads: A(t)
        if mid: mid()
        A(f"{Lc}:")
        if diag and cnt: A(f"v_add_u32 {cnt}, 1, {cnt}")
        A("s_waitcnt vmcnt(0)")
        for i, (d, t) in enumerate(loads):
            A(f"v_xor_b32 v{tb+i}, v{d+1}, v15"); A(f"v_bitop3_b32 v{tb+i}, v{tb+i}, v{d+3}, v15 bitop3:0xf6")
        A(f"v_or_b32 v2, v{tb}, v{tb+1}")
        for i in range(2, N, 2): A(f"v_or3_b32 v2, v2, v{tb+i}, v{tb+i+1}")
        A("v_cmp_ne_u32 vcc, 0, v2")
        A(f"s_cbranch_vccz {Ld}")
        A("s_add_u32 s41, s41, 64"); A(f"s_cmp_ge_u32 s41, {SPIN_LIMIT}"); A(f"s_cbranch_scc1 {Ld}")
        for i in range(N): A(f"v_cmp_ne_u32 s[{16+2*i}:{17+2*i}], 0, v{tb+i}")
        for i, (d, t) in enumerate(loads):
            m = 16 + 2*i
            sk = A.lab("S")
            A(f"s_mov_b64 exec, s[{m}:{m+1}]"); A(f"s_cbranch_execz {sk}"); A(t.replace(gflags, "sc1") if gflags else t + " sc1"); A(f"{sk}:")
        A(f"s_mov_b64 exec, {full}")
        A(f"s_branch {Lc}")
        A(f"{Ld}:")
    def sum4(base, n, stride, out):
        for k, off in enumerate((0, 2)):
            for i in range(n):
                r = base + stride * i + off
                if i == 0:
                    A(f"v_lshlrev_b32 v{out+2*k}, 16, v{r}"); A(f"v_and_b32 v{out+2*k+1}, 0xffff0000, v{r}")
                else:
                    A(f"v_lshlrev_b32 v2, 16, v{r}"); A(f"v_and_b32 v3, 0xffff0000, v{r}")
                    A(f"v_add_f32 v{out+2*k}, v{out+2*k}, v2"); A(f"v_add_f32 v{out+2*k+1}, v{out+2*k+1}, v3")
    def unitpos(dst, u):
        A(f"v_lshrrev_b32 v2, 3, {u}"); A(f"v_lshlrev_b32 {dst}, 6, v2")
        A(f"v_and_b32 v2, 3, {u}"); A(f"v_lshl_add_u32 {dst}, v2, 4, {dst}")
        A(f"v_bfe_u32 v2, {u}, 2, 1"); A(f"v_lshl_add_u32 {dst}, v2, 3, {dst}")

    A("s_load_dword s40, s[38:39], 0")
    A(f"s_add_u32 s52, s52, {QP}")
    A("s_lshr_b32 s10, s7, 3"); A("s_lshl_b32 s10, s10, 3"); A("s_add_u32 s10, s10, s6")
    A("s_lshr_b32 s11, s10, 2")
    A("s_and_b32 s12, s10, 3")
    A("s_and_b32 s13, s7, 7")
    A("v_xor_b32 v2, v5, v4"); A("v_lshlrev_b32 v2, 4, v2"); A("v_lshl_add_u32 v24, v4, 8, v2")
    A("s_lshl_b32 s8, s9, 13"); A(f"s_add_u32 s8, s8, {R1}"); A("v_add_u32 v24, s8, v24")
    A("v_xor_b32 v25, 64, v24"); A("v_xor_b32 v26, 0x80, v24"); A("v_xor_b32 v27, 0xc0, v24")
    A("v_and_b32 v2, 7, v11"); A("v_lshlrev_b32 v2, 5, v2"); A("v_lshl_add_u32 v28, v11, 8, v2"); A("v_add_u32 v28, v28, v12")
    A("s_lshl_b32 s8, s9, 13"); A(f"s_add_u32 s8, s8, {R2}"); A("v_add_u32 v28, s8, v28")
    if rot:
        A(rotc); A("s_bfe_u32 s14, s14, 0x20001"); A("s_xor_b32 s14, s14, s9"); A("s_lshl_b32 s14, s14, 3")
    else:
        A("s_lshl_b32 s14, s9, 3")
    A("s_add_u32 s15, s14, 76"); A("s_add_u32 s14, s14, 44")
    A("v_lshlrev_b32 v29, 4, v1")
    A("s_lshl_b32 s56, s11, 14"); A("s_lshl_b32 s8, s12, 12"); A("s_add_u32 s56, s56, s8"); A("s_lshl_b32 s8, s9, 10"); A("s_add_u32 s56, s56, s8")
    A(f"s_add_u32 s56, s56, {QP}"); A("s_add_u32 s57, s56, 0x20000"); A("s_add_u32 s58, s56, 0x40000"); A("s_add_u32 s59, s56, 0x60000")
    A("s_lshl_b32 s8, s12, 6"); A("s_lshl_b32 s54, s11, 3"); A("s_add_u32 s8, s8, s54"); A("s_add_u32 s8, s8, s13")
    A("s_lshl_b32 s8, s8, 2"); A("s_add_u32 s8, s8, s9"); A("s_lshl_b32 s8, s8, 7"); A(f"s_add_u32 s8, s8, {HQ}")
    A("s_add_u32 s54, s38, s8"); A("s_addc_u32 s55, s39, 0")
    A("v_lshlrev_b32 v111, 9, v1")
    A("s_lshr_b32 s53, s5, 4"); A("s_lshl_b32 s53, s53, 15"); A("s_bfe_u32 s8, s5, 0x20002"); A("s_lshl_b32 s8, s8, 7"); A("s_add_u32 s53, s53, s8")
    A("s_and_b32 s8, s5, 3"); A("s_lshl_b32 s8, s8, 4"); A("s_add_u32 s53, s53, s8"); A("s_lshl_b32 s8, s4, 2"); A("s_add_u32 s53, s53, s8")
    A(f"s_add_u32 s53, s53, {HQ}")
    A("v_lshrrev_b32 v2, 5, v1"); A("v_mul_u32_u24 v2, 288, v2"); A("v_and_b32 v3, 31, v1"); A("v_lshl_add_u32 v30, v3, 3, v2")
    A("s_mul_i32 s8, s9, 576"); A(f"s_add_u32 s8, s8, {QB}"); A("v_add_u32 v30, s8, v30")
    A("v_mul_u32_u24 v31, 288, v6"); A("v_lshl_add_u32 v31, v5, 4, v31"); A(f"v_add_u32 v31, {QB}, v31")
    A("v_mul_u32_u24 v104, 528, v6"); A("v_lshl_add_u32 v104, v5, 4, v104")
    A("s_mul_i32 s8, s9, 4224"); A(f"s_add_u32 s8, s8, {AC}"); A("v_add_u32 v104, s8, v104")
    A("s_lshl_b32 s8, s9, 2"); A(f"s_add_u32 s8, s8, {ST}"); A("v_lshl_add_u32 v105, v6, 5, s8")
    A("v_lshrrev_b32 v2, 5, v1"); A("s_lshl_b32 s8, s9, 1"); A("v_add_u32 v2, s8, v2")
    A("v_mul_u32_u24 v106, 528, v2"); A("v_lshl_add_u32 v106, v3, 4, v106"); A(f"v_add_u32 v106, {AC}, v106")
    A("v_lshlrev_b32 v107, 5, v2"); A(f"v_add_u32 v107, {ST}, v107")
    A("v_lshlrev_b32 v108, 15, v2"); A("v_lshl_add_u32 v108, v3, 4, v108")
    A("v_lshlrev_b32 v109, 11, v2"); A("v_and_b32 v3, 3, v1"); A("v_lshl_add_u32 v109, v3, 9, v109")
    A("s_lshl_b32 s60, s12, 18"); A("s_lshl_b32 s8, s11, 12"); A("s_add_u32 s60, s60, s8"); A("s_lshl_b32 s8, s13, 9"); A("s_add_u32 s60, s60, s8")
    A(f"s_add_u32 s60, s60, {OP}")
    A("s_lshl_b32 s61, s12, 14"); A("s_lshl_b32 s8, s11, 6"); A("s_add_u32 s61, s61, s8"); A("s_lshl_b32 s8, s13, 3"); A("s_add_u32 s61, s61, s8")
    A(f"s_add_u32 s61, s61, {LSE}")
    A(f"s_mov_b32 s64, {SCALE:#x}"); A(f"s_mov_b32 s65, {L2E:#x}")
    xfrags()
    A(f"s_add_u32 s40, s40, {TAGK:#x}"); A("s_mov_b32 s42, s40"); A("s_mov_b32 s43, s40")
    A("v_mov_b32 v15, s40"); A("v_mov_b32 v21, s40"); A("v_mov_b32 v23, s40")
    A(f"v_mov_b32 v3, {FL + 9*256}"); A("v_lshl_add_u32 v3, v1, 2, v3"); A("ds_write_b32 v3, v15")
    wait_lds("v7", 36)
    stamp(1)
    p1_run()
    flag(1)
    A("s_cmp_lg_u32 s9, 0"); A("s_cbranch_scc1 L_nohq")
    wait_lds("v8", 1)
    if elim != 4 and q_hint: A("buffer_store_dword v15, v111, s[44:47], s53 offen sc1")
    A("L_nohq:")
    stamp(2)
    if elim in (3, 4): A("s_endpgm")
    wait_lds("v7", "s14")
    for t in range(2):
        for s in range(4):
            A(f"ds_read_b128 v[{32+16*t+4*s}:{35+16*t+4*s}], v{24+s} offset:{t*4096}")
    A("s_waitcnt lgkmcnt(0)")
    flag(2)
    stamp(3)
    if q_hint: hint16()
    else: wait_lds("v7", q_start)
    stamp(4)
    if elim == 5: A("s_endpgm")
    gather([(64+4*sp, f"buffer_load_dwordx4 v[{64+4*sp}:{67+4*sp}], v29, s[44:47], s{56+sp} offen {gflags}") for sp in range(4)], cnt="v161")
    stamp(5)
    sum4(64, 4, 4, 16)
    A("v_cvt_pk_bf16_f32 v20, v16, v17"); A("v_cvt_pk_bf16_f32 v21, v18, v19")
    A("ds_write_b64 v30, v[20:21]")
    flag(3)
    wait_lds("v8", 3)
    for s in range(4):
        A(f"ds_read_b128 v[{64+4*s}:{67+4*s}], v31 offset:{s*64}")
    for s in range(4):
        A(f"s_waitcnt lgkmcnt({3-s})")
        for t in range(2):
            c = "0" if s == 0 else f"v[{16+4*t}:{19+4*t}]"
            A(f"v_mfma_f32_16x16x32_bf16 v[{16+4*t}:{19+4*t}], v[{32+16*t+4*s}:{35+16*t+4*s}], v[{64+4*s}:{67+4*s}], {c}")
    if mimic:
        for i in range(4):
            a, b = 16 + 2*i, 17 + 2*i
            A(f"v_cvt_pk_bf16_f32 v2, v{a}, v{b}")
            A(f"v_lshlrev_b32 v{a}, 16, v2"); A(f"v_and_b32 v{b}, 0xffff0000, v2")
            A(f"v_mul_f32 v{a}, s64, v{a}"); A(f"v_mul_f32 v{b}, s64, v{b}")
            A(f"v_cvt_pk_bf16_f32 v2, v{a}, v{b}")
            A(f"v_lshlrev_b32 v{a}, 16, v2"); A(f"v_and_b32 v{b}, 0xffff0000, v2")
    else:
        for i in range(8): A(f"v_mul_f32 v{16+i}, s64, v{16+i}")
    A("v_max3_f32 v2, v16, v17, v18"); A("v_max3_f32 v3, v19, v20, v21"); A("v_max3_f32 v2, v2, v22, v23"); A("v_max_f32 v2, v2, v3")
    A("v_mov_b32 v3, v2"); A("v_permlane16_swap_b32 v2, v3"); A("v_max_f32 v2, v2, v3")
    A("v_mov_b32 v3, v2"); A("v_permlane32_swap_b32 v2, v3"); A("v_max_f32 v2, v2, v3")
    A("v_mul_f32 v96, s65, v2")
    for i in range(8): A(f"v_fma_f32 v{16+i}, v{16+i}, s65, -v96")
    for i in range(8): A(f"v_exp_f32 v{16+i}, v{16+i}")
    for i in range(4): A(f"v_cvt_pk_bf16_f32 v{100+i}, v{16+2*i}, v{17+2*i}")
    stamp(6)
    wait_lds("v7", "s15")
    for q in range(8):
        if q: A(f"v_xor_b32 v3, {q*32}, v28")
        ad = "v3" if q else "v28"
        A(f"ds_read_b64_tr_b16 v[{32+4*q}:{33+4*q}], {ad}")
        A(f"ds_read_b64_tr_b16 v[{34+4*q}:{35+4*q}], {ad} offset:4096")
    A("v_add_f32 v2, v16, v17"); A("v_add_f32 v3, v18, v19"); A("v_add_f32 v2, v2, v20"); A("v_add_f32 v3, v3, v21")
    A("v_add_f32 v2, v2, v22"); A("v_add_f32 v3, v3, v23"); A("v_add_f32 v97, v2, v3")
    A("v_mov_b32 v3, v97"); A("v_permlane16_swap_b32 v97, v3"); A("v_add_f32 v97, v97, v3")
    A("v_mov_b32 v3, v97"); A("v_permlane32_swap_b32 v97, v3"); A("v_add_f32 v97, v97, v3")
    for q in range(8):
        A(f"s_waitcnt lgkmcnt({min(15, 14-2*q)})")
        A(f"v_mfma_f32_16x16x32_bf16 v[{64+4*q}:{67+4*q}], v[{32+4*q}:{35+4*q}], v[100:103], 0")
    A("s_mov_b64 exec, 0xff")
    A("ds_write2_b32 v105, v96, v97 offset0:0 offset1:4")
    A("s_mov_b64 exec, s[48:49]")
    for q in range(8):
        A(f"ds_write_b128 v104, v[{64+4*q}:{67+4*q}] offset:{q*64}")
    A("s_mov_b64 exec, -1")
    flag(4)
    A("v_mov_b32 v53, v15"); A("v_mov_b32 v55, v15"); A("v_mov_b32 v57, v15")
    wait_lds("v8", 4)
    A("ds_read_b128 v[16:19], v107"); A("ds_read_b128 v[20:23], v107 offset:16")
    for i in range(4):
        A(f"ds_read_b128 v[{32+4*i}:{35+4*i}], v106 offset:{i*4224}")
    A("s_waitcnt lgkmcnt(4)")
    A("v_max3_f32 v2, v16, v17, v18"); A("v_max_f32 v2, v2, v19")
    for i in range(4): A(f"v_sub_f32 v{16+i}, v{16+i}, v2")
    for i in range(4): A(f"v_exp_f32 v{16+i}, v{16+i}")
    A("v_mul_f32 v3, v16, v20")
    for i in range(1, 4): A(f"v_fmac_f32 v3, v{16+i}, v{20+i}")
    A("v_rcp_f32 v20, v3"); A("v_log_f32 v21, v3")
    A("s_waitcnt lgkmcnt(0)")
    for k in range(4): A(f"v_mul_f32 v{48+k}, v16, v{32+k}")
    for i in range(1, 4):
        for k in range(4): A(f"v_fmac_f32 v{48+k}, v{16+i}, v{32+4*i+k}")
    for k in range(4): A(f"v_mul_f32 v{48+k}, v{48+k}, v20")
    A("v_cvt_pk_bf16_f32 v52, v48, v49"); A("v_cvt_pk_bf16_f32 v54, v50, v51")
    A("v_add_f32 v56, v2, v21")
    A("buffer_store_dwordx4 v[52:55], v108, s[44:47], s60 offen sc1")
    A("s_mov_b32 exec_lo, 15"); A("s_mov_b32 exec_hi, 15")
    A("buffer_store_dwordx2 v[56:57], v109, s[44:47], s61 offen sc1")
    A("s_mov_b64 exec, -1")
    stamp(7)
    A("s_cmp_ge_u32 s7, 16"); A("s_cbranch_scc1 L_gh")
    A("s_lshl_b32 s10, s6, 2"); A("s_lshr_b32 s8, s7, 2"); A("s_add_u32 s10, s10, s8")
    A("s_lshl_b32 s56, s10, 15"); A("s_lshl_b32 s8, s9, 13"); A("s_add_u32 s56, s56, s8")
    A(f"s_add_u32 s56, s56, {OP}"); A("s_add_u32 s57, s56, 4096")
    A("s_lshl_b32 s8, s10, 11"); A("s_and_b32 s54, s7, 3"); A("s_lshl_b32 s54, s54, 9"); A("s_add_u32 s8, s8, s54")
    A("s_lshl_b32 s54, s9, 7"); A("s_add_u32 s8, s8, s54"); A(f"s_add_u32 s8, s8, {LSE}")
    A("s_add_u32 s54, s38, s8"); A("s_addc_u32 s55, s39, 0")
    A("v_and_b32 v3, 31, v1"); unitpos("v30", "v3")
    A("v_lshrrev_b32 v2, 5, v1"); A("v_mul_u32_u24 v2, 544, v2"); A("v_add_u32 v30, v30, v2")
    A("s_mul_i32 s8, s9, 1088"); A(f"s_add_u32 s8, s8, {OB}"); A("v_add_u32 v30, s8, v30")
    L = A.lab("P"); Ld = L + "d"; Lr = L + "r"
    A(f"{L}:")
    A("s_load_dwordx16 s[16:31], s[54:55], 0 glc")
    A("s_load_dwordx16 s[84:99], s[54:55], 64 glc")
    A("s_waitcnt lgkmcnt(0)")
    for base in (16, 84):
        for i in range(8):
            A(f"s_cmp_eq_u32 s{base+2*i+1}, s40"); A(f"s_cbranch_scc0 {Lr}")
    A(f"s_branch {Ld}")
    A(f"{Lr}:")
    if hint_sleep: A(f"s_sleep {hint_sleep}")
    spin_tail(L, Ld, 16)
    stamp(8)
    def weights():
        for bb, base in enumerate((16, 84)):
            for i in range(4): A(f"v_mov_b32 v{16+4*bb+i}, s{base+4*i}")
        A("s_mov_b32 exec_lo, 0")
        for bb, base in enumerate((16, 84)):
            for i in range(4): A(f"v_mov_b32 v{16+4*bb+i}, s{base+4*i+2}")
        A("s_mov_b64 exec, -1")
        for bb in range(2):
            o = 16 + 4*bb
            A(f"v_max3_f32 v2, v{o}, v{o+1}, v{o+2}"); A(f"v_max_f32 v2, v2, v{o+3}")
            A("v_mov_b32 v3, v2"); A("v_permlane32_swap_b32 v2, v3"); A("v_max_f32 v2, v2, v3")
            for i in range(4): A(f"v_sub_f32 v{o+i}, v{o+i}, v2")
            for i in range(4): A(f"v_exp_f32 v{o+i}, v{o+i}")
            A(f"v_add_f32 v2, v{o}, v{o+1}"); A(f"v_add_f32 v3, v{o+2}, v{o+3}"); A("v_add_f32 v2, v2, v3")
            A("v_mov_b32 v3, v2"); A("v_permlane32_swap_b32 v2, v3"); A("v_add_f32 v2, v2, v3")
            A("v_rcp_f32 v2, v2")
            for i in range(4): A(f"v_mul_f32 v{o+i}, v{o+i}, v2")
    gather([(32+16*bb+4*i, f"buffer_load_dwordx4 v[{32+16*bb+4*i}:{35+16*bb+4*i}], v29, s[44:47], s{56+bb} offen offset:{i*1024} {gflags}") for bb in range(2) for i in range(4)], mid=weights, cnt="v162")
    for bb in range(2):
        for k, off in enumerate((0, 2)):
            for i in range(4):
                r = 32 + 16*bb + 4*i + off; w = 16 + 4*bb + i; o = 64 + 4*bb + 2*k
                A(f"v_lshlrev_b32 v2, 16, v{r}"); A(f"v_and_b32 v3, 0xffff0000, v{r}")
                if i == 0:
                    A(f"v_mul_f32 v{o}, v{w}, v2"); A(f"v_mul_f32 v{o+1}, v{w}, v3")
                else:
                    A(f"v_fmac_f32 v{o}, v{w}, v2"); A(f"v_fmac_f32 v{o+1}, v{w}, v3")
    for k in range(4): A(f"v_permlane32_swap_b32 v{64+k}, v{68+k}")
    for k in range(4): A(f"v_add_f32 v{64+k}, v{64+k}, v{68+k}")
    A("v_cvt_pk_bf16_f32 v20, v64, v65"); A("v_cvt_pk_bf16_f32 v21, v66, v67")
    A("ds_write_b64 v30, v[20:21]")
    A("s_branch L_gdone")
    A("L_gh:")
    A("s_lshl_b32 s10, s6, 1"); A("s_bfe_u32 s8, s7, 0x10003"); A("s_add_u32 s10, s10, s8")
    A("s_lshl_b32 s8, s10, 3"); A("s_and_b32 s54, s7, 7"); A("s_add_u32 s8, s8, s54"); A("s_lshl_b32 s8, s8, 7"); A(f"s_add_u32 s8, s8, {HH}")
    A("s_add_u32 s54, s38, s8"); A("s_addc_u32 s55, s39, 0")
    A("s_mul_i32 s56, s10, 896"); A("s_lshl_b32 s8, s9, 15"); A("s_add_u32 s56, s56, s8"); A(f"s_add_u32 s56, s56, {HP}")
    A("s_add_u32 s57, s56, 0x20000"); A("s_add_u32 s58, s56, 0x40000"); A("s_add_u32 s59, s56, 0x60000")
    A("v_add_u32 v31, 0x4000, v29")
    unitpos("v30", "v1")
    A("s_mul_i32 s8, s9, 1088"); A(f"s_add_u32 s8, s8, {OB}"); A("v_add_u32 v30, s8, v30")
    A("s_mov_b32 s66, -1"); A("s_mov_b32 s67, 0x00ffffff")
    hint16()
    stamp(8)
    A("s_mov_b64 exec, s[66:67]")
    gather([(32+16*bb+4*sp, f"buffer_load_dwordx4 v[{32+16*bb+4*sp}:{35+16*bb+4*sp}], v{29 if bb == 0 else 31}, s[44:47], s{56+sp} offen {gflags}") for bb in range(2) for sp in range(4)], full="s[66:67]", cnt="v162")
    for bb in range(2):
        sum4(32 + 16*bb, 4, 4, 64 + 4*bb)
        for k in range(4): A(f"v_max_f32 v{64+4*bb+k}, 0, v{64+4*bb+k}")
        A(f"v_cvt_pk_bf16_f32 v{20+2*bb}, v{64+4*bb}, v{65+4*bb}"); A(f"v_cvt_pk_bf16_f32 v{21+2*bb}, v{66+4*bb}, v{67+4*bb}")
        A(f"ds_write_b64 v30, v[{20+2*bb}:{21+2*bb}] offset:{544*bb}")
    A("s_mov_b64 exec, -1")
    A("L_gdone:")
    flag(5)
    stamp(9)
    A("s_cmp_lg_u32 s9, 0"); A("s_cbranch_scc1 L_Aend")
    A("v_lshrrev_b32 v2, 3, v1"); A("v_lshlrev_b32 v29, 15, v2"); A("v_lshl_add_u32 v29, v6, 4, v29")
    A("s_lshr_b32 s10, s2, 5"); A("s_lshl_b32 s56, s10, 12"); A("s_and_b32 s11, s2, 31"); A("s_lshl_b32 s8, s11, 7"); A("s_add_u32 s56, s56, s8")
    A(f"s_add_u32 s56, s56, {FP}")
    for i in range(1, 6): A(f"s_add_u32 s{56+i}, s56, {i*0x40000}")
    srd(64, 34, 16384)
    A("s_lshl_b32 s12, s10, 11"); A("s_lshl_b32 s8, s11, 6"); A("s_add_u32 s12, s12, s8")
    A("v_lshlrev_b32 v30, 3, v6")
    A(f"v_mov_b32 v3, {FL+5*256}")
    wait_lds("v3", 1)
    A(f"v_mov_b32 v3, {FL+10*256}")
    A("ds_read_b64 v[24:25], v3")
    if r_start: wait_lds("v7", r_start)
    else: wait_lds("v8", 3, off=1024)
    gather([(32+4*i, f"buffer_load_dwordx4 v[{32+4*i}:{35+4*i}], v29, s[44:47], s{56+i} offen {gflags}") for i in range(6)], cnt="v163")
    stamp(10)
    sum4(32, 4, 4, 64)
    sum4(48, 2, 4, 68)
    for k in range(8): A(f"v_add_f32_dpp v{64+k}, v{64+k}, v{64+k} row_ror:8 row_mask:0xf bank_mask:0xf")
    for sw in ("v_permlane16_swap_b32", "v_permlane32_swap_b32"):
        for k in range(8): A(f"v_mov_b32 v{72+k}, v{64+k}")
        for k in range(8): A(f"{sw} v{64+k}, v{72+k}")
        for k in range(8): A(f"v_add_f32 v{64+k}, v{64+k}, v{72+k}")
    for base, gv in ((64, "v24"), (68, "v25")):
        for p in range(2):
            a, b = base + 2*p, base + 2*p + 1
            A(f"v_cvt_pk_bf16_f32 v2, v{a}, v{b}")
            A(f"v_lshlrev_b32 v{a}, 16, v2"); A(f"v_and_b32 v{b}, 0xffff0000, v2")
            A(f"v_mul_f32 v{a}, {gv}, v{a}"); A(f"v_mul_f32 v{b}, {gv}, v{b}")
            A(f"v_cvt_pk_bf16_f32 v2, v{a}, v{b}")
            A(f"v_lshlrev_b32 v{a}, 16, v2"); A(f"v_and_b32 v{b}, 0xffff0000, v2")
    for k in range(4): A(f"v_add_f32 v{64+k}, v{64+k}, v{68+k}")
    A("v_cvt_pk_bf16_f32 v20, v64, v65"); A("v_cvt_pk_bf16_f32 v21, v66, v67")
    A("s_mov_b64 exec, 0xff")
    A("buffer_store_dwordx2 v[20:21], v30, s[64:67], s12 offen")
    A("s_cmp_lg_u32 s2, 0"); A("s_cbranch_scc1 L_Aend")
    A("s_mov_b64 exec, 1")
    A("v_mov_b32 v2, 0")
    A("buffer_store_dword v15, v2, s[44:47], 0 offen sc1")
    A("L_Aend:")
    if pad:
        A("L_pad:"); A("s_memrealtime s[70:71]"); A("s_waitcnt lgkmcnt(0)"); A("s_sub_u32 s72, s70, s68"); A(f"s_cmp_lt_u32 s72, {pad}"); A("s_cbranch_scc1 L_pad")
    stamp(11)
    dump_stamps(12, ["v161", "v162", "v163"])
    A("s_endpgm")

    A("L_B:")
    A(f"s_add_u32 s52, s52, {HP}")
    A(f"v_add_u32 v13, {R3}, v13")
    def gate_loads():
        srd(64, 16, 16384)
        srd(84, 32, 2048)
        A("s_lshr_b32 s10, s2, 5"); A("s_lshl_b32 s10, s10, 11")
        A("v_lshlrev_b32 v2, 5, v1")
        A("buffer_load_dwordx4 v[96:99], v2, s[64:67], s10 offen"); A("buffer_load_dwordx4 v[100:103], v2, s[64:67], s10 offen offset:16")
        A("buffer_load_dwordx4 v[104:107], v2, s[84:87], 0 offen"); A("buffer_load_dwordx4 v[108:111], v2, s[84:87], 0 offen offset:16")
    A("s_cmp_lg_u32 s9, 0"); A("s_cbranch_scc1 L_nogate0")
    if gate_late:
        A("s_and_b32 s8, s7, 15"); A("s_lshl_b32 s8, s8, 7"); A("s_load_dword s88, s[32:33], s8")
    else:
        gate_loads()
    A("L_nogate0:")
    if touch:
        A("s_cmp_lg_u32 s9, 1"); A("s_cbranch_scc1 L_notouch")
        A("s_lshr_b32 s8, s7, 3"); A("s_lshl_b32 s8, s8, 3"); A("s_add_u32 s8, s8, s6"); A("s_lshl_b32 s8, s8, 20"); A(f"s_add_u32 s8, s8, {3072*256}")
        A("s_load_dword s88, s[18:19], s8"); A("s_load_dword s89, s[20:21], s8")
        A(f"s_mul_i32 s8, s4, {256*7168}"); A("s_load_dword s90, s[28:29], s8")
        A(f"s_add_u32 s8, s8, {255*7168}"); A("s_load_dword s91, s[28:29], s8")
        A("s_lshl_b32 s8, s6, 20"); A("s_load_dword s92, s[24:25], s8")
        A(f"s_mul_i32 s8, s6, {448*2048}"); A("s_load_dword s93, s[30:31], s8")
        A(f"s_add_u32 s8, s8, {447*2048}"); A("s_load_dword s94, s[30:31], s8")
        A(f"s_load_dword s95, s[38:39], {0xffffc}")
        A(f"s_mov_b32 s8, {0x3ffffc}"); A("s_load_dword s96, s[38:39], s8")
        A("s_load_dword s97, s[34:35], 0")
        A("L_notouch:")
    A("s_mul_i32 s10, s5, 37"); A("s_lshr_b32 s10, s10, 8")
    A("s_mul_i32 s8, s10, 7"); A("s_sub_u32 s11, s5, s8")
    A("s_lshl_b32 s53, s10, 11"); A("s_lshl_b32 s8, s11, 4"); A("s_add_u32 s53, s53, s8"); A("s_lshl_b32 s8, s4, 2"); A("s_add_u32 s53, s53, s8")
    A(f"s_add_u32 s53, s53, {HH}")
    A("v_lshlrev_b32 v28, 7, v1"); A("v_lshrrev_b32 v2, 3, v1"); A("v_mul_u32_u24 v2, 48, v2"); A("v_sub_u32 v28, v28, v2")
    A("s_mov_b32 s54, 0xff"); A("s_cmp_eq_u32 s11, 3"); A("s_cselect_b32 s54, 0xffff, s54"); A("s_cmp_gt_u32 s11, 3"); A("s_cselect_b32 s54, 0xff00, s54"); A("s_mov_b32 s55, 0")
    A(f"v_add_u32 v29, 1024, v8")
    A("v_mul_u32_u24 v31, 544, v6"); A("v_lshl_add_u32 v31, v5, 4, v31"); A(f"v_add_u32 v31, {OB}, v31")
    A("v_lshlrev_b32 v30, 12, v6"); A("v_lshl_add_u32 v30, v5, 4, v30"); A("v_lshrrev_b32 v2, 3, v4"); A("v_lshl_add_u32 v30, v2, 6, v30")
    xfrags()
    A("s_cmp_lg_u32 s9, 0"); A("s_cbranch_scc1 L_nogate")
    if gate_late:
        wait_lds("v7", 40)
        gate_loads()
    A("s_waitcnt vmcnt(0)")
    A("v_mov_b32 v16, 0"); A("v_mov_b32 v17, 0")
    for i in range(8):
        x, gw = 96 + i, 104 + i
        A(f"v_lshlrev_b32 v18, 16, v{x}"); A(f"v_and_b32 v19, 0xffff0000, v{x}")
        A(f"v_lshlrev_b32 v20, 16, v{gw}"); A(f"v_and_b32 v21, 0xffff0000, v{gw}")
        A("v_mul_f32 v18, v18, v20"); A("v_mul_f32 v19, v19, v21")
        A("v_cvt_pk_bf16_f32 v18, v18, v19")
        A("v_and_b32 v19, 0xffff0000, v18"); A("v_lshlrev_b32 v18, 16, v18")
        A("v_add_f32 v16, v16, v18"); A("v_add_f32 v17, v17, v19")
    A("v_add_f32 v16, v16, v17")
    for r in (1, 2, 4, 8): A(f"v_add_f32_dpp v16, v16, v16 row_ror:{r} row_mask:0xf bank_mask:0xf")
    for sw in ("v_permlane16_swap_b32", "v_permlane32_swap_b32"):
        A("v_mov_b32 v17, v16"); A(f"{sw} v16, v17"); A("v_add_f32 v16, v16, v17")
    A("v_cvt_pk_bf16_f32 v16, v16, v16"); A("v_lshlrev_b32 v16, 16, v16")
    A(f"v_mul_f32 v16, {0xBFB8AA3B:#x}, v16"); A("v_exp_f32 v16, v16"); A("v_add_f32 v16, 1.0, v16"); A("v_rcp_f32 v16, v16")
    A("v_cvt_pk_bf16_f32 v16, v16, v16"); A("v_lshlrev_b32 v16, 16, v16")
    A("v_sub_f32 v17, 1.0, v16"); A("v_cvt_pk_bf16_f32 v17, v17, v17"); A("v_lshlrev_b32 v17, 16, v17")
    A(f"v_mov_b32 v3, {FL+10*256}")
    A("s_mov_b64 exec, 1"); A("ds_write_b64 v3, v[16:17]"); A("s_mov_b64 exec, -1")
    flag(1)
    A("L_nogate:")
    if elim in (3, 4, 5): A("s_endpgm")
    wait_lds("v8", 1)
    A(f"v_mov_b32 v3, {FL+9*256}"); A("ds_read_b32 v15, v3")
    A("s_waitcnt lgkmcnt(0)")
    A("v_mov_b32 v21, v15"); A("v_mov_b32 v23, v15")
    A("s_mov_b32 s14, 100")
    A("s_cmp_ge_u32 s5, 56"); A("s_cbranch_scc1 L_Bnow1")
    A("s_mov_b32 s14, 132")
    wait_lds("v7", 132)
    stamp(1)
    p1_run()
    flag(2)
    A("s_cmp_lg_u32 s9, 0"); A("s_cbranch_scc1 L_Bnow1")
    wait_lds("v29", 2)
    A("s_mov_b64 exec, s[54:55]")
    A("buffer_store_dword v15, v28, s[44:47], s53 offen sc1")
    A("s_mov_b64 exec, -1")
    A("L_Bnow1:")
    stamp(2)
    def final(P, nq, nks, lpk, label):
        sh = P.bit_length() - 1
        A("v_and_b32 v2, 7, v11"); A("v_lshlrev_b32 v2, 5, v2"); A(f"v_lshl_add_u32 v24, v11, {sh}, v2"); A("v_add_u32 v24, v24, v12")
        A(f"s_mul_i32 s8, s9, {nq*32}"); A("v_xor_b32 v24, s8, v24")
        for q in range(1, nq): A(f"v_xor_b32 v{24+q}, {q*32}, v24")
        for pr in range(nq // 2):
            A(f"v_mov_b32 v{145+4*pr}, v15"); A(f"v_mov_b32 v{147+4*pr}, v15")
        fr = lambda ks, q: 64 + (ks * nq + q) * 4
        def reads(ks):
            A(f"s_add_u32 s14, s14, {lpk}")
            wait_lds("v7", "s14")
            for q in range(nq):
                A(f"ds_read_b64_tr_b16 v[{fr(ks,q)}:{fr(ks,q)+1}], v{24+q} offset:{ks*32*P}")
                A(f"ds_read_b64_tr_b16 v[{fr(ks,q)+2}:{fr(ks,q)+3}], v{24+q} offset:{ks*32*P + 16*P}")
        def mm(ks):
            for q in range(nq):
                c = "0" if ks == 0 else f"v[{128+4*q}:{131+4*q}]"
                A(f"v_mfma_f32_16x16x32_bf16 v[{128+4*q}:{131+4*q}], v[{fr(ks,q)}:{fr(ks,q)+3}], v[{32+4*ks}:{35+4*ks}], {c}")
        for ks in range(nks - 1): reads(ks)
        stamp(3)
        wait_lds("v8", 5)
        stamp(4)
        for ks in range(nks): A(f"ds_read_b128 v[{32+4*ks}:{35+4*ks}], v31 offset:{ks*64}")
        A("s_waitcnt lgkmcnt(0)")
        for ks in range(nks - 1): mm(ks)
        reads(nks - 1)
        stamp(5)
        A("s_waitcnt lgkmcnt(0)")
        mm(nks - 1)
        for q in range(nq):
            A(f"v_cvt_pk_bf16_f32 v{16+2*q}, v{128+4*q}, v{129+4*q}"); A(f"v_cvt_pk_bf16_f32 v{17+2*q}, v{130+4*q}, v{131+4*q}")
        for pr in range(nq // 2):
            d = 144 + 4*pr
            A(f"v_cndmask_b32 v{d}, v{16+4*pr}, v{18+4*pr}, s[50:51]"); A(f"v_cndmask_b32 v{d+2}, v{17+4*pr}, v{19+4*pr}, s[50:51]")
            A(f"buffer_store_dwordx4 v[{d}:{d+3}], v30, s[44:47], s56 offen offset:{pr*128} sc1")
    A("s_cmp_ge_u32 s7, 16"); A("s_cbranch_scc1 L_Bw2")
    A("s_lshl_b32 s10, s6, 2"); A("s_lshr_b32 s8, s7, 2"); A("s_add_u32 s10, s10, s8"); A("s_lshl_b32 s56, s10, 15")
    A("s_and_b32 s8, s7, 3"); A("s_lshl_b32 s8, s8, 10"); A("s_add_u32 s56, s56, s8"); A("s_lshl_b32 s8, s9, 8"); A("s_add_u32 s56, s56, s8")
    A(f"s_add_u32 s56, s56, {FP}")
    final(512, 4, 4, 16, "wo")
    A("s_branch L_Bend")
    A("L_Bw2:")
    A("s_lshl_b32 s10, s6, 1"); A("s_bfe_u32 s8, s7, 0x10003"); A("s_add_u32 s10, s10, s8"); A("s_add_u32 s10, s10, 32"); A("s_lshl_b32 s56, s10, 15")
    A("s_and_b32 s8, s7, 7"); A("s_lshl_b32 s8, s8, 9"); A("s_add_u32 s56, s56, s8"); A("s_lshl_b32 s8, s9, 7"); A("s_add_u32 s56, s56, s8")
    A(f"s_add_u32 s56, s56, {FP}")
    final(256, 2, 7, 8, "w2")
    A("L_Bend:")
    flag(3)
    stamp(6)
    dump_stamps(7)
    A("s_endpgm")
    if diag:
        A("L_ldump:")
        srd(44, 38, 0x800000)
        dump_stamps(10)
        A("s_endpgm")
    A("L_codeend:")

    body = A.render()
    out = HEADER
    out += f"; @launch grid=(256,1,1) block=(576,1,1) lds={LDS_BYTES}\n"
    out += '.amdgcn_target "amdgcn-amd-amdhsa--gfx950"\n.text\n'
    out += f".globl {NAME}\n.p2align 8\n.type {NAME},@function\n"
    out += body
    out += f""".section .rodata,"a"
.p2align 6
.amdhsa_kernel {NAME}
  .amdhsa_next_free_vgpr 168
  .amdhsa_next_free_sgpr 102
  .amdhsa_accum_offset 168
  .amdhsa_group_segment_fixed_size 0
  .amdhsa_kernarg_size 96
  .amdhsa_user_sgpr_count 2
  .amdhsa_user_sgpr_kernarg_segment_ptr 1
  .amdhsa_system_sgpr_workgroup_id_x 1
  .amdhsa_float_denorm_mode_32 3
.end_amdhsa_kernel
"""
    return out

if __name__ == "__main__":
    import json
    kw = json.loads(sys.argv[2]) if len(sys.argv) > 2 else {}
    open(sys.argv[1], "w").write(gen(**kw))
```

```python
import sys
sys.path.insert(0, "work")
from asmlib import Asm

NAME = "gated_mix__sliding_block_cached__dense_activation_relu__decode_kernel"
HEADER = open("gated_mix__sliding_block_cached__dense_activation_relu__decode.s.ref").read().split("; Override launch")[0]

XT = 0x1000
HH = 0x8000
LSE = 0x20000
QP = 0x80000
HP = 0x100000
OP = 0x180000
FP = 0x280000
FBLK = 8448
WS_USED = 0x500000
DIAG = 0x500000
R0, R1, R2, R3, M = 0x0, 0x8000, 0x10000, 0x18000, 0x20000
XS = M
QB = M + 0x1000
OB = M + 0x1A00
AC = M + 0x2C00
PB = AC
RB = AC + 0x1000
ST = M + 0x6E00
FL = M + 0x7000
LDS_BYTES = 160 * 1024
TAGK = 0x9E3779B1
SPIN_LIMIT = 400000
L2E = 0x3FB8AA3B
SCALE = 0x3DB504F3

def gen(D=(20, 20), diag=False, mimic=True, elim=0, q_start=68, lsleep=0, force_global=False, fpre=1, lrep=2, hint_sleep=0, rord=1, ackw=1, d2last=0, bwait=1, ea=99, eb=99):
    A = Asm()
    SP = [68, 70, 72, 74, 76, 78, 80, 82, 62, 100, 32, 36]
    def stamp(i):
        if diag: A(f"s_memrealtime s[{SP[i]}:{SP[i]+1}]")
    def dump_stamps(n, extra=(), final=False):
        if not diag: return
        A("s_waitcnt lgkmcnt(0)")
        A("s_mov_b64 exec, -1")
        A("v_mov_b32 v3, 0")
        for i in range(n): A(f"v_writelane_b32 v3, s{SP[i]}, {i}")
        for k, r in enumerate(extra):
            A(f"v_readfirstlane_b32 s60, {r}"); A(f"v_writelane_b32 v3, s60, {12+k}")
        A("s_lshl_b32 s60, s3, 6"); A(f"s_add_u32 s60, s60, {FL + 0xC00}"); A("v_lshl_add_u32 v2, v1, 2, s60")
        A("s_mov_b64 exec, 0xffff")
        A("ds_write_b32 v2, v3")
        if final:
            A("s_mov_b64 exec, -1")
            A("s_sleep 16")
            A("v_lshlrev_b32 v2, 4, v1"); A(f"v_add_u32 v3, {FL + 0xC00}, v2")
            A("ds_read_b128 v[16:19], v3"); A("s_waitcnt lgkmcnt(0)")
            A("s_lshl_b32 s60, s2, 10"); A(f"s_add_u32 s60, s60, {DIAG}")
            A("s_mov_b32 exec_hi, 0xf")
            A("buffer_store_dwordx4 v[16:19], v2, s[44:47], s60 offen")
    def spin_tail(L, Ld, inc=1):
        A(f"s_add_u32 s41, s41, {inc}"); A(f"s_cmp_lt_u32 s41, {SPIN_LIMIT}"); A(f"s_cbranch_scc1 {L}"); A(f"{Ld}:")
    def wait_lds(vaddr, th, vt="v2", off=0):
        L = A.lab("W"); Ld = L + "d"
        A(f"{L}:")
        A(f"ds_read_b32 {vt}, {vaddr}" + (f" offset:{off}" if off else ""))
        A("s_waitcnt lgkmcnt(0)")
        A(f"v_cmp_gt_i32 vcc, {th}, {vt}")
        A(f"s_cbranch_vccz {Ld}")
        if lsleep: A(f"s_sleep {lsleep}")
        spin_tail(L, Ld)
    def srd(d, b, size):
        A(f"s_mov_b32 s{d}, s{b}"); A(f"s_mov_b32 s{d+1}, s{b+1}"); A(f"s_mov_b32 s{d+2}, {size:#x}"); A(f"s_mov_b32 s{d+3}, 0x20000")
    WSZ = 0x800000 if diag else WS_USED

    A(f"{NAME}:")
    A("s_cmp_ge_u32 s2, 256")
    A("s_cbranch_scc1 L_exit")
    A("v_readfirstlane_b32 s3, v0")
    stamp(0)
    A("v_and_b32 v1, 63, v0")
    A("s_mov_b32 s41, 0")
    A("s_lshr_b32 s4, s2, 6")
    A("s_and_b32 s5, s2, 63")
    A("s_and_b32 s6, s2, 7")
    A("s_lshr_b32 s7, s2, 3")
    A("s_lshr_b32 s3, s3, 6")
    A("s_cbranch_scc0 L_loader")
    A("s_getpc_b64 s[54:55]")
    A("L_pc:")
    A("v_subrev_u32 v2, 64, v0"); A("v_lshlrev_b32 v2, 7, v2"); A("v_min_u32 v2, L_codeend-L_pc-4, v2")
    A("global_load_dword v160, v2, s[54:55]")
    A("v_mov_b32 v3, 0")
    A(f"v_lshlrev_b32 v9, 2, v0"); A(f"v_add_u32 v9, {FL}, v9")
    A(f"v_lshlrev_b32 v2, 2, v1"); A(f"v_add_u32 v2, {FL}, v2")
    A("ds_write_b32 v9, v3"); A("ds_write_b32 v2, v3"); A(f"ds_write_b32 v2, v3 offset:{11*256}")
    A("s_waitcnt lgkmcnt(0)")
    A("s_barrier")
    if elim == 1: A("s_endpgm")
    A("s_load_dwordx16 s[16:31], s[0:1], 0")
    A("s_load_dwordx8 s[32:39], s[0:1], 64")
    A("s_waitcnt vmcnt(0) lgkmcnt(0)")
    A("s_branch L_notloader")

    A("L_loader:")
    A("s_load_dwordx16 s[16:31], s[0:1], 0")
    A("s_load_dwordx8 s[32:39], s[0:1], 64")
    A("s_setprio 3")
    if diag: A("s_memtime s[90:91]")
    A("v_lshrrev_b32 v14, 5, v1"); A("v_and_b32 v15, 31, v1"); A("v_xor_b32 v15, v15, v14"); A("v_lshlrev_b32 v2, 11, v14"); A("v_lshl_add_u32 v4, v15, 4, v2")
    A("v_xor_b32 v17, 32, v4"); A("v_xor_b32 v18, 64, v4"); A("v_xor_b32 v19, 32, v18")
    A("v_lshrrev_b32 v13, 3, v1"); A("v_and_b32 v2, 6, v13"); A("v_and_b32 v3, 7, v1"); A("v_xor_b32 v3, v3, v2"); A("v_lshlrev_b32 v12, 4, v3")
    A("v_lshl_add_u32 v5, v13, 13, v12"); A("v_mov_b32 v6, v5"); A("v_mov_b32 v7, v5"); A("v_mov_b32 v8, v5")
    A("v_mul_u32_u24 v24, 0x1c00, v13"); A("v_add_u32 v24, v24, v12")
    A("v_lshrrev_b32 v2, 4, v1"); A("v_and_b32 v3, 15, v1"); A("v_xor_b32 v9, v3, v2"); A("v_lshlrev_b32 v9, 4, v9"); A("v_lshl_add_u32 v16, v2, 8, v9")
    A("v_lshlrev_b32 v9, 1, v2"); A("v_xor_b32 v9, v3, v9"); A("v_lshlrev_b32 v9, 4, v9"); A("v_lshl_add_u32 v20, v2, 8, v9")
    A("v_lshl_add_u32 v22, v2, 11, v9")
    A(f"v_mov_b32 v29, {FL}"); A("v_lshl_add_u32 v10, v1, 2, v29"); A("v_and_b32 v2, 3, v1"); A("v_mul_u32_u24 v2, 0x104, v2"); A("v_add_u32 v29, v2, v29")
    A("s_lshl_b32 s8, s4, 9")
    A("s_lshl_b32 s10, s5, 7"); A("s_lshl_b32 s9, s4, 21"); A("s_add_u32 s9, s9, s10")
    A(f"s_mul_i32 s42, s4, {256*7168}"); A("s_add_u32 s42, s42, s10")
    A("s_and_b32 s15, s7, 24"); A("s_add_u32 s15, s15, s6"); A("s_lshl_b32 s15, s15, 5"); A("s_and_b32 s12, s7, 7"); A("s_add_u32 s15, s15, s12")
    A("s_add_u32 s15, s15, 24"); A("s_lshl_b32 s15, s15, 15")
    A("s_lshl_b32 s14, s12, 12")
    A(f"s_mov_b32 m0, {XS}")
    A("s_movk_i32 s46, 0x4000"); A("s_mov_b32 s47, 0x20000"); A("s_mov_b32 s50, 0x800000"); A("s_mov_b32 s51, 0x20000")
    A(f"s_mov_b32 s43, {4 + 4 - D[0]}"); A("s_mov_b32 s11, 0xfc00"); A("s_mov_b32 s13, 8")
    A("s_barrier")
    A("s_waitcnt lgkmcnt(0)")
    stamp(3)
    A("s_mov_b64 s[44:45], s[16:17]"); A("s_mov_b64 s[48:49], s[22:23]")
    for i in range(4):
        A(f"buffer_load_dwordx4 v{4 if i == 0 else 16+i}, s[44:47], s8 offen offset:{i*1024} lds")
        if i < 3: A("s_addk_i32 s8, 0xc00")
    A("s_mov_b32 m0, 0")
    A("s_call_b64 s[52:53], L_loop")
    stamp(6)
    A("s_mov_b64 s[48:49], s[18:19]"); A("s_mov_b32 s50, 0x2000000"); A("s_mov_b32 s9, s15"); A("s_mov_b32 s13, 8"); A(f"s_mov_b32 s10, {R1}")
    A("v_mov_b32 v5, v16"); A("v_xor_b32 v6, 64, v16"); A("v_xor_b32 v7, 0x80, v16"); A("v_xor_b32 v8, 64, v7")
    A("s_call_b64 s[52:53], L_loopx")
    stamp(7)
    A("s_mov_b64 s[48:49], s[20:21]"); A("s_mov_b32 s9, s15"); A("s_mov_b32 s13, 8")
    A("v_mov_b32 v5, v20"); A("v_xor_b32 v6, 0x80, v20"); A("v_mov_b32 v7, v20"); A("v_mov_b32 v8, v6")
    A("s_call_b64 s[52:53], L_loopx")
    stamp(9)
    A("s_cmp_ge_u32 s5, 56"); A("s_cbranch_scc1 L_now1")
    A(f"s_mov_b32 m0, {R3}"); A("s_mov_b32 s50, 0x700000")
    A("s_mov_b64 s[48:49], s[28:29]"); A("s_mov_b32 s9, s42"); A(f"s_mov_b32 s11, {8*7168-1024}"); A("s_mov_b32 s13, 8")
    A("v_mov_b32 v5, v24"); A("v_mov_b32 v6, v24"); A("v_mov_b32 v7, v24"); A("v_mov_b32 v8, v24")
    A("s_call_b64 s[52:53], L_loop")
    A("L_now1:")
    stamp(1)
    assert D[0] <= 32
    A("s_mov_b64 s[48:49], s[24:25]"); A("s_mov_b32 s50, 0x800000")
    A("s_lshl_b32 s9, s6, 2"); A("s_lshr_b32 s10, s7, 3"); A("s_add_u32 s9, s9, s10"); A("s_lshl_b32 s9, s9, 10"); A("s_add_u32 s9, s9, s12"); A("s_lshl_b32 s9, s9, 8")
    A("s_movk_i32 s11, 0x1c00"); A("s_mov_b32 s13, 8")
    A("v_mov_b32 v5, v22"); A("v_xor_b32 v6, 0x80, v22"); A("v_mov_b32 v7, v22"); A("v_mov_b32 v8, v6")
    A("s_mov_b32 m0, 0")
    if not elim: wait_lds("v29", 2, off=256)
    L2 = 'L_loop2' if D[1] != D[0] else 'L_loop'
    if D[1] != D[0] and not d2last: A(f"s_add_i32 s43, s43, {D[0] - D[1]}")
    A(f"s_call_b64 s[52:53], {'L_loop' if d2last else L2}")
    if D[1] != D[0] and d2last: A(f"s_add_i32 s43, s43, {D[0] - D[1]}")
    A("s_mov_b64 s[48:49], s[30:31]"); A("s_mov_b32 s50, 0x700000")
    A("s_mul_i32 s9, s7, 0x380"); A("s_add_u32 s9, s9, s6"); A("s_lshl_b32 s9, s9, 8"); A("s_mov_b32 s13, 7")
    A(f"s_call_b64 s[52:53], {L2}")
    Dl = D[1]
    prev = Dl - 4
    for k in range(Dl - 4, -1, -4):
        if k % 8 != 4 and k != 0: continue
        A(f"s_waitcnt vmcnt({k})")
        if prev != k: A(f"s_add_i32 s43, s43, {prev - k}")
        prev = k
        A("v_mov_b32 v11, s43"); A("ds_write_b32 v10, v11")
    stamp(2)
    if not elim: A("s_branch L_red")
    A("L_exit:")
    A("s_endpgm")
    A("L_loopx:")
    A("s_xor_b32 m0, s10, s14"); A("s_xor_b32 s8, s9, s14")
    for u in range(4):
        A(f"s_waitcnt vmcnt({D[0]-1})")
        if u == 3:
            A("v_mov_b32 v11, s43"); A("ds_write_b32 v10, v11")
        A(f"buffer_load_dwordx4 v{5+u}, s[48:51], s8 offen offset:{u*1024} nt lds")
    A("s_addk_i32 s9, 0x1000"); A("s_addk_i32 s10, 0x1000"); A("s_add_i32 s43, s43, 4")
    A("s_sub_u32 s13, s13, 1"); A("s_cmp_lg_u32 s13, 0"); A("s_cbranch_scc1 L_loopx")
    A("s_setpc_b64 s[52:53]")
    for lab, Dd in (("L_loop", D[0]), ("L_loop2", D[1])):
        if lab == "L_loop2" and D[1] == D[0]: continue
        A(f"{lab}:")
        for u in range(4):
            A(f"s_waitcnt vmcnt({Dd-1})")
            if u == 3:
                A("v_mov_b32 v11, s43"); A("ds_write_b32 v10, v11")
            A(f"buffer_load_dwordx4 v{5+u}, s[48:51], s9 offen offset:{u*1024} nt lds")
            A("s_add_u32 s9, s9, s11")
        A("s_addk_i32 s9, 0x1000"); A("s_add_u32 m0, m0, 0x1000"); A("s_add_i32 s43, s43, 4")
        A("s_sub_u32 s13, s13, 1"); A("s_cmp_lg_u32 s13, 0"); A(f"s_cbranch_scc1 {lab}")
        A("s_setpc_b64 s[52:53]")

    def flag(stage):
        A(f"v_mov_b32 v2, {stage}"); A("ds_write_b32 v9, v2")
    def gather(loads, full="-1", tb=112, mid=None, cnt=None, tags=(1, 3)):
        N = len(loads)
        L = A.lab("G"); Ld = L + "d"; Lc = L + "c"
        for d, t in loads: A(t)
        if mid: mid()
        A(f"{Lc}:")
        if diag and cnt: A(f"v_add_u32 {cnt}, 1, {cnt}")
        A("s_waitcnt vmcnt(0)")
        for i, (d, t) in enumerate(loads):
            A(f"v_xor_b32 v{tb+i}, v{d+tags[0]}, v15")
            if len(tags) > 1: A(f"v_bitop3_b32 v{tb+i}, v{tb+i}, v{d+tags[1]}, v15 bitop3:0xf6")
        if N == 1: A(f"v_cmp_ne_u32 vcc, 0, v{tb}")
        else:
            A(f"v_or_b32 v2, v{tb}, v{tb+1}")
            for i in range(2, N, 2): A(f"v_or3_b32 v2, v2, v{tb+i}, v{tb+i+1}")
            A("v_cmp_ne_u32 vcc, 0, v2")
        A(f"s_cbranch_vccz {Ld}")
        A("s_add_u32 s41, s41, 16"); A(f"s_cmp_ge_u32 s41, {SPIN_LIMIT}"); A(f"s_cbranch_scc1 {Ld}")
        for i in range(N): A(f"v_cmp_ne_u32 s[{16+2*i}:{17+2*i}], 0, v{tb+i}")
        for i, (d, t) in enumerate(loads):
            m = 16 + 2*i
            sk = A.lab("S")
            A(f"s_mov_b64 exec, s[{m}:{m+1}]"); A(f"s_cbranch_execz {sk}"); A(t); A(f"{sk}:")
        A(f"s_mov_b64 exec, {full}")
        A(f"s_branch {Lc}")
        A(f"{Ld}:")
    def sum4(base, n, stride, out):
        for k, off in enumerate((0, 2)):
            for i in range(n):
                r = base + stride * i + off
                if i == 0:
                    A(f"v_lshlrev_b32 v{out+2*k}, 16, v{r}"); A(f"v_and_b32 v{out+2*k+1}, 0xffff0000, v{r}")
                else:
                    A(f"v_lshlrev_b32 v2, 16, v{r}"); A(f"v_and_b32 v3, 0xffff0000, v{r}")
                    A(f"v_add_f32 v{out+2*k}, v{out+2*k}, v2"); A(f"v_add_f32 v{out+2*k+1}, v{out+2*k+1}, v3")
    def unitpos(dst, u):
        A(f"v_lshrrev_b32 v2, 3, {u}"); A(f"v_lshlrev_b32 {dst}, 6, v2")
        A(f"v_and_b32 v2, 3, {u}"); A(f"v_lshl_add_u32 {dst}, v2, 4, {dst}")
        A(f"v_bfe_u32 v2, {u}, 2, 1"); A(f"v_lshl_add_u32 {dst}, v2, 3, {dst}")

    A("L_red:")
    srd(44, 38, WSZ)
    srd(64, 34, 16384)
    A(f"v_mov_b32 v3, {FL}")
    A(f"ds_read_b32 v15, v3 offset:{9*256}")
    A("v_lshlrev_b32 v28, 4, v1")
    A(f"s_mul_i32 s56, s2, {FBLK}"); A(f"s_add_u32 s56, s56, {FP}"); A("s_add_u32 s57, s56, 4096")
    if diag: A("v_mov_b32 v163, 0")
    if ea < 99 or eb < 99: A("s_branch L_redend")
    wait_lds("v3", 1, off=5*256)
    A(f"ds_read_b64 v[24:25], v3 offset:{10*256}")
    A("v_and_b32 v2, 7, v1"); A("v_lshlrev_b32 v30, 3, v2"); A("v_lshrrev_b32 v2, 4, v1"); A("v_lshl_add_u32 v30, v2, 1, v30")
    A("s_lshr_b32 s12, s7, 2"); A("s_lshl_b32 s12, s12, 11"); A("s_lshl_b32 s8, s6, 8"); A("s_add_u32 s12, s12, s8")
    A("s_and_b32 s8, s7, 3"); A("s_lshl_b32 s8, s8, 6"); A("s_add_u32 s12, s12, s8")
    def xred():
        A("v_permlane32_swap_b32 v64, v66"); A("v_permlane32_swap_b32 v65, v67")
        A("v_add_f32 v64, v64, v66"); A("v_add_f32 v65, v65, v67")
        A("v_permlane16_swap_b32 v64, v65"); A("v_add_f32 v64, v64, v65")
        A("v_add_f32_dpp v64, v64, v64 row_ror:8 row_mask:0xf bank_mask:0xf")
    def gate(out, gv):
        A("v_cvt_pk_bf16_f32 v64, v64, v64"); A("v_lshlrev_b32 v64, 16, v64")
        A(f"v_mul_f32 v64, {gv}, v64")
        A("v_cvt_pk_bf16_f32 v64, v64, v64"); A(f"v_lshlrev_b32 {out}, 16, v64")
    A(f"v_add_u32 v31, {RB}, v28")
    wait_lds("v29", 6, off=256)
    gather([(32+4*i, f"buffer_load_dwordx4 v[{32+4*i}:{35+4*i}], v28, s[44:47], s56 offen offset:{i*1024} sc1") for i in range(4)], cnt="v163")
    sum4(32, 4, 4, 64)
    xred()
    gate("v26", "v24")
    stamp(4)
    wait_lds("v29", 7, off=256)
    A("ds_read_b128 v[64:67], v31"); A("s_waitcnt lgkmcnt(0)")
    A("v_add_f32 v64, v64, v65"); A("v_add_f32 v66, v66, v67"); A("v_add_f32 v64, v64, v66")
    gate("v27", "v25")
    A("v_add_f32 v26, v26, v27"); A("v_cvt_pk_bf16_f32 v26, v26, v26")
    A("s_mov_b32 exec_lo, 0x00ff00ff"); A("s_mov_b32 exec_hi, 0x00ff00ff")
    A("buffer_store_short v26, v30, s[64:67], s12 offen")
    A("s_cmp_lg_u32 s2, 0"); A("s_cbranch_scc1 L_redend")
    A("s_mov_b64 exec, 1")
    A("v_mov_b32 v2, 0")
    A("buffer_store_dword v15, v2, s[44:47], 0 offen sc1")
    A("L_redend:")
    stamp(5)
    if diag:
        A("s_memtime s[92:93]"); A("s_waitcnt lgkmcnt(0)"); A("s_sub_u32 s92, s92, s90"); A("s_mov_b64 exec, -1"); A("v_mov_b32 v164, s92")
    dump_stamps(10, ["v163", "v164"], final=True)
    A("s_endpgm")

    A("L_notloader:")
    srd(44, 38, WSZ)
    A("v_and_b32 v4, 15, v1"); A("v_lshrrev_b32 v5, 4, v1"); A("v_and_b32 v6, 7, v1")
    A(f"v_mov_b32 v7, {FL}")
    A("v_and_b32 v2, 3, v1"); A("v_mul_u32_u24 v2, 0x104, v2"); A(f"v_add_u32 v8, {FL+256}, v2")
    A("v_lshrrev_b32 v2, 1, v5"); A("v_xor_b32 v2, v2, v6"); A("v_lshlrev_b32 v2, 4, v2"); A("v_lshl_add_u32 v10, v6, 9, v2")
    A("v_and_b32 v2, 1, v5"); A("v_lshl_add_u32 v10, v2, 3, v10"); A(f"v_add_u32 v10, {XS}, v10")
    A("v_lshrrev_b32 v11, 2, v1")
    A("v_and_b32 v12, 3, v1"); A("v_lshlrev_b32 v12, 3, v12")
    A("s_mov_b32 s48, 0x00ff00ff"); A("s_mov_b32 s49, 0x00ff00ff")
    A("s_mov_b32 s50, 0xff00ff00"); A("s_mov_b32 s51, 0xff00ff00")
    A("s_sub_u32 s9, s3, 1"); A("s_and_b32 s9, s9, 3")
    A("v_lshrrev_b32 v2, 1, v11"); A("v_and_b32 v2, 3, v2"); A("v_xor_b32 v2, s9, v2"); A("v_lshlrev_b32 v2, 5, v2")
    A("v_lshl_add_u32 v13, v11, 7, v2"); A("v_add_u32 v13, v13, v12")
    A("v_lshlrev_b32 v14, 14, v6"); A("v_lshl_add_u32 v14, v5, 4, v14")
    A("s_lshl_b32 s52, s4, 17"); A("s_lshl_b32 s8, s5, 8"); A("s_add_u32 s52, s52, s8"); A("s_lshl_b32 s8, s9, 6"); A("s_add_u32 s52, s52, s8")
    A("v_and_b32 v2, 7, v11"); A("v_lshlrev_b32 v2, 5, v2"); A("v_lshl_add_u32 v28, v11, 8, v2"); A("v_add_u32 v28, v28, v12")
    A("s_lshl_b32 s8, s9, 6"); A("v_xor_b32 v150, s8, v28"); A("v_xor_b32 v151, 32, v150")
    A("v_mul_u32_u24 v152, 544, v6"); A("v_lshl_add_u32 v152, v5, 4, v152"); A(f"v_add_u32 v152, {OB}, v152")
    A(f"v_mul_u32_u24 v153, {32*FBLK}, v6"); A("v_lshl_add_u32 v153, v5, 4, v153"); A("v_lshrrev_b32 v2, 3, v4"); A("v_lshl_add_u32 v153, v2, 6, v153")
    A("s_lshl_b32 s66, s9, 3"); A("s_add_u32 s66, s66, s6"); A(f"s_mul_i32 s66, s66, {FBLK}"); A("s_lshl_b32 s8, s7, 7"); A("s_add_u32 s66, s66, s8")
    A(f"s_add_u32 s66, s66, {FP}")
    A("v_and_b32 v3, 31, v1"); unitpos("v154", "v3")
    A("v_lshrrev_b32 v2, 5, v1"); A("v_mul_u32_u24 v2, 544, v2"); A("v_add_u32 v154, v154, v2")
    A("s_mul_i32 s8, s9, 1088"); A(f"s_add_u32 s8, s8, {OB}"); A("v_add_u32 v154, s8, v154")
    A("s_cmp_ge_u32 s5, 56"); A("s_cselect_b32 s67, 100, 64"); A("s_cselect_b32 s8, 0, 68"); A("s_add_u32 s67, s67, s8")
    if diag:
        A("v_mov_b32 v161, 0"); A("v_mov_b32 v162, 0"); A("v_mov_b32 v163, 0")
    A("s_cmp_ge_u32 s3, 5"); A("s_cbranch_scc1 L_B")

    def p1_run():
        for ks in range(8):
            A(f"ds_read_b64_tr_b16 v[{64+4*ks}:{65+4*ks}], v13 offset:{ks*4096}")
            A(f"ds_read_b64_tr_b16 v[{66+4*ks}:{67+4*ks}], v13 offset:{ks*4096 + 2048}")
        for ks in range(8):
            A(f"s_waitcnt lgkmcnt({min(15, 14 - 2*ks)})")
            c = "0" if ks == 0 else "v[16:19]"
            A(f"v_mfma_f32_16x16x32_bf16 v[16:19], v[{64+4*ks}:{67+4*ks}], v[{32+4*ks}:{35+4*ks}], {c}")
        A("v_cvt_pk_bf16_f32 v20, v16, v17"); A("v_cvt_pk_bf16_f32 v22, v18, v19")
        A("s_mov_b64 exec, s[48:49]")
        A("buffer_store_dwordx4 v[20:23], v14, s[44:47], s52 offen sc1")
        A("s_mov_b64 exec, -1")
    def xfrags():
        wait_lds("v7", 4)
        for var in range(4):
            if var: A(f"v_xor_b32 v3, {var*32}, v10")
            for kk in range(4):
                ks = kk*2 + (var >> 1); hh = var & 1
                A(f"ds_read_b64 v[{32+4*ks+2*hh}:{33+4*ks+2*hh}], {'v3' if var else 'v10'} offset:{kk*128}")
    def get_mode():
        wait_lds("v7", 1, off=11*256)
        A("v_readfirstlane_b32 s53, v2")
        A("v_mov_b32 v157, v15"); A("v_mov_b32 v159, v15")
    def publish_final(acc, glob=False):
        A(f"v_cvt_pk_bf16_f32 v16, v{acc}, v{acc+1}"); A(f"v_cvt_pk_bf16_f32 v17, v{acc+2}, v{acc+3}")
        A(f"v_cvt_pk_bf16_f32 v18, v{acc+4}, v{acc+5}"); A(f"v_cvt_pk_bf16_f32 v19, v{acc+6}, v{acc+7}")
        A("v_cndmask_b32 v156, v16, v18, s[50:51]"); A("v_cndmask_b32 v158, v17, v19, s[50:51]")
        if glob:
            A("buffer_store_dwordx4 v[156:159], v153, s[44:47], s66 offen sc1"); return
        Lg = A.lab("F"); Le = Lg + "e"
        A("s_cmp_eq_u32 s53, 2"); A(f"s_cbranch_scc0 {Lg}")
        A("buffer_store_dwordx4 v[156:159], v153, s[44:47], s66 offen")
        A(f"s_branch {Le}")
        A(f"{Lg}:")
        A("buffer_store_dwordx4 v[156:159], v153, s[44:47], s66 offen sc1")
        A(f"{Le}:")

    A("s_load_dword s40, s[38:39], 0")
    A(f"s_add_u32 s52, s52, {QP}")
    A("s_and_b32 s10, s7, 24"); A("s_add_u32 s10, s10, s6")
    A("s_lshr_b32 s11, s10, 2")
    A("s_and_b32 s12, s10, 3")
    A("s_and_b32 s13, s7, 7")
    A("v_xor_b32 v2, v5, v4"); A("v_lshlrev_b32 v2, 4, v2"); A("v_lshl_add_u32 v24, v4, 8, v2")
    A("s_lshl_b32 s8, s9, 13"); A(f"s_add_u32 s8, s8, {R1}"); A("v_add_u32 v24, s8, v24")
    A("v_xor_b32 v25, 64, v24"); A("v_xor_b32 v26, 0x80, v24"); A("v_xor_b32 v27, 0xc0, v24")
    A(f"v_add_u32 v148, {R2}, v150"); A(f"v_add_u32 v149, {R2}, v151")
    A("s_lshr_b32 s14, s13, 1"); A("s_xor_b32 s14, s14, s9"); A("s_lshl_b32 s14, s14, 3"); A("s_add_u32 s14, s14, 44")
    A("v_lshlrev_b32 v29, 4, v1")
    A("s_lshl_b32 s56, s11, 14"); A("s_lshl_b32 s8, s12, 12"); A("s_add_u32 s56, s56, s8"); A("s_lshl_b32 s8, s9, 10"); A("s_add_u32 s56, s56, s8")
    A(f"s_add_u32 s56, s56, {QP}"); A("s_add_u32 s57, s56, 0x20000"); A("s_add_u32 s58, s56, 0x40000"); A("s_add_u32 s59, s56, 0x60000")
    A("v_lshrrev_b32 v2, 5, v1"); A("v_mul_u32_u24 v2, 288, v2"); A("v_and_b32 v3, 31, v1"); A("v_lshl_add_u32 v30, v3, 3, v2")
    A("s_mul_i32 s8, s9, 576"); A(f"s_add_u32 s8, s8, {QB}"); A("v_add_u32 v30, s8, v30")
    A("v_mul_u32_u24 v31, 288, v6"); A("v_lshl_add_u32 v31, v5, 4, v31"); A(f"v_add_u32 v31, {QB}, v31")
    A(f"v_add_u32 v106, {PB}, v29"); A("s_lshl_b32 s8, s9, 10"); A("v_add_u32 v104, s8, v106")
    A("v_lshlrev_b32 v107, 5, v6"); A(f"v_add_u32 v107, {ST}, v107"); A("s_lshl_b32 s8, s9, 2"); A("v_add_u32 v105, s8, v107")
    A("v_lshrrev_b32 v2, 3, v4")
    A("v_lshlrev_b32 v108, 15, v6"); A("v_lshl_add_u32 v108, v5, 4, v108"); A("v_lshl_add_u32 v108, v2, 6, v108")
    A("v_lshl_add_u32 v2, v5, 1, v2"); A("v_lshlrev_b32 v109, 12, v6"); A("v_lshl_add_u32 v109, v2, 9, v109")
    lm = {1: 0x3, 2: 0x303, 4: 0x03030303, 8: 0x03030303}[lrep]
    A("s_lshl_b32 s8, s9, 1"); A(f"s_lshl_b32 s42, {lm:#x}, s8"); A("s_mov_b32 s43, " + ("s42" if lrep == 8 else "0"))
    A("s_lshl_b32 s60, s12, 18"); A("s_lshl_b32 s8, s11, 12"); A("s_add_u32 s60, s60, s8"); A("s_lshl_b32 s8, s13, 9"); A("s_add_u32 s60, s60, s8")
    A("s_lshl_b32 s8, s9, 7"); A("s_add_u32 s60, s60, s8"); A(f"s_add_u32 s60, s60, {OP}")
    A("s_lshl_b32 s61, s12, 15"); A("s_lshl_b32 s8, s11, 6"); A("s_add_u32 s61, s61, s8"); A("s_lshl_b32 s8, s13, 3"); A("s_add_u32 s61, s61, s8")
    A(f"s_add_u32 s61, s61, {LSE}")
    A(f"s_mov_b32 s64, {SCALE:#x}"); A(f"s_mov_b32 s65, {L2E:#x}")
    A("s_lshl_b32 s8, s6, 5"); A("s_add_u32 s8, s8, s7"); A("s_lshr_b32 s53, s8, 3"); A(f"s_and_b32 s8, s8, {0xf8 | (lrep-1)}"); A("s_lshl_b32 s8, s8, 9"); A("s_lshl_b32 s54, s9, 7"); A("s_add_u32 s8, s8, s54"); A(f"s_add_u32 s8, s8, {LSE}")
    A("s_lshl_b32 s66, s9, 3"); A("s_add_u32 s66, s66, s13"); A(f"s_mul_i32 s66, s66, {FBLK}"); A("s_lshl_b32 s10, s53, 7"); A("s_add_u32 s66, s66, s10"); A(f"s_add_u32 s66, s66, {FP}")
    A("s_add_u32 s54, s38, s8"); A("s_addc_u32 s55, s39, 0")
    xfrags()
    A(f"s_add_u32 s40, s40, {TAGK:#x}")
    A("v_mov_b32 v15, s40"); A("v_mov_b32 v21, s40"); A("v_mov_b32 v23, s40")
    A(f"v_mov_b32 v3, {FL + 9*256}"); A("v_lshl_add_u32 v3, v1, 2, v3"); A("ds_write_b32 v3, v15")
    A("s_cmp_lg_u32 s9, 0"); A("s_cbranch_scc1 L_noxt")
    A("s_getreg_b32 s8, hwreg(HW_REG_XCC_ID, 0, 4)")
    A("v_mov_b32 v20, s8")
    A("s_lshl_b32 s8, s6, 5"); A("s_add_u32 s8, s8, s7"); A("s_lshl_b32 s8, s8, 3"); A(f"s_add_u32 s8, s8, {XT}")
    A("v_mov_b32 v2, 0"); A("s_mov_b64 exec, 1")
    A("buffer_store_dwordx2 v[20:21], v2, s[44:47], s8 offen sc1")
    A("s_mov_b64 exec, -1")
    A("L_noxt:")
    wait_lds("v7", 36)
    stamp(1)
    p1_run()
    flag(1)
    stamp(2)
    wait_lds("v7", "s14")
    for t in range(2):
        for s in range(4):
            A(f"ds_read_b128 v[{32+16*t+4*s}:{35+16*t+4*s}], v{24+s} offset:{t*4096}")
    A("s_waitcnt lgkmcnt(0)")
    flag(2)
    A("v_mov_b32 v157, v15"); A("v_mov_b32 v159, v15"); A("v_mov_b32 v111, v15")
    if ea == 0: A("s_endpgm")
    wait_lds("v7", q_start)
    stamp(3)
    gather([(64+4*sp, f"buffer_load_dwordx4 v[{64+4*sp}:{67+4*sp}], v29, s[44:47], s{56+sp} offen sc1") for sp in range(4)], cnt="v161")
    stamp(4)
    sum4(64, 4, 4, 16)
    A("v_cvt_pk_bf16_f32 v20, v16, v17"); A("v_cvt_pk_bf16_f32 v21, v18, v19")
    A("ds_write_b64 v30, v[20:21]")
    flag(3)
    wait_lds("v8", 3)
    A("ds_read_b32 v28, v7")
    for s in range(4):
        A(f"ds_read_b128 v[{64+4*s}:{67+4*s}], v31 offset:{s*64}")
    for s in range(4):
        A(f"s_waitcnt lgkmcnt({3-s})")
        for t in range(2):
            c = "0" if s == 0 else f"v[{16+4*t}:{19+4*t}]"
            A(f"v_mfma_f32_16x16x32_bf16 v[{16+4*t}:{19+4*t}], v[{32+16*t+4*s}:{35+16*t+4*s}], v[{64+4*s}:{67+4*s}], {c}")
    def vreads():
        for w in range(4):
            for q in range(2):
                f = 112 + (w*2 + q)*4
                A(f"ds_read_b64_tr_b16 v[{f}:{f+1}], v{148+q} offset:{w*8192}")
                A(f"ds_read_b64_tr_b16 v[{f+2}:{f+3}], v{148+q} offset:{w*8192 + 4096}")
    A("v_readfirstlane_b32 s15, v28")
    A("s_cmp_lt_i32 s15, 100"); A("s_cbranch_scc1 L_vlate")
    vreads()
    A("L_vlate:")
    A("s_nop 4")
    if mimic:
        for i in range(4):
            a, b = 16 + 2*i, 17 + 2*i
            A(f"v_cvt_pk_bf16_f32 v2, v{a}, v{b}")
            A(f"v_lshlrev_b32 v{a}, 16, v2"); A(f"v_and_b32 v{b}, 0xffff0000, v2")
            A(f"v_mul_f32 v{a}, s64, v{a}"); A(f"v_mul_f32 v{b}, s64, v{b}")
            A(f"v_cvt_pk_bf16_f32 v2, v{a}, v{b}")
            A(f"v_lshlrev_b32 v{a}, 16, v2"); A(f"v_and_b32 v{b}, 0xffff0000, v2")
    else:
        for i in range(8): A(f"v_mul_f32 v{16+i}, s64, v{16+i}")
    A("v_max3_f32 v2, v16, v17, v18"); A("v_max3_f32 v3, v19, v20, v21"); A("v_max3_f32 v2, v2, v22, v23"); A("v_max_f32 v2, v2, v3")
    A("v_mov_b32 v3, v2"); A("v_permlane16_swap_b32 v2, v3"); A("v_max_f32 v2, v2, v3")
    A("v_mov_b32 v3, v2"); A("v_permlane32_swap_b32 v2, v3"); A("v_max_f32 v2, v2, v3")
    A("v_mul_f32 v96, s65, v2")
    for i in range(8): A(f"v_fma_f32 v{16+i}, v{16+i}, s65, -v96")
    for i in range(8): A(f"v_exp_f32 v{16+i}, v{16+i}")
    for i in range(4): A(f"v_cvt_pk_bf16_f32 v{100+i}, v{16+2*i}, v{17+2*i}")
    A("ds_write_b128 v104, v[100:103]")
    A("v_add_f32 v2, v16, v17"); A("v_add_f32 v3, v18, v19"); A("v_add_f32 v2, v2, v20"); A("v_add_f32 v3, v3, v21")
    A("v_add_f32 v2, v2, v22"); A("v_add_f32 v3, v3, v23"); A("v_add_f32 v97, v2, v3")
    A("v_mov_b32 v3, v97"); A("v_permlane16_swap_b32 v97, v3"); A("v_add_f32 v97, v97, v3")
    A("v_mov_b32 v3, v97"); A("v_permlane32_swap_b32 v97, v3"); A("v_add_f32 v97, v97, v3")
    A("s_mov_b64 exec, 0xff")
    A("ds_write2_b32 v105, v96, v97 offset0:0 offset1:4")
    A("s_mov_b64 exec, -1")
    flag(4)
    stamp(5)
    A("s_cmp_ge_i32 s15, 100"); A("s_cbranch_scc1 L_vdone")
    wait_lds("v7", 100)
    vreads()
    A("L_vdone:")
    wait_lds("v8", 4)
    for w in range(4): A(f"ds_read_b128 v[{64+4*w}:{67+4*w}], v106 offset:{w*1024}")
    A("ds_read_b128 v[16:19], v107"); A("ds_read_b128 v[20:23], v107 offset:16")
    for w in range(4):
        A(f"s_waitcnt lgkmcnt({5-w})")
        for q in range(2):
            f = 112 + (w*2 + q)*4; d = 32 + (w*2 + q)*4
            A(f"v_mfma_f32_16x16x32_bf16 v[{d}:{d+3}], v[{f}:{f+3}], v[{64+4*w}:{67+4*w}], 0")
    A("s_waitcnt lgkmcnt(0)")
    A("v_max3_f32 v2, v16, v17, v18"); A("v_max_f32 v2, v2, v19")
    for i in range(4): A(f"v_sub_f32 v{16+i}, v{16+i}, v2")
    for i in range(4): A(f"v_exp_f32 v{16+i}, v{16+i}")
    A("v_mul_f32 v3, v16, v20")
    for i in range(1, 4): A(f"v_fmac_f32 v3, v{16+i}, v{20+i}")
    A("v_rcp_f32 v20, v3"); A("v_log_f32 v21, v3")
    for i in range(4): A(f"v_mul_f32 v{16+i}, v{16+i}, v20")
    A("v_add_f32 v110, v2, v21")
    for k in range(8): A(f"v_mul_f32 v{80+k}, v16, v{32+k}")
    for w in range(1, 4):
        for k in range(8): A(f"v_fmac_f32 v{80+k}, v{16+w}, v{32+8*w+k}")
    A("v_cvt_pk_bf16_f32 v16, v80, v81"); A("v_cvt_pk_bf16_f32 v17, v82, v83"); A("v_cvt_pk_bf16_f32 v18, v84, v85"); A("v_cvt_pk_bf16_f32 v19, v86, v87")
    A("v_cndmask_b32 v156, v16, v18, s[50:51]"); A("v_cndmask_b32 v158, v17, v19, s[50:51]")
    A("buffer_store_dwordx4 v[156:159], v108, s[44:47], s60 offen sc1")
    A("s_mov_b64 exec, s[42:43]")
    A("buffer_store_dwordx2 v[110:111], v109, s[44:47], s61 offen sc1")
    A("s_mov_b64 exec, -1")
    stamp(6)
    if ea == 3: A("s_endpgm")
    A("s_lshl_b32 s56, s53, 15"); A("s_lshl_b32 s8, s9, 13"); A("s_add_u32 s56, s56, s8")
    A(f"s_add_u32 s56, s56, {OP}"); A("s_add_u32 s57, s56, 4096")
    A("s_add_u32 s14, s67, 32")
    L = A.lab("P"); Ld = L + "d"; Lr = L + "r"
    A(f"{L}:")
    A("s_load_dwordx16 s[16:31], s[54:55], 0 glc")
    A("s_load_dwordx16 s[84:99], s[54:55], 64 glc")
    A("s_waitcnt lgkmcnt(0)")
    for base in (16, 84):
        for i in range(8):
            A(f"s_cmp_eq_u32 s{base+2*i+1}, s40"); A(f"s_cbranch_scc0 {Lr}")
    A(f"s_branch {Ld}")
    A(f"{Lr}:")
    if hint_sleep: A(f"s_sleep {hint_sleep}")
    spin_tail(L, Ld, 16)
    stamp(7)
    if ea == 4: A("s_endpgm")
    def weights():
        for bb, base in enumerate((16, 84)):
            for i in range(4): A(f"v_mov_b32 v{16+4*bb+i}, s{base+4*i}")
        A("s_mov_b32 exec_lo, 0")
        for bb, base in enumerate((16, 84)):
            for i in range(4): A(f"v_mov_b32 v{16+4*bb+i}, s{base+4*i+2}")
        A("s_mov_b64 exec, -1")
        for bb in range(2):
            o = 16 + 4*bb
            A(f"v_max3_f32 v2, v{o}, v{o+1}, v{o+2}"); A(f"v_max_f32 v2, v2, v{o+3}")
            A("v_mov_b32 v3, v2"); A("v_permlane32_swap_b32 v2, v3"); A("v_max_f32 v2, v2, v3")
            for i in range(4): A(f"v_sub_f32 v{o+i}, v{o+i}, v2")
            for i in range(4): A(f"v_exp_f32 v{o+i}, v{o+i}")
            A(f"v_add_f32 v2, v{o}, v{o+1}"); A(f"v_add_f32 v3, v{o+2}, v{o+3}"); A("v_add_f32 v2, v2, v3")
            A("v_mov_b32 v3, v2"); A("v_permlane32_swap_b32 v2, v3"); A("v_add_f32 v2, v2, v3")
            A("v_rcp_f32 v2, v2")
            for i in range(4): A(f"v_mul_f32 v{o+i}, v{o+i}, v2")
        wait_lds("v7", "s14")
        for ks in range(4):
            for q in range(2):
                f = 64 + (ks*2 + q)*4
                A(f"ds_read_b64_tr_b16 v[{f}:{f+1}], v{150+q} offset:{R0 + ks*8192}")
                A(f"ds_read_b64_tr_b16 v[{f+2}:{f+3}], v{150+q} offset:{R0 + ks*8192 + 4096}")
    gather([(32+16*bb+4*i, f"buffer_load_dwordx4 v[{32+16*bb+4*i}:{35+16*bb+4*i}], v29, s[44:47], s{56+bb} offen offset:{i*1024} sc1") for bb in range(2) for i in range(4)], mid=weights, cnt="v162")
    for bb in range(2):
        for k, off in enumerate((0, 2)):
            for i in range(4):
                r = 32 + 16*bb + 4*i + off; w = 16 + 4*bb + i; o = 24 + 0 + 0
                o = 96 + 4*bb + 2*k
                A(f"v_lshlrev_b32 v2, 16, v{r}"); A(f"v_and_b32 v3, 0xffff0000, v{r}")
                if i == 0:
                    A(f"v_mul_f32 v{o}, v{w}, v2"); A(f"v_mul_f32 v{o+1}, v{w}, v3")
                else:
                    A(f"v_fmac_f32 v{o}, v{w}, v2"); A(f"v_fmac_f32 v{o+1}, v{w}, v3")
    for k in range(4): A(f"v_permlane32_swap_b32 v{96+k}, v{100+k}")
    for k in range(4): A(f"v_add_f32 v{96+k}, v{96+k}, v{100+k}")
    A("v_cvt_pk_bf16_f32 v20, v96, v97"); A("v_cvt_pk_bf16_f32 v21, v98, v99")
    A("ds_write_b64 v154, v[20:21]")
    if ea == 5: A("s_endpgm")
    flag(5)
    stamp(8)
    wait_lds("v8", 5)
    stamp(9)
    for ks in range(4): A(f"ds_read_b128 v[{32+4*ks}:{35+4*ks}], v152 offset:{ks*64}")
    for ks in range(4):
        A(f"s_waitcnt lgkmcnt({3-ks})")
        for q in range(2):
            f = 64 + (ks*2 + q)*4
            c = "0" if ks == 0 else f"v[{128+4*q}:{131+4*q}]"
            A(f"v_mfma_f32_16x16x32_bf16 v[{128+4*q}:{131+4*q}], v[{f}:{f+3}], v[{32+4*ks}:{35+4*ks}], {c}")
    publish_final(128, True)
    stamp(10)
    A(f"s_mul_i32 s56, s2, {FBLK}"); A("s_lshl_b32 s8, s9, 10"); A("s_add_u32 s56, s56, s8"); A(f"s_add_u32 s56, s56, {FP + 4096}")
    A("s_lshl_b32 s8, s9, 2"); A(f"s_add_u32 s8, s8, {RB}"); A("v_add_u32 v30, s8, v29")
    if ackw: A("s_waitcnt vmcnt(0)")
    flag(6)
    A("s_add_u32 s14, s67, 60")
    if bwait: wait_lds("v7", "s14")
    gather([(32, "buffer_load_dwordx4 v[32:35], v29, s[44:47], s56 offen sc1")])
    sum4(32, 1, 4, 64)
    xred()
    A("ds_write_b32 v30, v64")
    flag(7)
    stamp(11)
    dump_stamps(12, ["v161", "v162"])
    A("s_endpgm")

    A("L_B:")
    A(f"s_add_u32 s52, s52, {HP}")
    A(f"v_add_u32 v13, {R3}, v13")
    A("s_add_u32 s66, s66, 4096")
    A("s_cmp_lg_u32 s9, 0"); A("s_cbranch_scc1 L_nogate0")
    A("s_and_b32 s8, s7, 15"); A("s_lshl_b32 s8, s8, 7"); A("s_load_dword s88, s[32:33], s8")
    A("L_nogate0:")
    A("s_mul_i32 s10, s5, 37"); A("s_lshr_b32 s10, s10, 8")
    A("s_mul_i32 s8, s10, 7"); A("s_sub_u32 s11, s5, s8")
    A("s_lshr_b32 s12, s11, 1")
    A("s_and_b32 s13, s11, 1"); A("s_min_u32 s8, s12, 1"); A("s_add_u32 s13, s13, s8")
    A("s_lshl_b32 s53, s10, 2"); A("s_add_u32 s53, s53, s12"); A("s_lshl_b32 s53, s53, 10")
    A("s_lshl_b32 s13, s13, 4"); A("s_lshl_b32 s8, s4, 2"); A("s_add_u32 s53, s53, s8"); A(f"s_add_u32 s53, s53, {HH}")
    A("v_lshrrev_b32 v2, 3, v1"); A("v_xor_b32 v2, 1, v2"); A("v_mul_u32_u24 v2, s13, v2"); A("v_lshl_add_u32 v24, v1, 7, v2")
    A("s_bitcmp1_b32 s11, 0"); A("s_mov_b32 s60, 0xff"); A("s_cselect_b32 s60, 0xffff, s60"); A("s_mov_b32 s61, 0")
    A("s_lshl_b32 s8, s2, 7"); A(f"s_add_u32 s8, s8, {HH}"); A("s_add_u32 s54, s38, s8"); A("s_addc_u32 s55, s39, 0")
    A("v_lshrrev_b32 v2, 5, v1"); A("v_lshlrev_b32 v2, 14, v2"); A("v_and_b32 v3, 31, v1"); A("v_lshl_add_u32 v29, v3, 4, v2")
    A("s_mul_i32 s56, s7, 448"); A("s_lshl_b32 s8, s9, 15"); A("s_add_u32 s56, s56, s8"); A(f"s_add_u32 s56, s56, {HP}")
    A("s_add_u32 s57, s56, 0x20000"); A("s_add_u32 s58, s56, 0x40000"); A("s_add_u32 s59, s56, 0x60000")
    A("s_mov_b32 s64, 0x0fffffff"); A("s_mov_b32 s65, 0x0fffffff")
    xfrags()
    A("s_cmp_lg_u32 s9, 0"); A("s_cbranch_scc1 L_nogate")
    wait_lds("v7", 40)
    srd(92, 16, 16384)
    srd(84, 32, 2048)
    A("s_lshr_b32 s10, s7, 2"); A("s_lshl_b32 s10, s10, 11")
    A("v_lshlrev_b32 v2, 5, v1")
    A("buffer_load_dwordx4 v[96:99], v2, s[92:95], s10 offen"); A("buffer_load_dwordx4 v[100:103], v2, s[92:95], s10 offen offset:16")
    A("buffer_load_dwordx4 v[104:107], v2, s[84:87], 0 offen"); A("buffer_load_dwordx4 v[108:111], v2, s[84:87], 0 offen offset:16")
    A("s_waitcnt vmcnt(0)")
    A("v_mov_b32 v16, 0"); A("v_mov_b32 v17, 0")
    for i in range(8):
        x, gw = 96 + i, 104 + i
        A(f"v_lshlrev_b32 v18, 16, v{x}"); A(f"v_and_b32 v19, 0xffff0000, v{x}")
        A(f"v_lshlrev_b32 v20, 16, v{gw}"); A(f"v_and_b32 v21, 0xffff0000, v{gw}")
        A("v_mul_f32 v18, v18, v20"); A("v_mul_f32 v19, v19, v21")
        A("v_cvt_pk_bf16_f32 v18, v18, v19")
        A("v_and_b32 v19, 0xffff0000, v18"); A("v_lshlrev_b32 v18, 16, v18")
        A("v_add_f32 v16, v16, v18"); A("v_add_f32 v17, v17, v19")
    A("v_add_f32 v16, v16, v17")
    for r in (1, 2, 4, 8): A(f"v_add_f32_dpp v16, v16, v16 row_ror:{r} row_mask:0xf bank_mask:0xf")
    for sw in ("v_permlane16_swap_b32", "v_permlane32_swap_b32"):
        A("v_mov_b32 v17, v16"); A(f"{sw} v16, v17"); A("v_add_f32 v16, v16, v17")
    A("v_cvt_pk_bf16_f32 v16, v16, v16"); A("v_lshlrev_b32 v16, 16, v16")
    A(f"v_mul_f32 v16, {0xBFB8AA3B:#x}, v16"); A("v_exp_f32 v16, v16"); A("v_add_f32 v16, 1.0, v16"); A("v_rcp_f32 v16, v16")
    A("v_cvt_pk_bf16_f32 v16, v16, v16"); A("v_lshlrev_b32 v16, 16, v16")
    A("v_sub_f32 v17, 1.0, v16"); A("v_cvt_pk_bf16_f32 v17, v17, v17"); A("v_lshlrev_b32 v17, 16, v17")
    A(f"v_mov_b32 v3, {FL+10*256}")
    A("s_mov_b64 exec, 1"); A("ds_write_b64 v3, v[16:17]"); A("s_mov_b64 exec, -1")
    flag(1)
    A("L_nogate:")
    wait_lds("v8", 1)
    A(f"ds_read_b32 v15, v7 offset:{9*256}")
    A("s_waitcnt lgkmcnt(0)")
    A("v_readfirstlane_b32 s42, v15")
    A("v_mov_b32 v21, v15"); A("v_mov_b32 v23, v15")
    A("s_mov_b32 s43, s42")
    if eb == 0: A("s_endpgm")
    A("s_cmp_lg_u32 s9, 1"); A("s_cbranch_scc1 L_nomode")
    wait_lds("v7", 56)
    A("s_lshl_b32 s8, s6, 8"); A(f"s_add_u32 s8, s8, {XT}")
    A("v_and_b32 v3, 31, v1"); A("v_lshlrev_b32 v25, 3, v3")
    gather([(96, "buffer_load_dwordx2 v[96:97], v25, s[44:47], s8 offen sc1")], tags=(1,))
    A("s_getreg_b32 s8, hwreg(HW_REG_XCC_ID, 0, 4)")
    A("v_xor_b32 v3, s8, v96"); A("v_or_b32 v3, v3, v112")
    A("v_cmp_ne_u32 vcc, 0, v3")
    A("s_cmp_eq_u64 vcc, 0"); A(f"s_cselect_b32 s8, {1 if force_global else 2}, 1")
    A("v_mov_b32 v3, s8"); A(f"v_lshl_add_u32 v2, v1, 2, v7"); A(f"ds_write_b32 v2, v3 offset:{11*256}")
    A("L_nomode:")
    if fpre in (1, 3):
        A("s_cmp_lg_u32 s9, 2"); A("s_cbranch_scc1 L_nofpre")
        wait_lds("v7", 100)
        A(f"s_mul_i32 s8, s2, {FBLK}"); A(f"s_add_u32 s8, s8, {FP}"); A("v_lshlrev_b32 v2, 7, v1")
        if fpre == 3: A("s_mov_b32 exec_lo, 0")
        A("buffer_load_dword v160, v2, s[44:47], s8 offen")
        A("s_mov_b64 exec, -1")
        A("L_nofpre:")
    if fpre == 2:
        wait_lds("v7", 1, off=11*256)
        A("v_readfirstlane_b32 s63, v2")
        for k in range(4): A(f"v_xor_b32 v{156+k}, 1, v15")
        A("s_cmp_eq_u32 s63, 2"); A("s_cbranch_scc0 L_nofpre")
        A("buffer_store_dwordx4 v[156:159], v153, s[44:47], s66 offen")
        A("L_nofpre:")
    if eb == 1: A("s_endpgm")
    A("s_cmp_ge_u32 s5, 56"); A("s_cbranch_scc1 L_Bnow1")
    wait_lds("v7", 132)
    stamp(1)
    p1_run()
    flag(2)
    A("s_cmp_lg_u32 s9, 0"); A("s_cbranch_scc1 L_Bnow1")
    wait_lds("v8", 2, off=1024)
    A("s_mov_b64 exec, s[60:61]")
    A("buffer_store_dword v15, v24, s[44:47], s53 offen sc1")
    A("s_mov_b64 exec, -1")
    A("L_Bnow1:")
    stamp(2)
    if eb == 2: A("s_endpgm")
    get_mode()
    wait_lds("v7", 124)
    A("s_add_u32 s8, s7, 1"); A("s_and_b32 s62, s8, 2")
    L = A.lab("P"); Ld = L + "d"; Lr = L + "r"
    A(f"{L}:")
    A("s_load_dwordx16 s[84:99], s[54:55], 0 glc")
    A("s_waitcnt lgkmcnt(0)")
    for i in range(4):
        A(f"s_cmp_eq_u64 s[{84+2*i}:{85+2*i}], s[42:43]"); A(f"s_cbranch_scc0 {Lr}")
    A("s_cmp_eq_u32 s62, 0"); A(f"s_cbranch_scc1 {Ld}")
    for i in range(4, 6):
        A(f"s_cmp_eq_u64 s[{84+2*i}:{85+2*i}], s[42:43]"); A(f"s_cbranch_scc0 {Lr}")
    A(f"s_branch {Ld}")
    A(f"{Lr}:")
    if hint_sleep: A(f"s_sleep {hint_sleep}")
    spin_tail(L, Ld, 16)
    stamp(3)
    if eb == 3: A("s_endpgm")
    A("s_mov_b64 exec, s[64:65]")
    gather([(32+4*i, f"buffer_load_dwordx4 v[{32+4*i}:{35+4*i}], v29, s[44:47], s{56+i} offen sc1") for i in range(4)], full="s[64:65]", cnt="v162")
    sum4(32, 4, 4, 16)
    for k in range(4): A(f"v_max_f32 v{16+k}, 0, v{16+k}")
    A("v_cvt_pk_bf16_f32 v20, v16, v17"); A("v_cvt_pk_bf16_f32 v21, v18, v19")
    A("ds_write_b64 v154, v[20:21] offset:256")
    A("s_mov_b64 exec, -1")
    flag(3)
    stamp(4)
    if eb == 4: A("s_endpgm")
    A("s_add_u32 s14, s67, 56"); A("s_add_u32 s15, s67, 60")
    wait_lds("v8", 3, off=1024)
    for ks in range(3): A(f"ds_read_b128 v[{32+4*ks}:{35+4*ks}], v152 offset:{256 + ks*64}")
    A(f"ds_read_b64 v[44:45], v152 offset:{256 + 192}")
    wait_lds("v7", "s14")
    for ks in range(3):
        for q in range(2):
            f = 64 + (ks*2 + q)*4
            A(f"ds_read_b64_tr_b16 v[{f}:{f+1}], v{150+q} offset:{R1 + ks*8192}")
            A(f"ds_read_b64_tr_b16 v[{f+2}:{f+3}], v{150+q} offset:{R1 + ks*8192 + 4096}")
    for ks in range(3):
        for q in range(2):
            f = 64 + (ks*2 + q)*4
            A(f"s_waitcnt lgkmcnt({10 - 4*ks - 2*q})")
            c = "0" if ks == 0 else f"v[{128+4*q}:{131+4*q}]"
            A(f"v_mfma_f32_16x16x32_bf16 v[{128+4*q}:{131+4*q}], v[{f}:{f+3}], v[{32+4*ks}:{35+4*ks}], {c}")
    wait_lds("v7", "s15")
    stamp(5)
    for q in range(2): A(f"ds_read_b64_tr_b16 v[{88+2*q}:{89+2*q}], v{150+q} offset:{R1 + 3*8192}")
    for q in range(2):
        A(f"s_waitcnt lgkmcnt({1-q})")
        A(f"v_mfma_f32_16x16x16_bf16 v[{128+4*q}:{131+4*q}], v[{88+2*q}:{89+2*q}], v[44:45], v[{128+4*q}:{131+4*q}]")
    publish_final(128)
    stamp(6)
    dump_stamps(7, ["v161", "v162"])
    A("s_endpgm")
    A("L_codeend:")

    body = A.render()
    out = HEADER
    out += f"; @launch grid=(256,1,1) block=(576,1,1) lds={LDS_BYTES}\n"
    out += '.amdgcn_target "amdgcn-amd-amdhsa--gfx950"\n.text\n'
    out += f".globl {NAME}\n.p2align 8\n.type {NAME},@function\n"
    out += body
    out += f""".section .rodata,"a"
.p2align 6
.amdhsa_kernel {NAME}
  .amdhsa_next_free_vgpr 168
  .amdhsa_next_free_sgpr 102
  .amdhsa_accum_offset 168
  .amdhsa_group_segment_fixed_size 0
  .amdhsa_kernarg_size 96
  .amdhsa_user_sgpr_count 2
  .amdhsa_user_sgpr_kernarg_segment_ptr 1
  .amdhsa_system_sgpr_workgroup_id_x 1
  .amdhsa_float_denorm_mode_32 3
.end_amdhsa_kernel
"""
    return out

if __name__ == "__main__":
    import json
    kw = json.loads(sys.argv[2]) if len(sys.argv) > 2 else {}
    open(sys.argv[1], "w").write(gen(**kw))
```

```python
import sys
sys.path.insert(0, "work")
from asmlib import Asm

NAME = "gated_mix__sliding_block_cached__dense_activation_relu__decode_kernel"
HEADER = open("gated_mix__sliding_block_cached__dense_activation_relu__decode.s.ref").read().split("; Override launch")[0]

XT = 0x1000
HH = 0x8000
LSE = 0x20000
OF = 0x40000
QP = 0x80000
HP = 0x100000
OP = 0x180000
FP = 0x280000
FBLK = 4352
WS_USED = 0x500000
DIAG = 0x500000
R0, R1, R2, R3, M = 0x0, 0x8000, 0x10000, 0x18000, 0x20000
XS = M
QB = M + 0x1000
OB = M + 0x1A00
AC = M + 0x2C00
PB = AC
RB = AC + 0x1000
TB = AC + 0x2000
ST = M + 0x6E00
FL = M + 0x7000
LDS_BYTES = 160 * 1024
TAGK = 0x9E3779B1
SPIN_LIMIT = 400000
L2E = 0x3FB8AA3B
SCALE = 0x3DB504F3

def gen(D=(20, 20), diag=False, mimic=True, elim=0, q_start=60, lsleep=0, force_global=False, fpre=1, lrep=2, hint_sleep=0, rord=1, ackw=0, K1=3, K2=1, st1=6, st2=6, opre=0, oh=2, fpt=100, d2last=0, dwq=36, kmid=1, lh=0, opg=0, gt=12, xt=60, lf='sc1', bwait=1, ea=99, eb=99):
    A = Asm()
    SP = [68, 70, 72, 74, 76, 78, 80, 82, 62, 100, 32, 36]
    def stamp(i):
        if diag: A(f"s_memrealtime s[{SP[i]}:{SP[i]+1}]")
    def dump_stamps(n, extra=(), final=False):
        if not diag: return
        A("s_waitcnt lgkmcnt(0)")
        A("s_mov_b64 exec, -1")
        A("v_mov_b32 v3, 0")
        for i in range(n): A(f"v_writelane_b32 v3, s{SP[i]}, {i}")
        for k, r in enumerate(extra):
            A(f"v_readfirstlane_b32 s60, {r}"); A(f"v_writelane_b32 v3, s60, {12+k}")
        A("s_lshl_b32 s60, s3, 6"); A(f"s_add_u32 s60, s60, {FL + 0xC00}"); A("v_lshl_add_u32 v2, v1, 2, s60")
        A("s_mov_b64 exec, 0xffff")
        A("ds_write_b32 v2, v3")
        if final:
            A("s_mov_b64 exec, -1")
            A("s_sleep 16")
            A("v_lshlrev_b32 v2, 4, v1"); A(f"v_add_u32 v3, {FL + 0xC00}, v2")
            A("ds_read_b128 v[16:19], v3"); A("s_waitcnt lgkmcnt(0)")
            A("s_lshl_b32 s60, s2, 10"); A(f"s_add_u32 s60, s60, {DIAG}")
            A("s_mov_b32 exec_hi, 0xf")
            A("buffer_store_dwordx4 v[16:19], v2, s[44:47], s60 offen")
    def spin_tail(L, Ld, inc=1):
        A(f"s_add_u32 s41, s41, {inc}"); A(f"s_cmp_lt_u32 s41, {SPIN_LIMIT}"); A(f"s_cbranch_scc1 {L}"); A(f"{Ld}:")
    def wait_lds(vaddr, th, vt="v2", off=0):
        L = A.lab("W"); Ld = L + "d"
        A(f"{L}:")
        A(f"ds_read_b32 {vt}, {vaddr}" + (f" offset:{off}" if off else ""))
        A("s_waitcnt lgkmcnt(0)")
        A(f"v_cmp_gt_i32 vcc, {th}, {vt}")
        A(f"s_cbranch_vccz {Ld}")
        if lsleep: A(f"s_sleep {lsleep}")
        spin_tail(L, Ld)
    def srd(d, b, size):
        A(f"s_mov_b32 s{d}, s{b}"); A(f"s_mov_b32 s{d+1}, s{b+1}"); A(f"s_mov_b32 s{d+2}, {size:#x}"); A(f"s_mov_b32 s{d+3}, 0x20000")
    WSZ = 0x800000 if diag else WS_USED

    A(f"{NAME}:")
    A("s_cmp_ge_u32 s2, 256")
    A("s_cbranch_scc1 L_exit")
    A("v_readfirstlane_b32 s3, v0")
    stamp(0)
    A("v_and_b32 v1, 63, v0")
    A("s_mov_b32 s41, 0")
    A("s_lshr_b32 s4, s2, 6")
    A("s_and_b32 s5, s2, 63")
    A("s_and_b32 s6, s2, 7")
    A("s_lshr_b32 s7, s2, 3")
    A("s_lshr_b32 s3, s3, 6")
    A("s_cbranch_scc0 L_loader")
    A("s_getpc_b64 s[54:55]")
    A("L_pc:")
    A("v_subrev_u32 v2, 64, v0"); A("v_lshlrev_b32 v2, 7, v2"); A("v_min_u32 v2, L_codeend-L_pc-4, v2")
    A("global_load_dword v160, v2, s[54:55]")
    A("v_mov_b32 v3, 0")
    A(f"v_lshlrev_b32 v9, 2, v0"); A(f"v_add_u32 v9, {FL}, v9")
    A(f"v_lshlrev_b32 v2, 2, v1"); A(f"v_add_u32 v2, {FL}, v2")
    A("ds_write_b32 v9, v3"); A("ds_write_b32 v2, v3"); A(f"ds_write_b32 v2, v3 offset:{11*256}")
    A("s_waitcnt lgkmcnt(0)")
    A("s_barrier")
    if elim == 1: A("s_endpgm")
    A("s_load_dwordx16 s[16:31], s[0:1], 0")
    A("s_load_dwordx8 s[32:39], s[0:1], 64")
    if fpre == 4:
        A("s_waitcnt lgkmcnt(0)")
        A("s_cmp_lg_u32 s3, 8"); A("s_cbranch_scc1 L_nf4")
        A(f"s_mul_i32 s8, s2, {FBLK}"); A(f"s_add_u32 s8, s8, {FP}"); A("v_lshl_add_u32 v2, v1, 7, s8")
        A("global_load_dword v160, v2, s[38:39]")
        A("L_nf4:")
    A("s_cmp_lg_u32 s3, 5"); A("s_cbranch_scc1 L_ng5")
    A("s_and_b32 s8, s7, 7"); A("s_lshl_b32 s8, s8, 11"); A("v_lshlrev_b32 v2, 5, v1"); A("v_add_u32 v3, s8, v2")
    A("s_waitcnt lgkmcnt(0)")
    A("s_load_dword s40, s[38:39], 0")
    A("global_load_dwordx4 v[96:99], v3, s[16:17]"); A("global_load_dwordx4 v[100:103], v3, s[16:17] offset:16")
    A("global_load_dwordx4 v[104:107], v2, s[32:33]"); A("global_load_dwordx4 v[108:111], v2, s[32:33] offset:16")
    A("L_ng5:")
    A("s_waitcnt vmcnt(0) lgkmcnt(0)")
    A("s_branch L_notloader")

    A("L_loader:")
    A("s_load_dwordx16 s[16:31], s[0:1], 0")
    A("s_load_dwordx8 s[32:39], s[0:1], 64")
    A("s_setprio 3")
    if diag: A("s_memtime s[90:91]")
    A("v_lshrrev_b32 v14, 5, v1"); A("v_and_b32 v15, 31, v1"); A("v_xor_b32 v15, v15, v14"); A("v_lshlrev_b32 v2, 11, v14"); A("v_lshl_add_u32 v4, v15, 4, v2")
    A("v_xor_b32 v17, 32, v4"); A("v_xor_b32 v18, 64, v4"); A("v_xor_b32 v19, 32, v18")
    A("v_lshrrev_b32 v13, 3, v1"); A("v_and_b32 v2, 6, v13"); A("v_and_b32 v3, 7, v1"); A("v_xor_b32 v3, v3, v2"); A("v_lshlrev_b32 v12, 4, v3")
    A("v_lshl_add_u32 v5, v13, 13, v12"); A("v_mov_b32 v6, v5"); A("v_mov_b32 v7, v5"); A("v_mov_b32 v8, v5")
    A("v_mul_u32_u24 v24, 0x1c00, v13"); A("v_add_u32 v24, v24, v12")
    A("v_lshrrev_b32 v2, 4, v1"); A("v_and_b32 v3, 15, v1"); A("v_xor_b32 v9, v3, v2"); A("v_lshlrev_b32 v9, 4, v9"); A("v_lshl_add_u32 v16, v2, 8, v9")
    A("v_lshlrev_b32 v9, 1, v2"); A("v_xor_b32 v9, v3, v9"); A("v_lshlrev_b32 v9, 4, v9"); A("v_lshl_add_u32 v20, v2, 8, v9")
    A("v_lshl_add_u32 v22, v2, 11, v9")
    A(f"v_mov_b32 v29, {FL}"); A("v_lshl_add_u32 v10, v1, 2, v29"); A("v_and_b32 v2, 3, v1"); A("v_mul_u32_u24 v2, 0x104, v2"); A("v_add_u32 v29, v2, v29")
    A("s_lshl_b32 s8, s4, 9")
    A("s_lshl_b32 s10, s5, 7"); A("s_lshl_b32 s9, s4, 21"); A("s_add_u32 s9, s9, s10")
    A(f"s_mul_i32 s42, s4, {256*7168}"); A("s_add_u32 s42, s42, s10")
    A("s_and_b32 s15, s7, 24"); A("s_add_u32 s15, s15, s6"); A("s_lshl_b32 s15, s15, 5"); A("s_and_b32 s12, s7, 7"); A("s_add_u32 s15, s15, s12")
    A("s_add_u32 s15, s15, 24"); A("s_lshl_b32 s15, s15, 15")
    A("s_lshl_b32 s14, s12, 12")
    A(f"s_mov_b32 m0, {XS}")
    A("s_movk_i32 s46, 0x4000"); A("s_mov_b32 s47, 0x20000"); A("s_mov_b32 s50, 0x800000"); A("s_mov_b32 s51, 0x20000")
    A(f"s_mov_b32 s43, {4 + 4 - (dwq or D[0])}"); A("s_mov_b32 s11, 0xfc00"); A("s_mov_b32 s13, 8")
    A("s_barrier")
    A("s_waitcnt lgkmcnt(0)")
    stamp(3)
    A("s_mov_b64 s[44:45], s[16:17]"); A("s_mov_b64 s[48:49], s[22:23]")
    for i in range(4):
        A(f"buffer_load_dwordx4 v{4 if i == 0 else 16+i}, s[44:47], s8 offen offset:{i*1024} lds")
        if i < 3: A("s_addk_i32 s8, 0xc00")
    A("s_mov_b32 m0, 0")
    A(f"s_call_b64 s[52:53], {'L_loop3' if dwq else 'L_loop'}")
    if dwq:
        A(f"s_add_i32 s43, s43, {dwq - D[0]}")
        A("s_waitcnt vmcnt(32)"); A("v_mov_b32 v11, 4"); A("ds_write_b32 v10, v11")
    stamp(6)
    A("s_mov_b64 s[48:49], s[18:19]"); A("s_mov_b32 s50, 0x2000000"); A("s_mov_b32 s9, s15"); A("s_mov_b32 s13, 8"); A(f"s_mov_b32 s10, {R1}")
    A("v_mov_b32 v5, v16"); A("v_xor_b32 v6, 64, v16"); A("v_xor_b32 v7, 0x80, v16"); A("v_xor_b32 v8, 64, v7")
    A("s_call_b64 s[52:53], L_loopx")
    stamp(7)
    A("s_mov_b64 s[48:49], s[20:21]"); A("s_mov_b32 s9, s15"); A("s_mov_b32 s13, 8")
    A("v_mov_b32 v5, v20"); A("v_xor_b32 v6, 0x80, v20"); A("v_mov_b32 v7, v20"); A("v_mov_b32 v8, v6")
    A("s_call_b64 s[52:53], L_loopx")
    stamp(9)
    A("s_cmp_ge_u32 s5, 56"); A("s_cbranch_scc1 L_now1")
    A(f"s_mov_b32 m0, {R3}"); A("s_mov_b32 s50, 0x700000")
    A("s_mov_b64 s[48:49], s[28:29]"); A("s_mov_b32 s9, s42"); A(f"s_mov_b32 s11, {8*7168-1024}"); A("s_mov_b32 s13, 8")
    A("v_mov_b32 v5, v24"); A("v_mov_b32 v6, v24"); A("v_mov_b32 v7, v24"); A("v_mov_b32 v8, v24")
    A("s_call_b64 s[52:53], L_loop")
    A("L_now1:")
    stamp(1)
    assert D[0] <= 32
    A("s_mov_b64 s[48:49], s[24:25]"); A("s_mov_b32 s50, 0x800000")
    A("s_lshl_b32 s9, s7, 10"); A("s_add_u32 s9, s9, s6"); A("s_lshl_b32 s9, s9, 8")
    A("s_movk_i32 s11, 0x1c00"); A("s_mov_b32 s13, 8")
    A("v_mov_b32 v5, v22"); A("v_xor_b32 v6, 0x80, v22"); A("v_mov_b32 v7, v22"); A("v_mov_b32 v8, v6")
    A("s_mov_b32 m0, 0")
    if not elim: wait_lds("v29", 2, off=256)
    L2 = 'L_loop2' if D[1] != D[0] else 'L_loop'
    if D[1] != D[0] and not d2last: A(f"s_add_i32 s43, s43, {D[0] - D[1]}")
    A(f"s_call_b64 s[52:53], {'L_loop' if d2last else L2}")
    if D[1] != D[0] and d2last: A(f"s_add_i32 s43, s43, {D[0] - D[1]}")
    A("s_mov_b64 s[48:49], s[30:31]"); A("s_mov_b32 s50, 0x700000")
    A("s_mul_i32 s9, s7, 0x380"); A("s_add_u32 s9, s9, s6"); A("s_lshl_b32 s9, s9, 8"); A("s_mov_b32 s13, 7")
    A(f"s_call_b64 s[52:53], {L2}")
    Dl = D[1]
    prev = Dl - 4
    for k in range(Dl - 4, -1, -4):
        if k % 8 != 4 and k != 0: continue
        A(f"s_waitcnt vmcnt({k})")
        if prev != k: A(f"s_add_i32 s43, s43, {prev - k}")
        prev = k
        A("v_mov_b32 v11, s43"); A("ds_write_b32 v10, v11")
    stamp(2)
    if not elim: A("s_branch L_red")
    A("L_exit:")
    A("s_endpgm")
    A("L_loopx:")
    A("s_xor_b32 m0, s10, s14"); A("s_xor_b32 s8, s9, s14")
    for u in range(4):
        A(f"s_waitcnt vmcnt({D[0]-1})")
        if u == 3:
            A("v_mov_b32 v11, s43"); A("ds_write_b32 v10, v11")
        A(f"buffer_load_dwordx4 v{5+u}, s[48:51], s8 offen offset:{u*1024} nt lds")
    A("s_addk_i32 s9, 0x1000"); A("s_addk_i32 s10, 0x1000"); A("s_add_i32 s43, s43, 4")
    A("s_sub_u32 s13, s13, 1"); A("s_cmp_lg_u32 s13, 0"); A("s_cbranch_scc1 L_loopx")
    A("s_setpc_b64 s[52:53]")
    for lab, Dd in (("L_loop3", dwq), ("L_loop", D[0]), ("L_loop2", D[1])):
        if lab == "L_loop2" and D[1] == D[0]: continue
        if lab == "L_loop3" and not dwq: continue
        A(f"{lab}:")
        for u in range(4):
            A(f"s_waitcnt vmcnt({Dd-1})")
            if u == 3:
                A("v_mov_b32 v11, s43"); A("ds_write_b32 v10, v11")
            A(f"buffer_load_dwordx4 v{5+u}, s[48:51], s9 offen offset:{u*1024} nt lds")
            A("s_add_u32 s9, s9, s11")
        A("s_addk_i32 s9, 0x1000"); A("s_add_u32 m0, m0, 0x1000"); A("s_add_i32 s43, s43, 4")
        A("s_sub_u32 s13, s13, 1"); A("s_cmp_lg_u32 s13, 0"); A(f"s_cbranch_scc1 {lab}")
        A("s_setpc_b64 s[52:53]")

    def flag(stage):
        A(f"v_mov_b32 v2, {stage}"); A("ds_write_b32 v9, v2")
    def gather(loads, full="-1", tb=112, mid=None, cnt=None, tags=(1, 3)):
        N = len(loads)
        L = A.lab("G"); Ld = L + "d"; Lc = L + "c"
        for d, t in loads: A(t)
        if mid: mid()
        A(f"{Lc}:")
        if diag and cnt: A(f"v_add_u32 {cnt}, 1, {cnt}")
        A("s_waitcnt vmcnt(0)")
        for i, (d, t) in enumerate(loads):
            A(f"v_xor_b32 v{tb+i}, v{d+tags[0]}, v15")
            if len(tags) > 1: A(f"v_bitop3_b32 v{tb+i}, v{tb+i}, v{d+tags[1]}, v15 bitop3:0xf6")
        if N == 1: A(f"v_cmp_ne_u32 vcc, 0, v{tb}")
        else:
            A(f"v_or_b32 v2, v{tb}, v{tb+1}")
            for i in range(2, N, 2): A(f"v_or3_b32 v2, v2, v{tb+i}, v{tb+i+1}")
            A("v_cmp_ne_u32 vcc, 0, v2")
        A(f"s_cbranch_vccz {Ld}")
        A("s_add_u32 s41, s41, 16"); A(f"s_cmp_ge_u32 s41, {SPIN_LIMIT}"); A(f"s_cbranch_scc1 {Ld}")
        for i in range(N): A(f"v_cmp_ne_u32 s[{16+2*i}:{17+2*i}], 0, v{tb+i}")
        for i, (d, t) in enumerate(loads):
            m = 16 + 2*i
            sk = A.lab("S")
            A(f"s_mov_b64 exec, s[{m}:{m+1}]"); A(f"s_cbranch_execz {sk}"); A(t); A(f"{sk}:")
        A(f"s_mov_b64 exec, {full}")
        A(f"s_branch {Lc}")
        A(f"{Ld}:")
    def sum4(base, n, stride, out):
        for k, off in enumerate((0, 2)):
            for i in range(n):
                r = base + stride * i + off
                if i == 0:
                    A(f"v_lshlrev_b32 v{out+2*k}, 16, v{r}"); A(f"v_and_b32 v{out+2*k+1}, 0xffff0000, v{r}")
                else:
                    A(f"v_lshlrev_b32 v2, 16, v{r}"); A(f"v_and_b32 v3, 0xffff0000, v{r}")
                    A(f"v_add_f32 v{out+2*k}, v{out+2*k}, v2"); A(f"v_add_f32 v{out+2*k+1}, v{out+2*k+1}, v3")
    def unitpos(dst, u):
        A(f"v_lshrrev_b32 v2, 3, {u}"); A(f"v_lshlrev_b32 {dst}, 6, v2")
        A(f"v_and_b32 v2, 3, {u}"); A(f"v_lshl_add_u32 {dst}, v2, 4, {dst}")
        A(f"v_bfe_u32 v2, {u}, 2, 1"); A(f"v_lshl_add_u32 {dst}, v2, 3, {dst}")

    A("L_red:")
    srd(44, 38, WSZ)
    srd(64, 34, 16384)
    A(f"v_mov_b32 v3, {FL}")
    A(f"ds_read_b32 v15, v3 offset:{9*256}")
    A("v_lshlrev_b32 v28, 4, v1")
    A(f"s_mul_i32 s56, s2, {FBLK}"); A(f"s_add_u32 s56, s56, {FP}"); A("s_add_u32 s57, s56, 4096")
    if diag: A("v_mov_b32 v163, 0")
    if ea < 99 or eb < 99: A("s_branch L_redend")
    A("v_and_b32 v2, 7, v1"); A("v_lshlrev_b32 v30, 3, v2"); A("v_lshrrev_b32 v2, 4, v1"); A("v_lshl_add_u32 v30, v2, 1, v30")
    A("s_lshr_b32 s12, s7, 2"); A("s_lshl_b32 s12, s12, 11"); A("s_lshl_b32 s8, s6, 8"); A("s_add_u32 s12, s12, s8")
    A("s_and_b32 s8, s7, 3"); A("s_lshl_b32 s8, s8, 6"); A("s_add_u32 s12, s12, s8")
    def xred():
        A("v_permlane32_swap_b32 v64, v66"); A("v_permlane32_swap_b32 v65, v67")
        A("v_add_f32 v64, v64, v66"); A("v_add_f32 v65, v65, v67")
        A("v_permlane16_swap_b32 v64, v65"); A("v_add_f32 v64, v64, v65")
        A("v_add_f32_dpp v64, v64, v64 row_ror:8 row_mask:0xf bank_mask:0xf")
    def gate(out, gv):
        A("v_cvt_pk_bf16_f32 v64, v64, v64"); A("v_lshlrev_b32 v64, 16, v64")
        A(f"v_mul_f32 v64, {gv}, v64")
        A("v_cvt_pk_bf16_f32 v64, v64, v64"); A(f"v_lshlrev_b32 {out}, 16, v64")
    A(f"v_add_u32 v31, {RB}, v28")
    wait_lds("v29", 7, off=256)
    stamp(4)
    A("ds_read_b128 v[64:67], v31"); A("s_waitcnt lgkmcnt(0)")
    A("v_add_f32 v64, v64, v65"); A("v_add_f32 v66, v66, v67"); A("v_add_f32 v64, v64, v66")
    A("v_cvt_pk_bf16_f32 v26, v64, v64")
    A("s_mov_b32 exec_lo, 0x00ff00ff"); A("s_mov_b32 exec_hi, 0x00ff00ff")
    A("buffer_store_short v26, v30, s[64:67], s12 offen")
    A("s_cmp_lg_u32 s2, 0"); A("s_cbranch_scc1 L_redend")
    A("s_mov_b64 exec, 1")
    A("v_mov_b32 v2, 0")
    A("buffer_store_dword v15, v2, s[44:47], 0 offen sc1")
    A("L_redend:")
    stamp(5)
    if diag:
        A("s_memtime s[92:93]"); A("s_waitcnt lgkmcnt(0)"); A("s_sub_u32 s92, s92, s90"); A("s_mov_b64 exec, -1"); A("v_mov_b32 v164, s92")
    dump_stamps(10, ["v163", "v164"], final=True)
    A("s_endpgm")

    A("L_notloader:")
    srd(44, 38, WSZ)
    A("v_and_b32 v4, 15, v1"); A("v_lshrrev_b32 v5, 4, v1"); A("v_and_b32 v6, 7, v1")
    A(f"v_mov_b32 v7, {FL}")
    A("v_and_b32 v2, 3, v1"); A("v_mul_u32_u24 v2, 0x104, v2"); A(f"v_add_u32 v8, {FL+256}, v2")
    A("v_lshrrev_b32 v2, 1, v5"); A("v_xor_b32 v2, v2, v6"); A("v_lshlrev_b32 v2, 4, v2"); A("v_lshl_add_u32 v10, v6, 9, v2")
    A("v_and_b32 v2, 1, v5"); A("v_lshl_add_u32 v10, v2, 3, v10"); A(f"v_add_u32 v10, {XS}, v10")
    A("v_lshrrev_b32 v11, 2, v1")
    A("v_and_b32 v12, 3, v1"); A("v_lshlrev_b32 v12, 3, v12")
    A("s_mov_b32 s48, 0x00ff00ff"); A("s_mov_b32 s49, 0x00ff00ff")
    A("s_mov_b32 s50, 0xff00ff00"); A("s_mov_b32 s51, 0xff00ff00")
    A("s_sub_u32 s9, s3, 1"); A("s_and_b32 s9, s9, 3")
    A("v_lshrrev_b32 v2, 1, v11"); A("v_and_b32 v2, 3, v2"); A("v_xor_b32 v2, s9, v2"); A("v_lshlrev_b32 v2, 5, v2")
    A("v_lshl_add_u32 v13, v11, 7, v2"); A("v_add_u32 v13, v13, v12")
    A("v_lshlrev_b32 v14, 14, v6"); A("v_lshl_add_u32 v14, v5, 4, v14")
    A("s_lshl_b32 s52, s4, 17"); A("s_lshl_b32 s8, s5, 8"); A("s_add_u32 s52, s52, s8"); A("s_lshl_b32 s8, s9, 6"); A("s_add_u32 s52, s52, s8")
    A("v_and_b32 v2, 7, v11"); A("v_lshlrev_b32 v2, 5, v2"); A("v_lshl_add_u32 v28, v11, 8, v2"); A("v_add_u32 v28, v28, v12")
    A("s_lshl_b32 s8, s9, 6"); A("v_xor_b32 v150, s8, v28"); A("v_xor_b32 v151, 32, v150")
    A("v_mul_u32_u24 v152, 544, v6"); A("v_lshl_add_u32 v152, v5, 4, v152"); A(f"v_add_u32 v152, {OB}, v152")
    A(f"v_mul_u32_u24 v153, {32*FBLK}, v6"); A("v_lshl_add_u32 v153, v5, 4, v153"); A("v_lshrrev_b32 v2, 3, v4"); A("v_lshl_add_u32 v153, v2, 6, v153")
    A("s_lshl_b32 s66, s9, 3"); A("s_add_u32 s66, s66, s6"); A(f"s_mul_i32 s66, s66, {FBLK}"); A("s_lshl_b32 s8, s7, 7"); A("s_add_u32 s66, s66, s8")
    A(f"s_add_u32 s66, s66, {FP}")
    A("v_and_b32 v3, 31, v1"); unitpos("v154", "v3")
    A("v_lshrrev_b32 v2, 5, v1"); A("v_mul_u32_u24 v2, 544, v2"); A("v_add_u32 v154, v154, v2")
    A("s_mul_i32 s8, s9, 1088"); A(f"s_add_u32 s8, s8, {OB}"); A("v_add_u32 v154, s8, v154")
    A("s_lshl_b32 s8, s9, 10"); A(f"s_add_u32 s8, s8, {TB}"); A("v_lshl_add_u32 v147, v1, 4, s8")
    A("s_cmp_ge_u32 s5, 56"); A("s_cselect_b32 s67, 100, 64"); A("s_cselect_b32 s8, 0, 68"); A("s_add_u32 s67, s67, s8")
    if diag:
        A("v_mov_b32 v161, 0"); A("v_mov_b32 v162, 0"); A("v_mov_b32 v163, 0")
    A("s_cmp_ge_u32 s3, 5"); A("s_cbranch_scc1 L_B")

    def p1_run():
        for ks in range(8):
            A(f"ds_read_b64_tr_b16 v[{64+4*ks}:{65+4*ks}], v13 offset:{ks*4096}")
            A(f"ds_read_b64_tr_b16 v[{66+4*ks}:{67+4*ks}], v13 offset:{ks*4096 + 2048}")
        for ks in range(8):
            A(f"s_waitcnt lgkmcnt({min(15, 14 - 2*ks)})")
            c = "0" if ks == 0 else "v[16:19]"
            A(f"v_mfma_f32_16x16x32_bf16 v[16:19], v[{64+4*ks}:{67+4*ks}], v[{32+4*ks}:{35+4*ks}], {c}")
        A("v_cvt_pk_bf16_f32 v20, v16, v17"); A("v_cvt_pk_bf16_f32 v22, v18, v19")
        A("s_mov_b64 exec, s[48:49]")
        A("buffer_store_dwordx4 v[20:23], v14, s[44:47], s52 offen sc1")
        A("s_mov_b64 exec, -1")
    def xfrags():
        wait_lds("v7", 4)
        for var in range(4):
            if var: A(f"v_xor_b32 v3, {var*32}, v10")
            for kk in range(4):
                ks = kk*2 + (var >> 1); hh = var & 1
                A(f"ds_read_b64 v[{32+4*ks+2*hh}:{33+4*ks+2*hh}], {'v3' if var else 'v10'} offset:{kk*128}")
    def get_mode():
        wait_lds("v7", 1, off=11*256)
        A("v_readfirstlane_b32 s53, v2")
        A("v_lshl_add_u32 v3, v6, 3, v7"); A(f"ds_read_b64 v[164:165], v3 offset:{10*256}")
        A("v_mov_b32 v157, v15"); A("v_mov_b32 v159, v15")
    def publish_final(acc, glob=False):
        A(f"v_cvt_pk_bf16_f32 v16, v{acc}, v{acc+1}"); A(f"v_cvt_pk_bf16_f32 v17, v{acc+2}, v{acc+3}")
        A(f"v_cvt_pk_bf16_f32 v18, v{acc+4}, v{acc+5}"); A(f"v_cvt_pk_bf16_f32 v19, v{acc+6}, v{acc+7}")
        A("v_cndmask_b32 v156, v16, v18, s[50:51]"); A("v_cndmask_b32 v158, v17, v19, s[50:51]")
        if glob:
            A("buffer_store_dwordx4 v[156:159], v153, s[44:47], s66 offen sc1"); return
        Lg = A.lab("F"); Le = Lg + "e"
        A("s_cmp_eq_u32 s53, 2"); A(f"s_cbranch_scc0 {Lg}")
        A("buffer_store_dwordx4 v[156:159], v153, s[44:47], s66 offen")
        A(f"s_branch {Le}")
        A(f"{Lg}:")
        A("buffer_store_dwordx4 v[156:159], v153, s[44:47], s66 offen sc1")
        A(f"{Le}:")

    A("s_load_dword s40, s[38:39], 0")
    A(f"s_add_u32 s52, s52, {QP}")
    A("s_and_b32 s10, s7, 24"); A("s_add_u32 s10, s10, s6")
    A("s_lshr_b32 s11, s10, 2")
    A("s_and_b32 s12, s10, 3")
    A("s_and_b32 s13, s7, 7")
    A("v_xor_b32 v2, v5, v4"); A("v_lshlrev_b32 v2, 4, v2"); A("v_lshl_add_u32 v24, v4, 8, v2")
    A("s_lshl_b32 s8, s9, 13"); A(f"s_add_u32 s8, s8, {R1}"); A("v_add_u32 v24, s8, v24")
    A("v_xor_b32 v25, 64, v24"); A("v_xor_b32 v26, 0x80, v24"); A("v_xor_b32 v27, 0xc0, v24")
    A(f"v_add_u32 v148, {R2}, v150"); A(f"v_add_u32 v149, {R2}, v151")
    A("s_lshr_b32 s14, s13, 1"); A("s_xor_b32 s14, s14, s9"); A("s_lshl_b32 s14, s14, 3"); A("s_add_u32 s14, s14, 44")
    A("v_lshlrev_b32 v29, 4, v1")
    A("s_lshl_b32 s56, s11, 14"); A("s_lshl_b32 s8, s12, 12"); A("s_add_u32 s56, s56, s8"); A("s_lshl_b32 s8, s9, 10"); A("s_add_u32 s56, s56, s8")
    A(f"s_add_u32 s56, s56, {QP}"); A("s_add_u32 s57, s56, 0x20000"); A("s_add_u32 s58, s56, 0x40000"); A("s_add_u32 s59, s56, 0x60000")
    A("v_lshrrev_b32 v2, 5, v1"); A("v_mul_u32_u24 v2, 288, v2"); A("v_and_b32 v3, 31, v1"); A("v_lshl_add_u32 v30, v3, 3, v2")
    A("s_mul_i32 s8, s9, 576"); A(f"s_add_u32 s8, s8, {QB}"); A("v_add_u32 v30, s8, v30")
    A("v_mul_u32_u24 v31, 288, v6"); A("v_lshl_add_u32 v31, v5, 4, v31"); A(f"v_add_u32 v31, {QB}, v31")
    A(f"v_add_u32 v106, {PB}, v29"); A("s_lshl_b32 s8, s9, 10"); A("v_add_u32 v104, s8, v106")
    A("v_lshlrev_b32 v107, 5, v6"); A(f"v_add_u32 v107, {ST}, v107"); A("s_lshl_b32 s8, s9, 2"); A("v_add_u32 v105, s8, v107")
    A("v_lshrrev_b32 v2, 3, v4")
    A("v_lshlrev_b32 v108, 12, v6"); A("v_lshl_add_u32 v108, v5, 4, v108"); A("v_lshl_add_u32 v108, v2, 6, v108")
    A("v_lshlrev_b32 v109, 6, v6")
    A("s_lshl_b32 s8, s9, 1"); A("s_lshl_b32 s42, 3, s8"); A("s_mov_b32 s43, 0")
    A("s_lshl_b32 s84, s10, 15"); A("s_lshl_b32 s8, s9, 7"); A("s_add_u32 s84, s84, s8"); A(f"s_add_u32 s84, s84, {OP}")
    A("s_lshl_b32 s8, s13, 9"); A("s_add_u32 s60, s84, s8")
    A("s_lshl_b32 s8, s13, 12"); A("s_add_u32 s84, s84, s8")
    A("s_lshl_b32 s85, s10, 9"); A(f"s_add_u32 s85, s85, {LSE}")
    A("s_lshl_b32 s8, s13, 3"); A("s_add_u32 s61, s85, s8")
    A("s_lshl_b32 s8, s13, 6"); A("s_add_u32 s85, s85, s8")
    A("v_lshrrev_b32 v2, 3, v1"); A("v_lshlrev_b32 v144, 9, v2"); A("v_lshl_add_u32 v144, v6, 4, v144"); A("v_lshlrev_b32 v145, 3, v2")
    A("s_lshl_b32 s86, s12, 3"); A("s_add_u32 s86, s86, s13"); A("s_lshl_b32 s86, s86, 3"); A("s_add_u32 s86, s86, s11"); A("s_lshl_b32 s86, s86, 2")
    A("s_add_u32 s86, s86, s9"); A("s_lshl_b32 s86, s86, 7"); A(f"s_add_u32 s86, s86, {OF}")
    A("v_lshrrev_b32 v2, 5, v1"); A("v_lshlrev_b32 v146, 3, v2"); A("v_lshl_add_u32 v146, v6, 4, v146")
    A("s_lshl_b32 s87, s7, 2"); A("s_add_u32 s87, s87, s9"); A("s_lshl_b32 s87, s87, 10"); A(f"s_add_u32 s87, s87, {OF}")
    A(f"s_mov_b32 s64, {SCALE:#x}"); A(f"s_mov_b32 s65, {L2E:#x}")
    xfrags()
    A(f"s_add_u32 s40, s40, {TAGK:#x}")
    A("v_mov_b32 v15, s40"); A("v_mov_b32 v21, s40"); A("v_mov_b32 v23, s40")
    A(f"v_mov_b32 v3, {FL + 9*256}"); A("v_lshl_add_u32 v3, v1, 2, v3"); A("ds_write_b32 v3, v15")
    wait_lds("v7", 36)
    stamp(1)
    p1_run()
    flag(1)
    if opre == 2:
        A("buffer_load_dword v160, v144, s[44:47], s84 offen")
        A("buffer_load_dword v160, v145, s[44:47], s85 offen")
    stamp(2)
    def kpull():
        wait_lds("v7", "s14")
        for t in range(2):
            for s in range(4):
                A(f"ds_read_b128 v[{32+16*t+4*s}:{35+16*t+4*s}], v{24+s} offset:{t*4096}")
        A("s_waitcnt lgkmcnt(0)")
        flag(2)
    if not kmid: kpull()
    A("v_mov_b32 v111, v15")
    if ea == 0: A("s_endpgm")
    wait_lds("v7", q_start)
    stamp(3)
    def amode():
        if kmid: kpull()
    gather([(64+4*sp, f"buffer_load_dwordx4 v[{64+4*sp}:{67+4*sp}], v29, s[44:47], s{56+sp} offen sc1") for sp in range(4)], cnt="v161", mid=amode)
    stamp(4)
    sum4(64, 4, 4, 16)
    A("v_cvt_pk_bf16_f32 v20, v16, v17"); A("v_cvt_pk_bf16_f32 v21, v18, v19")
    A("ds_write_b64 v30, v[20:21]")
    flag(3)
    wait_lds("v8", 3)
    A("ds_read_b32 v28, v7")
    for s in range(4):
        A(f"ds_read_b128 v[{64+4*s}:{67+4*s}], v31 offset:{s*64}")
    for s in range(4):
        A(f"s_waitcnt lgkmcnt({3-s})")
        for t in range(2):
            c = "0" if s == 0 else f"v[{16+4*t}:{19+4*t}]"
            A(f"v_mfma_f32_16x16x32_bf16 v[{16+4*t}:{19+4*t}], v[{32+16*t+4*s}:{35+16*t+4*s}], v[{64+4*s}:{67+4*s}], {c}")
    def vreads():
        for w in range(4):
            for q in range(2):
                f = 112 + (w*2 + q)*4
                A(f"ds_read_b64_tr_b16 v[{f}:{f+1}], v{148+q} offset:{w*8192}")
                A(f"ds_read_b64_tr_b16 v[{f+2}:{f+3}], v{148+q} offset:{w*8192 + 4096}")
    A("v_readfirstlane_b32 s15, v28")
    A("s_cmp_lt_i32 s15, 100"); A("s_cbranch_scc1 L_vlate")
    vreads()
    A("L_vlate:")
    A("s_nop 4")
    if mimic:
        for i in range(4):
            a, b = 16 + 2*i, 17 + 2*i
            A(f"v_cvt_pk_bf16_f32 v2, v{a}, v{b}")
            A(f"v_lshlrev_b32 v{a}, 16, v2"); A(f"v_and_b32 v{b}, 0xffff0000, v2")
            A(f"v_mul_f32 v{a}, s64, v{a}"); A(f"v_mul_f32 v{b}, s64, v{b}")
            A(f"v_cvt_pk_bf16_f32 v2, v{a}, v{b}")
            A(f"v_lshlrev_b32 v{a}, 16, v2"); A(f"v_and_b32 v{b}, 0xffff0000, v2")
    else:
        for i in range(8): A(f"v_mul_f32 v{16+i}, s64, v{16+i}")
    A("v_max3_f32 v2, v16, v17, v18"); A("v_max3_f32 v3, v19, v20, v21"); A("v_max3_f32 v2, v2, v22, v23"); A("v_max_f32 v2, v2, v3")
    A("v_mov_b32 v3, v2"); A("v_permlane16_swap_b32 v2, v3"); A("v_max_f32 v2, v2, v3")
    A("v_mov_b32 v3, v2"); A("v_permlane32_swap_b32 v2, v3"); A("v_max_f32 v2, v2, v3")
    A("v_mul_f32 v96, s65, v2")
    for i in range(8): A(f"v_fma_f32 v{16+i}, v{16+i}, s65, -v96")
    for i in range(8): A(f"v_exp_f32 v{16+i}, v{16+i}")
    for i in range(4): A(f"v_cvt_pk_bf16_f32 v{100+i}, v{16+2*i}, v{17+2*i}")
    A("ds_write_b128 v104, v[100:103]")
    A("v_add_f32 v2, v16, v17"); A("v_add_f32 v3, v18, v19"); A("v_add_f32 v2, v2, v20"); A("v_add_f32 v3, v3, v21")
    A("v_add_f32 v2, v2, v22"); A("v_add_f32 v3, v3, v23"); A("v_add_f32 v97, v2, v3")
    A("v_mov_b32 v3, v97"); A("v_permlane16_swap_b32 v97, v3"); A("v_add_f32 v97, v97, v3")
    A("v_mov_b32 v3, v97"); A("v_permlane32_swap_b32 v97, v3"); A("v_add_f32 v97, v97, v3")
    A("s_mov_b64 exec, 0xff")
    A("ds_write2_b32 v105, v96, v97 offset0:0 offset1:4")
    A("s_mov_b64 exec, -1")
    flag(4)
    stamp(5)
    A("s_cmp_ge_i32 s15, 100"); A("s_cbranch_scc1 L_vdone")
    wait_lds("v7", 100)
    vreads()
    A("L_vdone:")
    get_mode()
    wait_lds("v8", 4)
    for w in range(4): A(f"ds_read_b128 v[{64+4*w}:{67+4*w}], v106 offset:{w*1024}")
    A("ds_read_b128 v[16:19], v107"); A("ds_read_b128 v[20:23], v107 offset:16")
    for w in range(4):
        A(f"s_waitcnt lgkmcnt({5-w})")
        for q in range(2):
            f = 112 + (w*2 + q)*4; d = 32 + (w*2 + q)*4
            A(f"v_mfma_f32_16x16x32_bf16 v[{d}:{d+3}], v[{f}:{f+3}], v[{64+4*w}:{67+4*w}], 0")
    A("s_waitcnt lgkmcnt(0)")
    A("v_max3_f32 v2, v16, v17, v18"); A("v_max_f32 v2, v2, v19")
    for i in range(4): A(f"v_sub_f32 v{16+i}, v{16+i}, v2")
    for i in range(4): A(f"v_exp_f32 v{16+i}, v{16+i}")
    A("v_mul_f32 v3, v16, v20")
    for i in range(1, 4): A(f"v_fmac_f32 v3, v{16+i}, v{20+i}")
    A("v_rcp_f32 v20, v3"); A("v_log_f32 v21, v3")
    for i in range(4): A(f"v_mul_f32 v{16+i}, v{16+i}, v20")
    A("v_add_f32 v110, v2, v21")
    for k in range(8): A(f"v_mul_f32 v{80+k}, v16, v{32+k}")
    for w in range(1, 4):
        for k in range(8): A(f"v_fmac_f32 v{80+k}, v{16+w}, v{32+8*w+k}")
    A("v_cvt_pk_bf16_f32 v16, v80, v81"); A("v_cvt_pk_bf16_f32 v17, v82, v83"); A("v_cvt_pk_bf16_f32 v18, v84, v85"); A("v_cvt_pk_bf16_f32 v19, v86, v87")
    A("v_cndmask_b32 v156, v16, v18, s[50:51]"); A("v_cndmask_b32 v158, v17, v19, s[50:51]")
    if opg == 1: A("s_branch L_opg")
    A("s_cmp_eq_u32 s53, 2"); A("s_cbranch_scc0 L_opg")
    A("buffer_store_dwordx4 v[156:159], v108, s[44:47], s60 offen")
    A("s_mov_b64 exec, s[42:43]")
    A("buffer_store_dwordx2 v[110:111], v109, s[44:47], s61 offen" + (" sc1" if opg == 2 else ""))
    A("s_branch L_opd")
    A("L_opg:")
    A("buffer_store_dwordx4 v[156:159], v108, s[44:47], s60 offen sc1")
    A("s_mov_b64 exec, s[42:43]")
    A("buffer_store_dwordx2 v[110:111], v109, s[44:47], s61 offen sc1")
    A("L_opd:")
    A("s_mov_b64 exec, -1")
    stamp(6)
    def ring(K, st, mk, nreg, tags, base, dst, cnt):
        L = A.lab("R")
        nl = len(mk(base))
        for k in range(K):
            if k and st: A(f"s_sleep {st}")
            for t in mk(base + k*nreg): A(t)
        A(f"{L}:")
        for k in range(K):
            r = base + k*nreg
            if diag: A(f"v_add_u32 {cnt}, 1, {cnt}")
            A(f"s_waitcnt vmcnt({nl*(K-1)})")
            A(f"v_xor_b32 v2, v{r+tags[0]}, v15")
            for tg in tags[1:]: A(f"v_bitop3_b32 v2, v2, v{r+tg}, v15 bitop3:0xf6")
            A("v_cmp_ne_u32 vcc, 0, v2")
            A(f"s_cbranch_vccz {L}_{k}")
            for t in mk(r): A(t)
        A("s_add_u32 s41, s41, 32"); A(f"s_cmp_lt_u32 s41, {SPIN_LIMIT}"); A(f"s_cbranch_scc1 {L}")
        for k in range(K):
            r = base + k*nreg
            A(f"{L}_{k}:")
            for d, o in dst: A(f"v_mov_b32 v{d}, v{r+o}")
            if k < K - 1: A(f"s_branch {L}_e")
        A(f"{L}_e:")
    if lh:
        A("s_add_u32 s54, s38, s85"); A("s_addc_u32 s55, s39, 0")
        L = A.lab("P"); Ld = L + "d"; Lr = L + "r"
        A(f"{L}:")
        A("s_load_dwordx16 s[16:31], s[54:55], 0 glc")
        A("s_waitcnt lgkmcnt(0)")
        for i in range(8):
            A(f"s_cmp_eq_u32 s{17+2*i}, s40"); A(f"s_cbranch_scc0 {Lr}")
        A(f"s_branch {Ld}")
        A(f"{Lr}:")
        spin_tail(L, Ld, 16)
    ring(K1, st1, lambda r: [f"buffer_load_dwordx4 v[{r}:{r+3}], v144, s[44:47], s84 offen {lf}", f"buffer_load_dwordx2 v[{r+4}:{r+5}], v145, s[44:47], s85 offen {lf}"],
         6, (1, 3, 5), 112, [(16, 0), (17, 2), (18, 4)], "v162")
    stamp(7)
    A("v_max_f32_dpp v2, v18, v18 row_ror:8 row_mask:0xf bank_mask:0xf")
    A("v_lshlrev_b32 v96, 16, v16"); A("v_and_b32 v97, 0xffff0000, v16")
    A("v_mov_b32 v3, v2"); A("v_lshlrev_b32 v98, 16, v17"); A("v_and_b32 v99, 0xffff0000, v17")
    A("v_permlane16_swap_b32 v2, v3"); A("v_max_f32 v2, v2, v3")
    A("v_mov_b32 v3, v2"); A("v_permlane32_swap_b32 v2, v3"); A("v_max_f32 v2, v2, v3")
    A("v_sub_f32 v18, v18, v2"); A("v_exp_f32 v18, v18")
    for k in range(4): A(f"v_mul_f32 v{96+k}, v18, v{96+k}")
    A("v_mov_b32 v19, v18")
    A("v_permlane32_swap_b32 v96, v98"); A("v_permlane32_swap_b32 v97, v99"); A("v_permlane32_swap_b32 v18, v19")
    A("v_add_f32 v96, v96, v98"); A("v_add_f32 v97, v97, v99"); A("v_add_f32 v18, v18, v19")
    A("v_mov_b32 v98, v96"); A("v_mov_b32 v99, v97"); A("v_mov_b32 v19, v18")
    A("v_permlane16_swap_b32 v96, v98"); A("v_permlane16_swap_b32 v97, v99"); A("v_permlane16_swap_b32 v18, v19")
    A("v_add_f32 v18, v18, v19"); A("v_add_f32 v96, v96, v98"); A("v_add_f32 v97, v97, v99")
    for r in (18, 96, 97): A(f"v_add_f32_dpp v{r}, v{r}, v{r} row_ror:8 row_mask:0xf bank_mask:0xf")
    A("v_rcp_f32 v18, v18")
    A("v_mul_f32 v96, v96, v18"); A("v_mul_f32 v97, v97, v18")
    A("v_cvt_pk_bf16_f32 v110, v96, v97")
    A("s_mov_b32 exec_lo, 0xff"); A("s_mov_b32 exec_hi, 0xff")
    A("buffer_store_dwordx2 v[110:111], v146, s[44:47], s86 offen sc1")
    A("s_mov_b64 exec, -1")
    A("s_add_u32 s14, s67, 32")
    if ea == 4: A("s_endpgm")
    if oh:
        A("s_add_u32 s54, s38, s87"); A("s_addc_u32 s55, s39, 0")
        L = A.lab("P"); Ld = L + "d"; Lr = L + "r"
        lines = range(8) if oh == 1 else (0, 4)
        if oh == 2:
            A("s_and_b32 s8, s6, 3"); A("s_lshl_b32 s8, s8, 7"); A("s_add_u32 s54, s54, s8"); A("s_addc_u32 s55, s55, 0")
        A(f"{L}:")
        for i in lines: A(f"s_load_dword s{16+i}, s[54:55], {i*128+4} glc")
        A("s_waitcnt lgkmcnt(0)")
        for i in lines:
            A(f"s_cmp_eq_u32 s{16+i}, s40"); A(f"s_cbranch_scc0 {Lr}")
        A(f"s_branch {Ld}")
        A(f"{Lr}:")
        if hint_sleep: A(f"s_sleep {hint_sleep}")
        spin_tail(L, Ld, 16)
    ring(K2, st2, lambda r: [f"buffer_load_dwordx4 v[{r}:{r+3}], v29, s[44:47], s87 offen sc1"], 4, (1, 3), 32, [(20, 0), (21, 2)], "v163")
    A("ds_write_b64 v154, v[20:21]")
    flag(5)
    stamp(8)
    wait_lds("v7", "s14")
    for ks in range(4):
        for q in range(2):
            f = 64 + (ks*2 + q)*4
            A(f"ds_read_b64_tr_b16 v[{f}:{f+1}], v{150+q} offset:{R0 + ks*8192}")
            A(f"ds_read_b64_tr_b16 v[{f+2}:{f+3}], v{150+q} offset:{R0 + ks*8192 + 4096}")
    wait_lds("v8", 5)
    stamp(9)
    for ks in range(4): A(f"ds_read_b128 v[{48+4*ks}:{51+4*ks}], v152 offset:{ks*64}")
    for ks in range(4):
        A(f"s_waitcnt lgkmcnt({3-ks})")
        for q in range(2):
            f = 64 + (ks*2 + q)*4
            c = "0" if ks == 0 else f"v[{136+4*q}:{139+4*q}]"
            A(f"v_mfma_f32_16x16x32_bf16 v[{136+4*q}:{139+4*q}], v[{f}:{f+3}], v[{48+4*ks}:{51+4*ks}], {c}")
    for k in range(4): A(f"v_cndmask_b32 v{16+k}, v{136+k}, v{140+k}, s[50:51]")
    for k in range(4): A(f"v_mul_f32 v{16+k}, v164, v{16+k}")
    A("ds_write_b128 v147, v[16:19]")
    flag(6)
    stamp(10)
    A(f"s_mul_i32 s56, s2, {FBLK}"); A("s_lshl_b32 s8, s9, 10"); A("s_add_u32 s56, s56, s8"); A(f"s_add_u32 s56, s56, {FP}")
    A("s_lshl_b32 s8, s9, 2"); A(f"s_add_u32 s8, s8, {RB}"); A("v_add_u32 v30, s8, v29")
    A("s_add_u32 s14, s67, 60")
    if bwait: wait_lds("v7", "s14")
    gather([(100, f"buffer_load_dwordx4 v[100:103], v29, s[44:47], s56 offen {lf}")], tb=104)
    sum4(100, 1, 4, 64)
    xred()
    A("ds_write_b32 v30, v64")
    flag(7)
    stamp(11)
    dump_stamps(12, ["v161", "v162", "v163"])
    A("s_endpgm")

    A("L_B:")
    A("s_cmp_lg_u32 s9, 0"); A("s_cbranch_scc1 L_nogate")
    A("v_mov_b32 v16, 0"); A("v_mov_b32 v17, 0")
    for i in range(8):
        x, gw = 96 + i, 104 + i
        A(f"v_lshlrev_b32 v18, 16, v{x}"); A(f"v_and_b32 v19, 0xffff0000, v{x}")
        A(f"v_lshlrev_b32 v20, 16, v{gw}"); A(f"v_and_b32 v21, 0xffff0000, v{gw}")
        A("v_mul_f32 v18, v18, v20"); A("v_mul_f32 v19, v19, v21")
        A("v_cvt_pk_bf16_f32 v18, v18, v19")
        A("v_and_b32 v19, 0xffff0000, v18"); A("v_lshlrev_b32 v18, 16, v18")
        A("v_add_f32 v16, v16, v18"); A("v_add_f32 v17, v17, v19")
    A("v_add_f32 v16, v16, v17")
    for r in (1, 2, 4, 8): A(f"v_add_f32_dpp v16, v16, v16 row_ror:{r} row_mask:0xf bank_mask:0xf")
    for sw in ("v_permlane16_swap_b32", "v_permlane32_swap_b32"):
        A("v_mov_b32 v17, v16"); A(f"{sw} v16, v17"); A("v_add_f32 v16, v16, v17")
    A("v_cvt_pk_bf16_f32 v16, v16, v16"); A("v_lshlrev_b32 v16, 16, v16")
    A(f"v_mul_f32 v16, {0xBFB8AA3B:#x}, v16"); A("v_exp_f32 v16, v16"); A("v_add_f32 v16, 1.0, v16"); A("v_rcp_f32 v16, v16")
    A("v_cvt_pk_bf16_f32 v16, v16, v16"); A("v_lshlrev_b32 v16, 16, v16")
    A("v_sub_f32 v17, 1.0, v16"); A("v_cvt_pk_bf16_f32 v98, v16, v17")
    A(f"s_add_u32 s40, s40, {TAGK:#x}")
    A("s_getreg_b32 s8, hwreg(HW_REG_XCC_ID, 0, 4)")
    A("v_mov_b32 v96, s8"); A("v_mov_b32 v97, s40"); A("v_mov_b32 v99, s40")
    A("s_lshl_b32 s8, s6, 5"); A("s_add_u32 s8, s8, s7"); A("s_lshl_b32 s8, s8, 4"); A(f"s_add_u32 s8, s8, {XT}")
    A("v_mov_b32 v2, 0"); A("s_mov_b64 exec, 1")
    A("buffer_store_dwordx4 v[96:99], v2, s[44:47], s8 offen sc1")
    A("s_mov_b64 exec, -1")
    A("L_nogate:")
    A(f"s_add_u32 s52, s52, {HP}")
    A(f"v_add_u32 v13, {R3}, v13")
    A("s_mul_i32 s10, s5, 37"); A("s_lshr_b32 s10, s10, 8")
    A("s_mul_i32 s8, s10, 7"); A("s_sub_u32 s11, s5, s8")
    A("s_lshr_b32 s12, s11, 1")
    A("s_and_b32 s13, s11, 1"); A("s_min_u32 s8, s12, 1"); A("s_add_u32 s13, s13, s8")
    A("s_lshl_b32 s53, s10, 2"); A("s_add_u32 s53, s53, s12"); A("s_lshl_b32 s53, s53, 10")
    A("s_lshl_b32 s13, s13, 4"); A("s_lshl_b32 s8, s4, 2"); A("s_add_u32 s53, s53, s8"); A(f"s_add_u32 s53, s53, {HH}")
    A("v_lshrrev_b32 v2, 3, v1"); A("v_xor_b32 v2, 1, v2"); A("v_mul_u32_u24 v2, s13, v2"); A("v_lshl_add_u32 v24, v1, 7, v2")
    A("s_bitcmp1_b32 s11, 0"); A("s_mov_b32 s60, 0xff"); A("s_cselect_b32 s60, 0xffff, s60"); A("s_mov_b32 s61, 0")
    A("s_lshl_b32 s8, s2, 7"); A(f"s_add_u32 s8, s8, {HH}"); A("s_add_u32 s54, s38, s8"); A("s_addc_u32 s55, s39, 0")
    A("v_lshrrev_b32 v2, 5, v1"); A("v_lshlrev_b32 v2, 14, v2"); A("v_and_b32 v3, 31, v1"); A("v_lshl_add_u32 v29, v3, 4, v2")
    A("s_mul_i32 s56, s7, 448"); A("s_lshl_b32 s8, s9, 15"); A("s_add_u32 s56, s56, s8"); A(f"s_add_u32 s56, s56, {HP}")
    A("s_add_u32 s57, s56, 0x20000"); A("s_add_u32 s58, s56, 0x40000"); A("s_add_u32 s59, s56, 0x60000")
    A("s_mov_b32 s64, 0x0fffffff"); A("s_mov_b32 s65, 0x0fffffff")
    xfrags()
    wait_lds("v8", 1)
    A(f"ds_read_b32 v15, v7 offset:{9*256}")
    A("s_waitcnt lgkmcnt(0)")
    A("v_readfirstlane_b32 s42, v15")
    A("v_mov_b32 v21, v15"); A("v_mov_b32 v23, v15")
    A("s_mov_b32 s43, s42")
    if eb == 0: A("s_endpgm")
    A("s_cmp_lg_u32 s9, 1"); A("s_cbranch_scc1 L_nomode")
    wait_lds("v7", xt)
    A("s_lshl_b32 s8, s6, 9"); A(f"s_add_u32 s8, s8, {XT}")
    A("v_and_b32 v3, 31, v1"); A("v_lshlrev_b32 v25, 4, v3")
    gather([(96, "buffer_load_dwordx4 v[96:99], v25, s[44:47], s8 offen sc1")])
    A("v_lshlrev_b32 v100, 16, v98"); A("v_and_b32 v101, 0xffff0000, v98")
    A("v_lshl_add_u32 v2, v1, 3, v7"); A("s_mov_b64 exec, 0xff"); A(f"ds_write_b64 v2, v[100:101] offset:{10*256}"); A("s_mov_b64 exec, -1")
    A("s_getreg_b32 s8, hwreg(HW_REG_XCC_ID, 0, 4)")
    A("v_xor_b32 v3, s8, v96"); A("v_or_b32 v3, v3, v112")
    A("v_cmp_ne_u32 vcc, 0, v3")
    A("s_cmp_eq_u64 vcc, 0"); A(f"s_cselect_b32 s8, {1 if force_global else 2}, 1")
    A("v_mov_b32 v3, s8"); A(f"v_lshl_add_u32 v2, v1, 2, v7"); A(f"ds_write_b32 v2, v3 offset:{11*256}")
    A("L_nomode:")
    if fpre in (1, 3):
        A("s_cmp_lg_u32 s9, 2"); A("s_cbranch_scc1 L_nofpre")
        wait_lds("v7", fpt)
        A(f"s_mul_i32 s8, s2, {FBLK}"); A(f"s_add_u32 s8, s8, {FP}"); A("v_lshlrev_b32 v2, 7, v1")
        A("s_mov_b32 exec_hi, 0")
        A("buffer_load_dword v160, v2, s[44:47], s8 offen")
        A("s_mov_b64 exec, -1")
        A("L_nofpre:")
    if fpre == 2:
        wait_lds("v7", 1, off=11*256)
        A("v_readfirstlane_b32 s63, v2")
        for k in range(4): A(f"v_xor_b32 v{156+k}, 1, v15")
        A("s_cmp_eq_u32 s63, 2"); A("s_cbranch_scc0 L_nofpre")
        A("buffer_store_dwordx4 v[156:159], v153, s[44:47], s66 offen")
        A("L_nofpre:")
    if eb == 1: A("s_endpgm")
    A("s_cmp_ge_u32 s5, 56"); A("s_cbranch_scc1 L_Bnow1")
    wait_lds("v7", 132)
    stamp(1)
    p1_run()
    flag(2)
    A("s_cmp_lg_u32 s9, 0"); A("s_cbranch_scc1 L_Bnow1")
    wait_lds("v8", 2, off=1024)
    A("s_mov_b64 exec, s[60:61]")
    A("buffer_store_dword v15, v24, s[44:47], s53 offen sc1")
    A("s_mov_b64 exec, -1")
    A("L_Bnow1:")
    stamp(2)
    if eb == 2: A("s_endpgm")
    get_mode()
    wait_lds("v7", 124)
    A("s_add_u32 s8, s7, 1"); A("s_and_b32 s62, s8, 2")
    L = A.lab("P"); Ld = L + "d"; Lr = L + "r"
    A(f"{L}:")
    A("s_load_dwordx16 s[84:99], s[54:55], 0 glc")
    A("s_waitcnt lgkmcnt(0)")
    for i in range(4):
        A(f"s_cmp_eq_u64 s[{84+2*i}:{85+2*i}], s[42:43]"); A(f"s_cbranch_scc0 {Lr}")
    A("s_cmp_eq_u32 s62, 0"); A(f"s_cbranch_scc1 {Ld}")
    for i in range(4, 6):
        A(f"s_cmp_eq_u64 s[{84+2*i}:{85+2*i}], s[42:43]"); A(f"s_cbranch_scc0 {Lr}")
    A(f"s_branch {Ld}")
    A(f"{Lr}:")
    if hint_sleep: A(f"s_sleep {hint_sleep}")
    spin_tail(L, Ld, 16)
    stamp(3)
    if eb == 3: A("s_endpgm")
    A("s_mov_b64 exec, s[64:65]")
    gather([(32+4*i, f"buffer_load_dwordx4 v[{32+4*i}:{35+4*i}], v29, s[44:47], s{56+i} offen sc1") for i in range(4)], full="s[64:65]", cnt="v162")
    sum4(32, 4, 4, 16)
    for k in range(4): A(f"v_max_f32 v{16+k}, 0, v{16+k}")
    A("v_cvt_pk_bf16_f32 v20, v16, v17"); A("v_cvt_pk_bf16_f32 v21, v18, v19")
    A("ds_write_b64 v154, v[20:21] offset:256")
    A("s_mov_b64 exec, -1")
    flag(3)
    stamp(4)
    if eb == 4: A("s_endpgm")
    A("s_add_u32 s14, s67, 56"); A("s_add_u32 s15, s67, 60")
    wait_lds("v8", 3, off=1024)
    for ks in range(3): A(f"ds_read_b128 v[{32+4*ks}:{35+4*ks}], v152 offset:{256 + ks*64}")
    A(f"ds_read_b64 v[44:45], v152 offset:{256 + 192}")
    wait_lds("v7", "s14")
    for ks in range(3):
        for q in range(2):
            f = 64 + (ks*2 + q)*4
            A(f"ds_read_b64_tr_b16 v[{f}:{f+1}], v{150+q} offset:{R1 + ks*8192}")
            A(f"ds_read_b64_tr_b16 v[{f+2}:{f+3}], v{150+q} offset:{R1 + ks*8192 + 4096}")
    for ks in range(3):
        for q in range(2):
            f = 64 + (ks*2 + q)*4
            A(f"s_waitcnt lgkmcnt({10 - 4*ks - 2*q})")
            c = "0" if ks == 0 else f"v[{128+4*q}:{131+4*q}]"
            A(f"v_mfma_f32_16x16x32_bf16 v[{128+4*q}:{131+4*q}], v[{f}:{f+3}], v[{32+4*ks}:{35+4*ks}], {c}")
    A("s_lshl_b32 s8, s9, 8"); A("v_add_u32 v3, s8, v7")
    wait_lds("v3", 6, off=256)
    A("ds_read_b128 v[96:99], v147")
    wait_lds("v7", "s15")
    stamp(5)
    for q in range(2): A(f"ds_read_b64_tr_b16 v[{88+2*q}:{89+2*q}], v{150+q} offset:{R1 + 3*8192}")
    for q in range(2):
        A(f"s_waitcnt lgkmcnt({1-q})")
        A(f"v_mfma_f32_16x16x16_bf16 v[{128+4*q}:{131+4*q}], v[{88+2*q}:{89+2*q}], v[44:45], v[{128+4*q}:{131+4*q}]")
    for k in range(4): A(f"v_cndmask_b32 v{16+k}, v{128+k}, v{132+k}, s[50:51]")
    for k in range(4): A(f"v_fmac_f32 v{96+k}, v165, v{16+k}")
    A("v_cvt_pk_bf16_f32 v156, v96, v97"); A("v_cvt_pk_bf16_f32 v158, v98, v99")
    A("s_cmp_eq_u32 s53, 2"); A("s_cbranch_scc0 L_fg")
    A("buffer_store_dwordx4 v[156:159], v153, s[44:47], s66 offen")
    A("s_branch L_fe")
    A("L_fg:")
    A("buffer_store_dwordx4 v[156:159], v153, s[44:47], s66 offen sc1")
    A("L_fe:")
    stamp(6)
    dump_stamps(7, ["v161", "v162"])
    A("s_endpgm")
    A("L_codeend:")

    body = A.render()
    out = HEADER
    out += f"; @launch grid=(256,1,1) block=(576,1,1) lds={LDS_BYTES}\n"
    out += '.amdgcn_target "amdgcn-amd-amdhsa--gfx950"\n.text\n'
    out += f".globl {NAME}\n.p2align 8\n.type {NAME},@function\n"
    out += body
    out += f""".section .rodata,"a"
.p2align 6
.amdhsa_kernel {NAME}
  .amdhsa_next_free_vgpr 168
  .amdhsa_next_free_sgpr 102
  .amdhsa_accum_offset 168
  .amdhsa_group_segment_fixed_size 0
  .amdhsa_kernarg_size 96
  .amdhsa_user_sgpr_count 2
  .amdhsa_user_sgpr_kernarg_segment_ptr 1
  .amdhsa_system_sgpr_workgroup_id_x 1
  .amdhsa_float_denorm_mode_32 3
.end_amdhsa_kernel
"""
    return out

if __name__ == "__main__":
    import json
    kw = json.loads(sys.argv[2]) if len(sys.argv) > 2 else {}
    open(sys.argv[1], "w").write(gen(**kw))
```

```python
import sys
sys.path.insert(0, "work")
from asmlib import Asm

NAME = "gated_mix__sliding_block_cached__dense_activation_relu__decode_kernel"
HEADER = open("gated_mix__sliding_block_cached__dense_activation_relu__decode.s.ref").read().split("; Override launch")[0]

XT = 0x1000
HH = 0x8000
LSE = 0x20000
DT = 0x3000
OF = 0x40000
QP = 0x80000
HP = 0x100000
OP = 0x180000
FP = 0x280000
FBLK = 4352
WS_USED = 0x500000
DIAG = 0x500000
R0, R1, R2, R3, M = 0x0, 0x8000, 0x10000, 0x18000, 0x20000
XS = M
QB = M + 0x1000
OB = M + 0x1A00
AC = M + 0x2C00
PB = AC
RB = AC + 0x1000
TB = AC + 0x2000
ST = M + 0x6E00
FL = M + 0x7000
LDS_BYTES = 160 * 1024
TAGK = 0x9E3779B1
SPIN_LIMIT = 400000
L2E = 0x3FB8AA3B
SCALE = 0x3DB504F3

def gen(D=(20, 20), diag=False, mimic=True, elim=0, q_start=68, lsleep=0, force_global=False, fpre=0, lrep=2, hint_sleep=0, rord=1, ackw=0, K1=3, K2=1, st1=6, st2=6, opre=0, oh=2, fpt=100, d2last=0, dwq=36, kmid=1, pp=4, sf='nt', lprio=3, dtail=1, of='', st0=0, xoff=1, wopre=1, bpre=1, dkv=0, lh=0, opg=0, gt=12, xt=60, lf='sc1', bwait=1, ea=99, eb=99):
    A = Asm()
    DK = dkv or D[0]
    SP = [68, 70, 72, 74, 76, 78, 80, 82, 62, 100, 32, 36]
    def stamp(i):
        if diag: A(f"s_memrealtime s[{SP[i]}:{SP[i]+1}]")
    def dump_stamps(n, extra=(), final=False):
        if not diag: return
        A("s_waitcnt lgkmcnt(0)")
        A("s_mov_b64 exec, -1")
        A("v_mov_b32 v3, 0")
        for i in range(n): A(f"v_writelane_b32 v3, s{SP[i]}, {i}")
        for k, r in enumerate(extra):
            A(f"v_readfirstlane_b32 s60, {r}"); A(f"v_writelane_b32 v3, s60, {12+k}")
        A("s_lshl_b32 s60, s3, 6"); A(f"s_add_u32 s60, s60, {FL + 0xC00}"); A("v_lshl_add_u32 v2, v1, 2, s60")
        A("s_mov_b64 exec, 0xffff")
        A("ds_write_b32 v2, v3")
        if final:
            A("s_mov_b64 exec, -1")
            A("s_sleep 16")
            A("v_lshlrev_b32 v2, 4, v1"); A(f"v_add_u32 v3, {FL + 0xC00}, v2")
            A("ds_read_b128 v[16:19], v3"); A("s_waitcnt lgkmcnt(0)")
            A("s_lshl_b32 s60, s2, 10"); A(f"s_add_u32 s60, s60, {DIAG}")
            A("s_mov_b32 exec_hi, 0xf")
            A("buffer_store_dwordx4 v[16:19], v2, s[44:47], s60 offen")
    def spin_tail(L, Ld, inc=1):
        A(f"s_add_u32 s41, s41, {inc}"); A(f"s_cmp_lt_u32 s41, {SPIN_LIMIT}"); A(f"s_cbranch_scc1 {L}"); A(f"{Ld}:")
    def wait_lds(vaddr, th, vt="v2", off=0):
        L = A.lab("W"); Ld = L + "d"
        A(f"{L}:")
        A(f"ds_read_b32 {vt}, {vaddr}" + (f" offset:{off}" if off else ""))
        A("s_waitcnt lgkmcnt(0)")
        A(f"v_cmp_gt_i32 vcc, {th}, {vt}")
        A(f"s_cbranch_vccz {Ld}")
        if lsleep: A(f"s_sleep {lsleep}")
        spin_tail(L, Ld)
    def srd(d, b, size):
        A(f"s_mov_b32 s{d}, s{b}"); A(f"s_mov_b32 s{d+1}, s{b+1}"); A(f"s_mov_b32 s{d+2}, {size:#x}"); A(f"s_mov_b32 s{d+3}, 0x20000")
    WSZ = 0x800000 if diag else WS_USED

    A(f"{NAME}:")
    A("s_cmp_ge_u32 s2, 256")
    A("s_cbranch_scc1 L_exit")
    A("v_readfirstlane_b32 s3, v0")
    stamp(0)
    A("v_and_b32 v1, 63, v0")
    A("s_mov_b32 s41, 0")
    A("s_lshr_b32 s4, s2, 6")
    A("s_and_b32 s5, s2, 63")
    A("s_and_b32 s6, s2, 7")
    A("s_lshr_b32 s7, s2, 3")
    A("s_lshr_b32 s3, s3, 6")
    A("s_cbranch_scc0 L_loader")
    A("s_getpc_b64 s[54:55]")
    A("L_pc:")
    A("v_subrev_u32 v2, 64, v0"); A("v_lshlrev_b32 v2, 7, v2"); A("v_min_u32 v2, L_codeend-L_pc-4, v2")
    A("global_load_dword v160, v2, s[54:55]")
    A("v_mov_b32 v3, 0")
    A(f"v_lshlrev_b32 v9, 2, v0"); A(f"v_add_u32 v9, {FL}, v9")
    A(f"v_lshlrev_b32 v2, 2, v1"); A(f"v_add_u32 v2, {FL}, v2")
    A("ds_write_b32 v9, v3"); A("ds_write_b32 v2, v3"); A(f"ds_write_b32 v2, v3 offset:{11*256}")
    A("s_waitcnt lgkmcnt(0)")
    A("s_barrier")
    if elim == 1: A("s_endpgm")
    A("s_load_dwordx16 s[16:31], s[0:1], 0")
    A("s_load_dwordx8 s[32:39], s[0:1], 64")
    if fpre == 4:
        A("s_waitcnt lgkmcnt(0)")
        A("s_cmp_lg_u32 s3, 8"); A("s_cbranch_scc1 L_nf4")
        A(f"s_mul_i32 s8, s2, {FBLK}"); A(f"s_add_u32 s8, s8, {FP}"); A("v_lshl_add_u32 v2, v1, 7, s8")
        A("global_load_dword v160, v2, s[38:39]")
        A("L_nf4:")
    if xoff:
        A("s_cmp_gt_u32 s3, 4"); A("s_cbranch_scc1 L_nx")
        A("v_lshrrev_b32 v3, 5, v0"); A("v_subrev_u32 v3, 2, v3")
        A("v_and_b32 v2, 31, v1"); A("v_xor_b32 v2, v2, v3"); A("v_lshlrev_b32 v2, 4, v2"); A("v_lshl_add_u32 v2, v3, 11, v2")
        A("s_lshl_b32 s8, s4, 9"); A("v_add_u32 v2, s8, v2")
        A("s_lshl_b32 s8, s3, 10"); A(f"s_add_u32 m0, s8, {XS - 1024}")
        A("s_waitcnt lgkmcnt(0)")
        A("global_load_lds_dwordx4 v2, s[16:17]")
        A("s_waitcnt vmcnt(0)")
        A("v_mov_b32 v2, 1"); A("ds_write_b32 v9, v2")
        A("L_nx:")
    A("s_cmp_lg_u32 s3, 5"); A("s_cbranch_scc1 L_ng5")
    A("s_and_b32 s8, s7, 7"); A("s_lshl_b32 s8, s8, 11"); A("v_lshlrev_b32 v2, 5, v1"); A("v_add_u32 v3, s8, v2")
    A("s_waitcnt lgkmcnt(0)")
    A("s_load_dword s40, s[38:39], 0")
    A("global_load_dwordx4 v[96:99], v3, s[16:17]"); A("global_load_dwordx4 v[100:103], v3, s[16:17] offset:16")
    A("global_load_dwordx4 v[104:107], v2, s[32:33]"); A("global_load_dwordx4 v[108:111], v2, s[32:33] offset:16")
    A("L_ng5:")
    A("s_waitcnt vmcnt(0) lgkmcnt(0)")
    A("s_branch L_notloader")

    A("L_loader:")
    A("s_load_dwordx16 s[16:31], s[0:1], 0")
    A("s_load_dwordx8 s[32:39], s[0:1], 64")
    A(f"s_setprio {lprio}")
    if diag: A("s_memtime s[90:91]")
    if not xoff:
        A("v_lshrrev_b32 v14, 5, v1"); A("v_and_b32 v15, 31, v1"); A("v_xor_b32 v15, v15, v14"); A("v_lshlrev_b32 v2, 11, v14"); A("v_lshl_add_u32 v4, v15, 4, v2")
        A("v_xor_b32 v17, 32, v4"); A("v_xor_b32 v18, 64, v4"); A("v_xor_b32 v19, 32, v18")
    A("v_lshrrev_b32 v13, 3, v1"); A("v_and_b32 v2, 6, v13"); A("v_and_b32 v3, 7, v1"); A("v_xor_b32 v3, v3, v2"); A("v_lshlrev_b32 v12, 4, v3")
    A("v_lshl_add_u32 v5, v13, 13, v12"); A("v_mov_b32 v6, v5"); A("v_mov_b32 v7, v5"); A("v_mov_b32 v8, v5")
    A("v_mul_u32_u24 v24, 0x1c00, v13"); A("v_add_u32 v24, v24, v12")
    A("v_lshrrev_b32 v2, 4, v1"); A("v_and_b32 v3, 15, v1"); A("v_xor_b32 v9, v3, v2"); A("v_lshlrev_b32 v9, 4, v9"); A("v_lshl_add_u32 v16, v2, 8, v9")
    A("v_lshlrev_b32 v9, 1, v2"); A("v_xor_b32 v9, v3, v9"); A("v_lshlrev_b32 v9, 4, v9"); A("v_lshl_add_u32 v20, v2, 8, v9")
    A("v_lshl_add_u32 v22, v2, 11, v9")
    A(f"v_mov_b32 v29, {FL}"); A("v_lshl_add_u32 v10, v1, 2, v29"); A("v_and_b32 v2, 3, v1"); A("v_mul_u32_u24 v2, 0x104, v2"); A("v_add_u32 v29, v2, v29")
    A("s_lshl_b32 s8, s4, 9")
    A("s_lshl_b32 s10, s5, 7"); A("s_lshl_b32 s9, s4, 21"); A("s_add_u32 s9, s9, s10")
    A(f"s_mul_i32 s42, s4, {256*7168}"); A("s_add_u32 s42, s42, s10")
    A("s_and_b32 s15, s7, 24"); A("s_add_u32 s15, s15, s6"); A("s_lshl_b32 s15, s15, 5"); A("s_and_b32 s12, s7, 7"); A("s_add_u32 s15, s15, s12")
    A("s_add_u32 s15, s15, 24"); A("s_lshl_b32 s15, s15, 15")
    A("s_lshl_b32 s14, s12, 12")
    A(f"s_mov_b32 m0, {XS}")
    A("s_movk_i32 s46, 0x4000"); A("s_mov_b32 s47, 0x20000"); A("s_mov_b32 s50, 0x800000"); A("s_mov_b32 s51, 0x20000")
    A(f"s_mov_b32 s43, {4 + 4 - (dwq or D[0])}"); A("s_mov_b32 s11, 0xfc00"); A("s_mov_b32 s13, 8")
    A("s_barrier")
    A("s_waitcnt lgkmcnt(0)")
    stamp(3)
    A("s_mov_b64 s[44:45], s[16:17]"); A("s_mov_b64 s[48:49], s[22:23]")
    for i in range(0 if xoff else 4):
        A(f"buffer_load_dwordx4 v{4 if i == 0 else 16+i}, s[44:47], s8 offen offset:{i*1024} lds")
        if i < 3: A("s_addk_i32 s8, 0xc00")
    A("s_mov_b32 m0, 0")
    A(f"s_call_b64 s[52:53], {'L_loop3' if dwq else 'L_loop'}")
    if dwq:
        A(f"s_add_i32 s43, s43, {dwq - DK}")
        if not xoff: A("s_waitcnt vmcnt(32)"); A("v_mov_b32 v11, 4"); A("ds_write_b32 v10, v11")
    stamp(6)
    A("s_mov_b64 s[48:49], s[18:19]"); A("s_mov_b32 s50, 0x2000000"); A("s_mov_b32 s9, s15"); A("s_mov_b32 s13, 8"); A(f"s_mov_b32 s10, {R1}")
    A("v_mov_b32 v5, v16"); A("v_xor_b32 v6, 64, v16"); A("v_xor_b32 v7, 0x80, v16"); A("v_xor_b32 v8, 64, v7")
    A("s_call_b64 s[52:53], L_loopx")
    stamp(7)
    A("s_mov_b64 s[48:49], s[20:21]"); A("s_mov_b32 s9, s15"); A("s_mov_b32 s13, 8")
    A("v_mov_b32 v5, v20"); A("v_xor_b32 v6, 0x80, v20"); A("v_mov_b32 v7, v20"); A("v_mov_b32 v8, v6")
    A("s_call_b64 s[52:53], L_loopx")
    stamp(9)
    if DK != D[0]: A(f"s_add_i32 s43, s43, {DK - D[0]}")
    A("s_cmp_ge_u32 s5, 56"); A("s_cbranch_scc1 L_now1")
    A(f"s_mov_b32 m0, {R3}"); A("s_mov_b32 s50, 0x700000")
    A("s_mov_b64 s[48:49], s[28:29]"); A("s_mov_b32 s9, s42"); A(f"s_mov_b32 s11, {8*7168-1024}"); A("s_mov_b32 s13, 8")
    A("v_mov_b32 v5, v24"); A("v_mov_b32 v6, v24"); A("v_mov_b32 v7, v24"); A("v_mov_b32 v8, v24")
    A("s_call_b64 s[52:53], L_loop")
    A("L_now1:")
    stamp(1)
    assert D[0] <= 32
    A("s_mov_b64 s[48:49], s[24:25]"); A("s_mov_b32 s50, 0x800000")
    A("s_lshl_b32 s9, s7, 10"); A("s_add_u32 s9, s9, s6"); A("s_lshl_b32 s9, s9, 8")
    A("s_movk_i32 s11, 0x1c00"); A("s_mov_b32 s13, 8")
    A("v_mov_b32 v5, v22"); A("v_xor_b32 v6, 0x80, v22"); A("v_mov_b32 v7, v22"); A("v_mov_b32 v8, v6")
    A("s_mov_b32 m0, 0")
    if not elim: wait_lds("v29", 3, off=256)
    L2 = 'L_loop2' if D[1] != D[0] else 'L_loop'
    if D[1] != D[0] and not d2last: A(f"s_add_i32 s43, s43, {D[0] - D[1]}")
    A(f"s_call_b64 s[52:53], {'L_loop' if d2last else L2}")
    if D[1] != D[0] and d2last: A(f"s_add_i32 s43, s43, {D[0] - D[1]}")
    A("s_mov_b64 s[48:49], s[30:31]"); A("s_mov_b32 s50, 0x700000")
    A("s_mul_i32 s9, s7, 0x380"); A("s_add_u32 s9, s9, s6"); A("s_lshl_b32 s9, s9, 8"); A("s_mov_b32 s13, 7")
    A(f"s_call_b64 s[52:53], {L2}")
    Dl = D[1]
    prev = Dl - 4
    for k in range(Dl - 4, -1, -4):
        if k % 8 != 4 and k != 0: continue
        A(f"s_waitcnt vmcnt({k})")
        if prev != k: A(f"s_add_i32 s43, s43, {prev - k}")
        prev = k
        A("v_mov_b32 v11, s43"); A("ds_write_b32 v10, v11")
    stamp(2)
    if not elim and (diag or not dtail): A("s_branch L_red")
    A("L_exit:")
    A("s_endpgm")
    A("L_loopx:")
    A("s_xor_b32 m0, s10, s14"); A("s_xor_b32 s8, s9, s14")
    for u in range(4):
        A(f"s_waitcnt vmcnt({DK-1})")
        if u == 3:
            A("v_mov_b32 v11, s43"); A("ds_write_b32 v10, v11")
        A(f"buffer_load_dwordx4 v{5+u}, s[48:51], s8 offen offset:{u*1024} nt lds")
    A("s_addk_i32 s9, 0x1000"); A("s_addk_i32 s10, 0x1000"); A("s_add_i32 s43, s43, 4")
    A("s_sub_u32 s13, s13, 1"); A("s_cmp_lg_u32 s13, 0"); A("s_cbranch_scc1 L_loopx")
    A("s_setpc_b64 s[52:53]")
    for lab, Dd in (("L_loop3", dwq), ("L_loop", D[0]), ("L_loop2", D[1])):
        if lab == "L_loop2" and D[1] == D[0]: continue
        if lab == "L_loop3" and not dwq: continue
        A(f"{lab}:")
        for u in range(4):
            A(f"s_waitcnt vmcnt({Dd-1})")
            if u == 3:
                A("v_mov_b32 v11, s43"); A("ds_write_b32 v10, v11")
            A(f"buffer_load_dwordx4 v{5+u}, s[48:51], s9 offen offset:{u*1024} nt lds")
            A("s_add_u32 s9, s9, s11")
        A("s_addk_i32 s9, 0x1000"); A("s_add_u32 m0, m0, 0x1000"); A("s_add_i32 s43, s43, 4")
        A("s_sub_u32 s13, s13, 1"); A("s_cmp_lg_u32 s13, 0"); A(f"s_cbranch_scc1 {lab}")
        A("s_setpc_b64 s[52:53]")

    def flag(stage):
        A(f"v_mov_b32 v2, {stage}"); A("ds_write_b32 v9, v2")
    def gather(loads, full="-1", tb=112, mid=None, cnt=None, tags=(1, 3)):
        N = len(loads)
        L = A.lab("G"); Ld = L + "d"; Lc = L + "c"
        for d, t in loads: A(t)
        if mid: mid()
        A(f"{Lc}:")
        if diag and cnt: A(f"v_add_u32 {cnt}, 1, {cnt}")
        A("s_waitcnt vmcnt(0)")
        for i, (d, t) in enumerate(loads):
            A(f"v_xor_b32 v{tb+i}, v{d+tags[0]}, v15")
            if len(tags) > 1: A(f"v_bitop3_b32 v{tb+i}, v{tb+i}, v{d+tags[1]}, v15 bitop3:0xf6")
        if N == 1: A(f"v_cmp_ne_u32 vcc, 0, v{tb}")
        else:
            A(f"v_or_b32 v2, v{tb}, v{tb+1}")
            for i in range(2, N, 2): A(f"v_or3_b32 v2, v2, v{tb+i}, v{tb+i+1}")
            A("v_cmp_ne_u32 vcc, 0, v2")
        A(f"s_cbranch_vccz {Ld}")
        A("s_add_u32 s41, s41, 16"); A(f"s_cmp_ge_u32 s41, {SPIN_LIMIT}"); A(f"s_cbranch_scc1 {Ld}")
        for i in range(N): A(f"v_cmp_ne_u32 s[{16+2*i}:{17+2*i}], 0, v{tb+i}")
        for i, (d, t) in enumerate(loads):
            m = 16 + 2*i
            sk = A.lab("S")
            A(f"s_mov_b64 exec, s[{m}:{m+1}]"); A(f"s_cbranch_execz {sk}"); A(t); A(f"{sk}:")
        A(f"s_mov_b64 exec, {full}")
        A(f"s_branch {Lc}")
        A(f"{Ld}:")
    def sum4(base, n, stride, out):
        for k, off in enumerate((0, 2)):
            for i in range(n):
                r = base + stride * i + off
                if i == 0:
                    A(f"v_lshlrev_b32 v{out+2*k}, 16, v{r}"); A(f"v_and_b32 v{out+2*k+1}, 0xffff0000, v{r}")
                else:
                    A(f"v_lshlrev_b32 v2, 16, v{r}"); A(f"v_and_b32 v3, 0xffff0000, v{r}")
                    A(f"v_add_f32 v{out+2*k}, v{out+2*k}, v2"); A(f"v_add_f32 v{out+2*k+1}, v{out+2*k+1}, v3")
    def unitpos(dst, u):
        A(f"v_lshrrev_b32 v2, 3, {u}"); A(f"v_lshlrev_b32 {dst}, 6, v2")
        A(f"v_and_b32 v2, 3, {u}"); A(f"v_lshl_add_u32 {dst}, v2, 4, {dst}")
        A(f"v_bfe_u32 v2, {u}, 2, 1"); A(f"v_lshl_add_u32 {dst}, v2, 3, {dst}")

    A("L_red:")
    srd(44, 38, WSZ)
    srd(64, 34, 16384)
    A(f"v_mov_b32 v3, {FL}")
    A(f"ds_read_b32 v15, v3 offset:{9*256}")
    A("v_lshlrev_b32 v28, 4, v1")
    A(f"s_mul_i32 s56, s2, {FBLK}"); A(f"s_add_u32 s56, s56, {FP}"); A("s_add_u32 s57, s56, 4096")
    if diag: A("v_mov_b32 v163, 0")
    if ea < 99 or eb < 99: A("s_branch L_redend")
    A("v_and_b32 v2, 7, v1"); A("v_lshlrev_b32 v30, 3, v2"); A("v_lshrrev_b32 v2, 4, v1"); A("v_lshl_add_u32 v30, v2, 1, v30")
    A("s_lshr_b32 s12, s7, 2"); A("s_lshl_b32 s12, s12, 11"); A("s_lshl_b32 s8, s6, 8"); A("s_add_u32 s12, s12, s8")
    A("s_and_b32 s8, s7, 3"); A("s_lshl_b32 s8, s8, 6"); A("s_add_u32 s12, s12, s8")
    def xred():
        A("v_permlane32_swap_b32 v64, v66"); A("v_permlane32_swap_b32 v65, v67")
        A("v_add_f32 v64, v64, v66"); A("v_add_f32 v65, v65, v67")
        A("v_permlane16_swap_b32 v64, v65"); A("v_add_f32 v64, v64, v65")
        A("v_add_f32_dpp v64, v64, v64 row_ror:8 row_mask:0xf bank_mask:0xf")
    def gate(out, gv):
        A("v_cvt_pk_bf16_f32 v64, v64, v64"); A("v_lshlrev_b32 v64, 16, v64")
        A(f"v_mul_f32 v64, {gv}, v64")
        A("v_cvt_pk_bf16_f32 v64, v64, v64"); A(f"v_lshlrev_b32 {out}, 16, v64")
    A(f"v_add_u32 v31, {RB}, v28")
    wait_lds("v29", 8, off=256)
    stamp(4)
    if dtail: A("s_branch L_redend")
    A("ds_read_b128 v[64:67], v31"); A("s_waitcnt lgkmcnt(0)")
    A("v_add_f32 v64, v64, v65"); A("v_add_f32 v66, v66, v67"); A("v_add_f32 v64, v64, v66")
    A("v_cvt_pk_bf16_f32 v26, v64, v64")
    A("s_mov_b32 exec_lo, 0x00ff00ff"); A("s_mov_b32 exec_hi, 0x00ff00ff")
    A("buffer_store_short v26, v30, s[64:67], s12 offen")
    A("s_cmp_lg_u32 s2, 0"); A("s_cbranch_scc1 L_redend")
    A("s_mov_b64 exec, 1")
    A("v_mov_b32 v2, 0")
    A("buffer_store_dword v15, v2, s[44:47], 0 offen sc1")
    A("L_redend:")
    stamp(5)
    if diag:
        A("s_memtime s[92:93]"); A("s_waitcnt lgkmcnt(0)"); A("s_sub_u32 s92, s92, s90"); A("s_mov_b64 exec, -1"); A("v_mov_b32 v164, s92")
    dump_stamps(10, ["v163", "v164"], final=True)
    A("s_endpgm")

    A("L_notloader:")
    srd(44, 38, WSZ)
    A("v_and_b32 v4, 15, v1"); A("v_lshrrev_b32 v5, 4, v1"); A("v_and_b32 v6, 7, v1")
    A(f"v_mov_b32 v7, {FL}")
    A("v_and_b32 v2, 3, v1"); A("v_mul_u32_u24 v2, 0x104, v2"); A(f"v_add_u32 v8, {FL+256}, v2")
    A("v_lshrrev_b32 v2, 1, v5"); A("v_xor_b32 v2, v2, v6"); A("v_lshlrev_b32 v2, 4, v2"); A("v_lshl_add_u32 v10, v6, 9, v2")
    A("v_and_b32 v2, 1, v5"); A("v_lshl_add_u32 v10, v2, 3, v10"); A(f"v_add_u32 v10, {XS}, v10")
    A("v_lshrrev_b32 v11, 2, v1")
    A("v_and_b32 v12, 3, v1"); A("v_lshlrev_b32 v12, 3, v12")
    A("s_mov_b32 s48, 0x00ff00ff"); A("s_mov_b32 s49, 0x00ff00ff")
    A("s_mov_b32 s50, 0xff00ff00"); A("s_mov_b32 s51, 0xff00ff00")
    A("s_sub_u32 s9, s3, 1"); A("s_and_b32 s9, s9, 3")
    A("v_lshrrev_b32 v2, 1, v11"); A("v_and_b32 v2, 3, v2"); A("v_xor_b32 v2, s9, v2"); A("v_lshlrev_b32 v2, 5, v2")
    A("v_lshl_add_u32 v13, v11, 7, v2"); A("v_add_u32 v13, v13, v12")
    A("v_lshlrev_b32 v14, 14, v6"); A("v_lshl_add_u32 v14, v5, 4, v14")
    A("s_lshl_b32 s52, s4, 17"); A("s_lshl_b32 s8, s5, 8"); A("s_add_u32 s52, s52, s8"); A("s_lshl_b32 s8, s9, 6"); A("s_add_u32 s52, s52, s8")
    A("v_and_b32 v2, 7, v11"); A("v_lshlrev_b32 v2, 5, v2"); A("v_lshl_add_u32 v28, v11, 8, v2"); A("v_add_u32 v28, v28, v12")
    A("s_lshl_b32 s8, s9, 6"); A("v_xor_b32 v150, s8, v28"); A("v_xor_b32 v151, 32, v150")
    A("v_mul_u32_u24 v152, 544, v6"); A("v_lshl_add_u32 v152, v5, 4, v152"); A(f"v_add_u32 v152, {OB}, v152")
    A("v_lshrrev_b32 v2, 1, v6"); A("v_lshlrev_b32 v153, 18, v2"); A("v_and_b32 v2, 1, v6"); A("v_lshl_add_u32 v153, v2, 14, v153")
    A("v_lshl_add_u32 v153, v5, 4, v153"); A("v_lshrrev_b32 v2, 3, v4"); A("v_lshl_add_u32 v153, v2, 6, v153")
    A("s_lshl_b32 s66, s6, 3"); A("s_add_u32 s66, s66, s9"); A("s_lshl_b32 s66, s66, 5"); A("s_add_u32 s66, s66, s7"); A("s_lshl_b32 s66, s66, 7")
    A(f"s_add_u32 s66, s66, {OP}")
    A("v_and_b32 v3, 31, v1"); unitpos("v154", "v3")
    A("v_lshrrev_b32 v2, 5, v1"); A("v_mul_u32_u24 v2, 544, v2"); A("v_add_u32 v154, v154, v2")
    A("s_mul_i32 s8, s9, 1088"); A(f"s_add_u32 s8, s8, {OB}"); A("v_add_u32 v154, s8, v154")
    A("s_lshl_b32 s8, s9, 10"); A(f"s_add_u32 s8, s8, {TB}"); A("v_lshl_add_u32 v147, v1, 4, s8")
    A("s_cmp_ge_u32 s5, 56"); A("s_cselect_b32 s67, 100, 64"); A("s_cselect_b32 s8, 0, 68"); A("s_add_u32 s67, s67, s8")
    if diag:
        A("v_mov_b32 v161, 0"); A("v_mov_b32 v162, 0"); A("v_mov_b32 v163, 0")
    A("s_cmp_ge_u32 s3, 5"); A("s_cbranch_scc1 L_B")

    def p1_run():
        for ks in range(8):
            A(f"ds_read_b64_tr_b16 v[{64+4*ks}:{65+4*ks}], v13 offset:{ks*4096}")
            A(f"ds_read_b64_tr_b16 v[{66+4*ks}:{67+4*ks}], v13 offset:{ks*4096 + 2048}")
        for ks in range(8):
            A(f"s_waitcnt lgkmcnt({min(15, 14 - 2*ks)})")
            c = "0" if ks == 0 else "v[16:19]"
            A(f"v_mfma_f32_16x16x32_bf16 v[16:19], v[{64+4*ks}:{67+4*ks}], v[{32+4*ks}:{35+4*ks}], {c}")
        A("v_cvt_pk_bf16_f32 v20, v16, v17"); A("v_cvt_pk_bf16_f32 v22, v18, v19")
        A("s_mov_b64 exec, s[48:49]")
        A("buffer_store_dwordx4 v[20:23], v14, s[44:47], s52 offen sc1")
        A("s_mov_b64 exec, -1")
    def xfrags():
        if xoff: wait_lds("v8", 1)
        else: wait_lds("v7", 4)
        for var in range(4):
            if var: A(f"v_xor_b32 v3, {var*32}, v10")
            for kk in range(4):
                ks = kk*2 + (var >> 1); hh = var & 1
                A(f"ds_read_b64 v[{32+4*ks+2*hh}:{33+4*ks+2*hh}], {'v3' if var else 'v10'} offset:{kk*128}")
    def get_mode():
        wait_lds("v7", 1, off=11*256)
        A("v_readfirstlane_b32 s53, v2")
        A("v_lshl_add_u32 v3, v6, 3, v7"); A(f"ds_read_b64 v[164:165], v3 offset:{10*256}")
        A("v_mov_b32 v157, v15"); A("v_mov_b32 v159, v15")
    def publish_final(acc, glob=False):
        A(f"v_cvt_pk_bf16_f32 v16, v{acc}, v{acc+1}"); A(f"v_cvt_pk_bf16_f32 v17, v{acc+2}, v{acc+3}")
        A(f"v_cvt_pk_bf16_f32 v18, v{acc+4}, v{acc+5}"); A(f"v_cvt_pk_bf16_f32 v19, v{acc+6}, v{acc+7}")
        A("v_cndmask_b32 v156, v16, v18, s[50:51]"); A("v_cndmask_b32 v158, v17, v19, s[50:51]")
        if glob:
            A("buffer_store_dwordx4 v[156:159], v153, s[44:47], s66 offen sc1"); return
        Lg = A.lab("F"); Le = Lg + "e"
        A("s_cmp_eq_u32 s53, 2"); A(f"s_cbranch_scc0 {Lg}")
        A("buffer_store_dwordx4 v[156:159], v153, s[44:47], s66 offen")
        A(f"s_branch {Le}")
        A(f"{Lg}:")
        A("buffer_store_dwordx4 v[156:159], v153, s[44:47], s66 offen sc1")
        A(f"{Le}:")

    A("s_load_dword s40, s[38:39], 0")
    A(f"s_add_u32 s52, s52, {QP}")
    A("s_and_b32 s10, s7, 24"); A("s_add_u32 s10, s10, s6")
    A("s_lshr_b32 s11, s10, 2")
    A("s_and_b32 s12, s10, 3")
    A("s_and_b32 s13, s7, 7")
    A("v_xor_b32 v2, v5, v4"); A("v_lshlrev_b32 v2, 4, v2"); A("v_lshl_add_u32 v24, v4, 8, v2")
    A("s_lshl_b32 s8, s9, 13"); A(f"s_add_u32 s8, s8, {R1}"); A("v_add_u32 v24, s8, v24")
    A("v_xor_b32 v25, 64, v24"); A("v_xor_b32 v26, 0x80, v24"); A("v_xor_b32 v27, 0xc0, v24")
    A(f"v_add_u32 v148, {R2}, v150"); A(f"v_add_u32 v149, {R2}, v151")
    A("s_lshr_b32 s14, s13, 1"); A("s_xor_b32 s14, s14, s9"); A("s_lshl_b32 s14, s14, 3"); A("s_add_u32 s14, s14, 44")
    A("v_lshlrev_b32 v29, 4, v1")
    A("s_lshl_b32 s56, s11, 14"); A("s_lshl_b32 s8, s12, 12"); A("s_add_u32 s56, s56, s8"); A("s_lshl_b32 s8, s9, 10"); A("s_add_u32 s56, s56, s8")
    A(f"s_add_u32 s56, s56, {QP}"); A("s_add_u32 s57, s56, 0x20000"); A("s_add_u32 s58, s56, 0x40000"); A("s_add_u32 s59, s56, 0x60000")
    A("v_lshrrev_b32 v2, 5, v1"); A("v_mul_u32_u24 v2, 288, v2"); A("v_and_b32 v3, 31, v1"); A("v_lshl_add_u32 v30, v3, 3, v2")
    A("s_mul_i32 s8, s9, 576"); A(f"s_add_u32 s8, s8, {QB}"); A("v_add_u32 v30, s8, v30")
    A("v_mul_u32_u24 v31, 288, v6"); A("v_lshl_add_u32 v31, v5, 4, v31"); A(f"v_add_u32 v31, {QB}, v31")
    A(f"v_add_u32 v106, {PB}, v29"); A("s_lshl_b32 s8, s9, 10"); A("v_add_u32 v104, s8, v106")
    A("v_lshlrev_b32 v107, 5, v6"); A(f"v_add_u32 v107, {ST}, v107"); A("s_lshl_b32 s8, s9, 2"); A("v_add_u32 v105, s8, v107")
    A("v_lshrrev_b32 v2, 3, v4")
    A("v_lshlrev_b32 v108, 12, v6"); A("v_lshl_add_u32 v108, v5, 4, v108"); A("v_lshl_add_u32 v108, v2, 6, v108")
    A("v_lshlrev_b32 v109, 6, v6")
    A("s_lshl_b32 s8, s9, 1"); A("s_lshl_b32 s42, 3, s8"); A("s_mov_b32 s43, 0")
    A("s_lshl_b32 s84, s10, 15"); A("s_lshl_b32 s8, s9, 7"); A("s_add_u32 s84, s84, s8"); A(f"s_add_u32 s84, s84, {OP}")
    A("s_lshl_b32 s8, s13, 9"); A("s_add_u32 s60, s84, s8")
    A("s_lshl_b32 s8, s13, 12"); A("s_add_u32 s84, s84, s8")
    A("s_lshl_b32 s85, s10, 9"); A(f"s_add_u32 s85, s85, {LSE}")
    A("s_lshl_b32 s8, s13, 3"); A("s_add_u32 s61, s85, s8")
    A("s_lshl_b32 s8, s13, 6"); A("s_add_u32 s85, s85, s8")
    A("v_lshrrev_b32 v2, 3, v1"); A("v_lshlrev_b32 v144, 9, v2"); A("v_lshl_add_u32 v144, v6, 4, v144"); A("v_lshlrev_b32 v145, 3, v2")
    A("s_lshl_b32 s86, s12, 3"); A("s_add_u32 s86, s86, s13"); A("s_lshl_b32 s86, s86, 3"); A("s_add_u32 s86, s86, s11"); A("s_lshl_b32 s86, s86, 2")
    A("s_add_u32 s86, s86, s9"); A("s_lshl_b32 s86, s86, 7"); A(f"s_add_u32 s86, s86, {OF}")
    A("v_lshrrev_b32 v2, 5, v1"); A("v_lshlrev_b32 v146, 3, v2"); A("v_lshl_add_u32 v146, v6, 4, v146")
    A("s_lshl_b32 s87, s7, 2"); A("s_add_u32 s87, s87, s9"); A("s_lshl_b32 s87, s87, 10"); A(f"s_add_u32 s87, s87, {OF}")
    A(f"s_mov_b32 s64, {SCALE:#x}"); A(f"s_mov_b32 s65, {L2E:#x}")
    xfrags()
    A(f"s_add_u32 s40, s40, {TAGK:#x}")
    A("v_mov_b32 v15, s40"); A("v_mov_b32 v21, s40"); A("v_mov_b32 v23, s40")
    A(f"v_mov_b32 v3, {FL + 9*256}"); A("v_lshl_add_u32 v3, v1, 2, v3"); A("ds_write_b32 v3, v15")
    wait_lds("v7", 36)
    stamp(1)
    p1_run()
    flag(2)
    if opre == 2:
        A("buffer_load_dword v160, v144, s[44:47], s84 offen")
        A("buffer_load_dword v160, v145, s[44:47], s85 offen")
    stamp(2)
    def kpull():
        wait_lds("v7", "s14")
        for t in range(2):
            for s in range(4):
                A(f"ds_read_b128 v[{32+16*t+4*s}:{35+16*t+4*s}], v{24+s} offset:{t*4096}")
        A("s_waitcnt lgkmcnt(0)")
        flag(3)
    if not kmid: kpull()
    A("v_mov_b32 v111, v15")
    if ea == 0: kpull(); A("s_endpgm")
    wait_lds("v7", q_start)
    stamp(3)
    def amode():
        if kmid: kpull()
    gather([(64+4*sp, f"buffer_load_dwordx4 v[{64+4*sp}:{67+4*sp}], v29, s[44:47], s{56+sp} offen sc1") for sp in range(4)], cnt="v161", mid=amode)
    stamp(4)
    sum4(64, 4, 4, 16)
    A("v_cvt_pk_bf16_f32 v20, v16, v17"); A("v_cvt_pk_bf16_f32 v21, v18, v19")
    A("ds_write_b64 v30, v[20:21]")
    flag(4)
    wait_lds("v8", 4)
    A("ds_read_b32 v28, v7")
    for s in range(4):
        A(f"ds_read_b128 v[{64+4*s}:{67+4*s}], v31 offset:{s*64}")
    for s in range(4):
        A(f"s_waitcnt lgkmcnt({3-s})")
        for t in range(2):
            c = "0" if s == 0 else f"v[{16+4*t}:{19+4*t}]"
            A(f"v_mfma_f32_16x16x32_bf16 v[{16+4*t}:{19+4*t}], v[{32+16*t+4*s}:{35+16*t+4*s}], v[{64+4*s}:{67+4*s}], {c}")
    def vreads():
        for w in range(4):
            for q in range(2):
                f = 112 + (w*2 + q)*4
                A(f"ds_read_b64_tr_b16 v[{f}:{f+1}], v{148+q} offset:{w*8192}")
                A(f"ds_read_b64_tr_b16 v[{f+2}:{f+3}], v{148+q} offset:{w*8192 + 4096}")
    A("v_readfirstlane_b32 s15, v28")
    A("s_cmp_lt_i32 s15, 100"); A("s_cbranch_scc1 L_vlate")
    vreads()
    A("L_vlate:")
    A("s_nop 4")
    if mimic:
        for i in range(4):
            a, b = 16 + 2*i, 17 + 2*i
            A(f"v_cvt_pk_bf16_f32 v2, v{a}, v{b}")
            A(f"v_lshlrev_b32 v{a}, 16, v2"); A(f"v_and_b32 v{b}, 0xffff0000, v2")
            A(f"v_mul_f32 v{a}, s64, v{a}"); A(f"v_mul_f32 v{b}, s64, v{b}")
            A(f"v_cvt_pk_bf16_f32 v2, v{a}, v{b}")
            A(f"v_lshlrev_b32 v{a}, 16, v2"); A(f"v_and_b32 v{b}, 0xffff0000, v2")
    else:
        for i in range(8): A(f"v_mul_f32 v{16+i}, s64, v{16+i}")
    A("v_max3_f32 v2, v16, v17, v18"); A("v_max3_f32 v3, v19, v20, v21"); A("v_max3_f32 v2, v2, v22, v23"); A("v_max_f32 v2, v2, v3")
    A("v_mov_b32 v3, v2"); A("v_permlane16_swap_b32 v2, v3"); A("v_max_f32 v2, v2, v3")
    A("v_mov_b32 v3, v2"); A("v_permlane32_swap_b32 v2, v3"); A("v_max_f32 v2, v2, v3")
    A("v_mul_f32 v96, s65, v2")
    for i in range(8): A(f"v_fma_f32 v{16+i}, v{16+i}, s65, -v96")
    for i in range(8): A(f"v_exp_f32 v{16+i}, v{16+i}")
    for i in range(4): A(f"v_cvt_pk_bf16_f32 v{100+i}, v{16+2*i}, v{17+2*i}")
    A("ds_write_b128 v104, v[100:103]")
    A("v_add_f32 v2, v16, v17"); A("v_add_f32 v3, v18, v19"); A("v_add_f32 v2, v2, v20"); A("v_add_f32 v3, v3, v21")
    A("v_add_f32 v2, v2, v22"); A("v_add_f32 v3, v3, v23"); A("v_add_f32 v97, v2, v3")
    A("v_mov_b32 v3, v97"); A("v_permlane16_swap_b32 v97, v3"); A("v_add_f32 v97, v97, v3")
    A("v_mov_b32 v3, v97"); A("v_permlane32_swap_b32 v97, v3"); A("v_add_f32 v97, v97, v3")
    A("s_mov_b64 exec, 0xff")
    A("ds_write2_b32 v105, v96, v97 offset0:0 offset1:4")
    A("s_mov_b64 exec, -1")
    flag(5)
    stamp(5)
    A("s_cmp_ge_i32 s15, 100"); A("s_cbranch_scc1 L_vdone")
    wait_lds("v7", 100)
    vreads()
    A("L_vdone:")
    get_mode()
    wait_lds("v8", 5)
    for w in range(4): A(f"ds_read_b128 v[{64+4*w}:{67+4*w}], v106 offset:{w*1024}")
    A("ds_read_b128 v[16:19], v107"); A("ds_read_b128 v[20:23], v107 offset:16")
    for w in range(4):
        A(f"s_waitcnt lgkmcnt({5-w})")
        for q in range(2):
            f = 112 + (w*2 + q)*4; d = 32 + (w*2 + q)*4
            A(f"v_mfma_f32_16x16x32_bf16 v[{d}:{d+3}], v[{f}:{f+3}], v[{64+4*w}:{67+4*w}], 0")
    A("s_waitcnt lgkmcnt(0)")
    A("v_max3_f32 v2, v16, v17, v18"); A("v_max_f32 v2, v2, v19")
    for i in range(4): A(f"v_sub_f32 v{16+i}, v{16+i}, v2")
    for i in range(4): A(f"v_exp_f32 v{16+i}, v{16+i}")
    A("v_mul_f32 v3, v16, v20")
    for i in range(1, 4): A(f"v_fmac_f32 v3, v{16+i}, v{20+i}")
    A("v_rcp_f32 v20, v3"); A("v_log_f32 v21, v3")
    for i in range(4): A(f"v_mul_f32 v{16+i}, v{16+i}, v20")
    A("v_add_f32 v110, v2, v21")
    for k in range(8): A(f"v_mul_f32 v{80+k}, v16, v{32+k}")
    for w in range(1, 4):
        for k in range(8): A(f"v_fmac_f32 v{80+k}, v{16+w}, v{32+8*w+k}")
    A("v_cvt_pk_bf16_f32 v16, v80, v81"); A("v_cvt_pk_bf16_f32 v17, v82, v83"); A("v_cvt_pk_bf16_f32 v18, v84, v85"); A("v_cvt_pk_bf16_f32 v19, v86, v87")
    A("v_cndmask_b32 v156, v16, v18, s[50:51]"); A("v_cndmask_b32 v158, v17, v19, s[50:51]")
    if ea == 1: A("s_endpgm")
    if opg == 1: A("s_branch L_opg")
    A("s_cmp_eq_u32 s53, 2"); A("s_cbranch_scc0 L_opg")
    A("buffer_store_dwordx4 v[156:159], v108, s[44:47], s60 offen")
    A("s_mov_b64 exec, s[42:43]")
    A("buffer_store_dwordx2 v[110:111], v109, s[44:47], s61 offen" + (" sc1" if opg == 2 else ""))
    A("s_branch L_opd")
    A("L_opg:")
    A("buffer_store_dwordx4 v[156:159], v108, s[44:47], s60 offen sc1")
    A("s_mov_b64 exec, s[42:43]")
    A("buffer_store_dwordx2 v[110:111], v109, s[44:47], s61 offen sc1")
    A("L_opd:")
    A("s_mov_b64 exec, -1")
    stamp(6)
    def ring(K, st, mk, nreg, tags, base, dst, cnt):
        L = A.lab("R")
        nl = len(mk(base))
        for k in range(K):
            if k and pp:
                if k == 1:
                    A("ds_read_b32 v2, v7"); A("s_add_u32 s14, s67, 60"); A("s_waitcnt lgkmcnt(0)"); A("v_readfirstlane_b32 s13, v2")
                A(f"s_add_u32 s13, s13, {pp}"); A("s_min_u32 s13, s13, s14")
                wait_lds("v7", "s13")
            elif k and st: A(f"s_sleep {st}")
            for t in mk(base + k*nreg): A(t)
        A(f"{L}:")
        for k in range(K):
            r = base + k*nreg
            if diag: A(f"v_add_u32 {cnt}, 1, {cnt}")
            A(f"s_waitcnt vmcnt({nl*(K-1)})")
            A(f"v_xor_b32 v2, v{r+tags[0]}, v15")
            for tg in tags[1:]: A(f"v_bitop3_b32 v2, v2, v{r+tg}, v15 bitop3:0xf6")
            A("v_cmp_ne_u32 vcc, 0, v2")
            A(f"s_cbranch_vccz {L}_{k}")
            for t in mk(r): A(t)
        A("s_add_u32 s41, s41, 32"); A(f"s_cmp_lt_u32 s41, {SPIN_LIMIT}"); A(f"s_cbranch_scc1 {L}")
        for k in range(K):
            r = base + k*nreg
            A(f"{L}_{k}:")
            for d, o in dst: A(f"v_mov_b32 v{d}, v{r+o}")
            if k < K - 1: A(f"s_branch {L}_e")
        A(f"{L}_e:")
    if ea == 2: A("s_endpgm")
    if lh:
        A("s_add_u32 s54, s38, s85"); A("s_addc_u32 s55, s39, 0")
        L = A.lab("P"); Ld = L + "d"; Lr = L + "r"
        A(f"{L}:")
        A("s_load_dwordx16 s[16:31], s[54:55], 0 glc")
        A("s_waitcnt lgkmcnt(0)")
        for i in range(8):
            A(f"s_cmp_eq_u32 s{17+2*i}, s40"); A(f"s_cbranch_scc0 {Lr}")
        A(f"s_branch {Ld}")
        A(f"{Lr}:")
        spin_tail(L, Ld, 16)
    if st0: A(f"s_sleep {st0}")
    ring(K1, st1, lambda r: [f"buffer_load_dwordx4 v[{r}:{r+3}], v144, s[44:47], s84 offen {lf}", f"buffer_load_dwordx2 v[{r+4}:{r+5}], v145, s[44:47], s85 offen {lf}"],
         6, (1, 3, 5), 112, [(16, 0), (17, 2), (18, 4)], "v162")
    stamp(7)
    A("v_max_f32_dpp v2, v18, v18 row_ror:8 row_mask:0xf bank_mask:0xf")
    A("v_lshlrev_b32 v96, 16, v16"); A("v_and_b32 v97, 0xffff0000, v16")
    A("v_mov_b32 v3, v2"); A("v_lshlrev_b32 v98, 16, v17"); A("v_and_b32 v99, 0xffff0000, v17")
    A("v_permlane16_swap_b32 v2, v3"); A("v_max_f32 v2, v2, v3")
    A("v_mov_b32 v3, v2"); A("v_permlane32_swap_b32 v2, v3"); A("v_max_f32 v2, v2, v3")
    A("v_sub_f32 v18, v18, v2"); A("v_exp_f32 v18, v18")
    for k in range(4): A(f"v_mul_f32 v{96+k}, v18, v{96+k}")
    A("v_mov_b32 v19, v18")
    A("v_permlane32_swap_b32 v96, v98"); A("v_permlane32_swap_b32 v97, v99"); A("v_permlane32_swap_b32 v18, v19")
    A("v_add_f32 v96, v96, v98"); A("v_add_f32 v97, v97, v99"); A("v_add_f32 v18, v18, v19")
    A("v_mov_b32 v98, v96"); A("v_mov_b32 v99, v97"); A("v_mov_b32 v19, v18")
    A("v_permlane16_swap_b32 v96, v98"); A("v_permlane16_swap_b32 v97, v99"); A("v_permlane16_swap_b32 v18, v19")
    A("v_add_f32 v18, v18, v19"); A("v_add_f32 v96, v96, v98"); A("v_add_f32 v97, v97, v99")
    for r in (18, 96, 97): A(f"v_add_f32_dpp v{r}, v{r}, v{r} row_ror:8 row_mask:0xf bank_mask:0xf")
    A("v_rcp_f32 v18, v18")
    A("v_mul_f32 v96, v96, v18"); A("v_mul_f32 v97, v97, v18")
    A("v_cvt_pk_bf16_f32 v110, v96, v97")
    A("s_mov_b32 exec_lo, 0xff"); A("s_mov_b32 exec_hi, 0xff")
    A("buffer_store_dwordx2 v[110:111], v146, s[44:47], s86 offen sc1")
    A("s_mov_b64 exec, 1")
    A("s_lshl_b32 s8, s6, 2"); A("s_add_u32 s8, s8, s9"); A("s_lshl_b32 s8, s8, 5"); A("s_add_u32 s8, s8, s7"); A("s_lshl_b32 s8, s8, 2"); A(f"s_add_u32 s8, s8, {DT}")
    A("s_cmp_eq_u32 s53, 2"); A("s_cbranch_scc0 L_dtg")
    A("buffer_store_dword v15, v29, s[44:47], s8 offen")
    A("s_branch L_dtd")
    A("L_dtg:")
    A("buffer_store_dword v15, v29, s[44:47], s8 offen sc1")
    A("L_dtd:")
    A("s_mov_b64 exec, -1")
    A("s_add_u32 s14, s67, 32")
    def wofr():
        wait_lds("v7", "s14")
        for ks in range(4):
            for q in range(2):
                f = 64 + (ks*2 + q)*4
                A(f"ds_read_b64_tr_b16 v[{f}:{f+1}], v{150+q} offset:{R0 + ks*8192}")
                A(f"ds_read_b64_tr_b16 v[{f+2}:{f+3}], v{150+q} offset:{R0 + ks*8192 + 4096}")
    if ea == 3: A("s_endpgm")
    if wopre: wofr()
    if oh:
        A("s_add_u32 s54, s38, s87"); A("s_addc_u32 s55, s39, 0")
        L = A.lab("P"); Ld = L + "d"; Lr = L + "r"
        lines = range(8) if oh == 1 else (0, 4)
        if oh == 2:
            A("s_and_b32 s8, s6, 3"); A("s_lshl_b32 s8, s8, 7"); A("s_add_u32 s54, s54, s8"); A("s_addc_u32 s55, s55, 0")
        A(f"{L}:")
        for i in lines: A(f"s_load_dword s{16+i}, s[54:55], {i*128+4} glc")
        A("s_waitcnt lgkmcnt(0)")
        for i in lines:
            A(f"s_cmp_eq_u32 s{16+i}, s40"); A(f"s_cbranch_scc0 {Lr}")
        A(f"s_branch {Ld}")
        A(f"{Lr}:")
        if hint_sleep: A(f"s_sleep {hint_sleep}")
        spin_tail(L, Ld, 16)
    ring(K2, st2, lambda r: [f"buffer_load_dwordx4 v[{r}:{r+3}], v29, s[44:47], s87 offen sc1"], 4, (1, 3), 32, [(20, 0), (21, 2)], "v163")
    if ea == 4: A("s_endpgm")
    A("ds_write_b64 v154, v[20:21]")
    flag(6)
    stamp(8)
    if not wopre: wofr()
    wait_lds("v8", 6)
    stamp(9)
    for ks in range(4): A(f"ds_read_b128 v[{48+4*ks}:{51+4*ks}], v152 offset:{ks*64}")
    for ks in range(4):
        A(f"s_waitcnt lgkmcnt({3-ks})")
        for q in range(2):
            f = 64 + (ks*2 + q)*4
            c = "0" if ks == 0 else f"v[{136+4*q}:{139+4*q}]"
            A(f"v_mfma_f32_16x16x32_bf16 v[{136+4*q}:{139+4*q}], v[{f}:{f+3}], v[{48+4*ks}:{51+4*ks}], {c}")
    for k in range(4): A(f"v_cndmask_b32 v{16+k}, v{136+k}, v{140+k}, s[50:51]")
    for k in range(4): A(f"v_mul_f32 v{16+k}, v164, v{16+k}")
    A("ds_write_b128 v147, v[16:19]")
    flag(7)
    stamp(10)
    if not dtail:
        A(f"s_mul_i32 s56, s2, {FBLK}"); A("s_lshl_b32 s8, s9, 10"); A("s_add_u32 s56, s56, s8"); A(f"s_add_u32 s56, s56, {FP}")
        A("s_lshl_b32 s8, s9, 2"); A(f"s_add_u32 s8, s8, {RB}"); A("v_add_u32 v30, s8, v29")
        A("s_add_u32 s14, s67, 60")
        if bwait: wait_lds("v7", "s14")
        gather([(100, f"buffer_load_dwordx4 v[100:103], v29, s[44:47], s56 offen {lf}")], tb=104)
        sum4(100, 1, 4, 64)
        xred()
        A("ds_write_b32 v30, v64")
        flag(8)
    else:
        A("s_mul_i32 s8, s9, 96"); A("s_sub_u32 s56, s84, s8")
        A("v_xor_b32 v15, 0x80000000, v15")
        A("v_lshrrev_b32 v2, 1, v1"); A("v_lshlrev_b32 v30, 7, v2"); A("v_and_b32 v2, 1, v1"); A("v_lshl_add_u32 v30, v2, 4, v30")
        A("v_lshlrev_b32 v31, 3, v2"); A("v_lshl_add_u32 v31, v5, 1, v31")
        srd(88, 34, 16384)
        A("s_lshr_b32 s12, s7, 2"); A("s_lshl_b32 s12, s12, 11"); A("s_lshl_b32 s8, s6, 8"); A("s_add_u32 s12, s12, s8")
        A("s_and_b32 s8, s7, 3"); A("s_lshl_b32 s8, s8, 6"); A("s_add_u32 s12, s12, s8"); A("s_lshl_b32 s8, s9, 4"); A("s_add_u32 s12, s12, s8")
        A("s_add_u32 s14, s67, 60")
        if bwait: wait_lds("v7", "s14")
        gather([(100, f"buffer_load_dwordx4 v[100:103], v30, s[44:47], s56 offen {lf}")], tb=104)
        sum4(100, 1, 4, 64)
        xred()
        for r in (4, 2): A(f"v_add_f32_dpp v64, v64, v64 row_ror:{r} row_mask:0xf bank_mask:0xf")
        A("v_cvt_pk_bf16_f32 v64, v64, v64")
        A("s_mov_b32 exec_lo, 0x00030003"); A("s_mov_b32 exec_hi, 0x00030003")
        A(f"buffer_store_short v64, v31, s[88:91], s12 offen {of}")
        A("s_add_u32 s8, s2, s9"); A("s_cbranch_scc1 L_Aend"); A("s_cmp_lg_u32 s8, 0"); A("s_cbranch_scc1 L_Aend")
        A("s_mov_b64 exec, 1")
        A("v_mov_b32 v2, 0")
        A("buffer_store_dword v111, v2, s[44:47], 0 offen sc1")
        A("L_Aend:")
        if diag:
            A("s_mov_b64 exec, -1"); flag(8)
    stamp(11)
    dump_stamps(12, ["v161", "v162", "v163"])
    A("s_endpgm")

    A("L_B:")
    A("s_cmp_lg_u32 s9, 0"); A("s_cbranch_scc1 L_nogate")
    A("v_mov_b32 v16, 0"); A("v_mov_b32 v17, 0")
    for i in range(8):
        x, gw = 96 + i, 104 + i
        A(f"v_lshlrev_b32 v18, 16, v{x}"); A(f"v_and_b32 v19, 0xffff0000, v{x}")
        A(f"v_lshlrev_b32 v20, 16, v{gw}"); A(f"v_and_b32 v21, 0xffff0000, v{gw}")
        A("v_mul_f32 v18, v18, v20"); A("v_mul_f32 v19, v19, v21")
        A("v_cvt_pk_bf16_f32 v18, v18, v19")
        A("v_and_b32 v19, 0xffff0000, v18"); A("v_lshlrev_b32 v18, 16, v18")
        A("v_add_f32 v16, v16, v18"); A("v_add_f32 v17, v17, v19")
    A("v_add_f32 v16, v16, v17")
    for r in (1, 2, 4, 8): A(f"v_add_f32_dpp v16, v16, v16 row_ror:{r} row_mask:0xf bank_mask:0xf")
    for sw in ("v_permlane16_swap_b32", "v_permlane32_swap_b32"):
        A("v_mov_b32 v17, v16"); A(f"{sw} v16, v17"); A("v_add_f32 v16, v16, v17")
    A("v_cvt_pk_bf16_f32 v16, v16, v16"); A("v_lshlrev_b32 v16, 16, v16")
    A(f"v_mul_f32 v16, {0xBFB8AA3B:#x}, v16"); A("v_exp_f32 v16, v16"); A("v_add_f32 v16, 1.0, v16"); A("v_rcp_f32 v16, v16")
    A("v_cvt_pk_bf16_f32 v16, v16, v16"); A("v_lshlrev_b32 v16, 16, v16")
    A("v_sub_f32 v17, 1.0, v16"); A("v_cvt_pk_bf16_f32 v98, v16, v17")
    A(f"s_add_u32 s40, s40, {TAGK:#x}")
    A("s_getreg_b32 s8, hwreg(HW_REG_XCC_ID, 0, 4)")
    A("v_mov_b32 v96, s8"); A("v_mov_b32 v97, s40"); A("v_mov_b32 v99, s40")
    A("s_lshl_b32 s8, s6, 5"); A("s_add_u32 s8, s8, s7"); A("s_lshl_b32 s8, s8, 4"); A(f"s_add_u32 s8, s8, {XT}")
    A("v_mov_b32 v2, 0"); A("s_mov_b64 exec, 1")
    A("buffer_store_dwordx4 v[96:99], v2, s[44:47], s8 offen sc1")
    A("s_mov_b64 exec, -1")
    A("L_nogate:")
    A(f"s_add_u32 s52, s52, {HP}")
    A(f"v_add_u32 v13, {R3}, v13")
    A("s_mul_i32 s10, s5, 37"); A("s_lshr_b32 s10, s10, 8")
    A("s_mul_i32 s8, s10, 7"); A("s_sub_u32 s11, s5, s8")
    A("s_lshr_b32 s12, s11, 1")
    A("s_and_b32 s13, s11, 1"); A("s_min_u32 s8, s12, 1"); A("s_add_u32 s13, s13, s8")
    A("s_lshl_b32 s53, s10, 2"); A("s_add_u32 s53, s53, s12"); A("s_lshl_b32 s53, s53, 10")
    A("s_lshl_b32 s13, s13, 4"); A("s_lshl_b32 s8, s4, 2"); A("s_add_u32 s53, s53, s8"); A(f"s_add_u32 s53, s53, {HH}")
    A("v_lshrrev_b32 v2, 3, v1"); A("v_xor_b32 v2, 1, v2"); A("v_mul_u32_u24 v2, s13, v2"); A("v_lshl_add_u32 v24, v1, 7, v2")
    A("s_bitcmp1_b32 s11, 0"); A("s_mov_b32 s60, 0xff"); A("s_cselect_b32 s60, 0xffff, s60"); A("s_mov_b32 s61, 0")
    A("s_lshl_b32 s8, s2, 7"); A(f"s_add_u32 s8, s8, {HH}"); A("s_add_u32 s54, s38, s8"); A("s_addc_u32 s55, s39, 0")
    A("v_lshrrev_b32 v2, 5, v1"); A("v_lshlrev_b32 v2, 14, v2"); A("v_and_b32 v3, 31, v1"); A("v_lshl_add_u32 v29, v3, 4, v2")
    A("s_mul_i32 s56, s7, 448"); A("s_lshl_b32 s8, s9, 15"); A("s_add_u32 s56, s56, s8"); A(f"s_add_u32 s56, s56, {HP}")
    A("s_add_u32 s57, s56, 0x20000"); A("s_add_u32 s58, s56, 0x40000"); A("s_add_u32 s59, s56, 0x60000")
    A("s_mov_b32 s64, 0x0fffffff"); A("s_mov_b32 s65, 0x0fffffff")
    A("v_lshlrev_b32 v26, 2, v3")
    A("s_lshl_b32 s12, s6, 2"); A("s_and_b32 s8, s7, 3"); A("s_add_u32 s12, s12, s8"); A("s_lshl_b32 s12, s12, 7"); A(f"s_add_u32 s12, s12, {DT}")
    xfrags()
    wait_lds("v8", 2)
    A(f"ds_read_b32 v15, v7 offset:{9*256}")
    A("s_waitcnt lgkmcnt(0)")
    A("v_readfirstlane_b32 s42, v15")
    A("v_mov_b32 v21, v15"); A("v_mov_b32 v23, v15")
    A("s_mov_b32 s43, s42")
    if eb == 0: A("s_endpgm")
    A("s_cmp_lg_u32 s9, 1"); A("s_cbranch_scc1 L_nomode")
    wait_lds("v7", xt)
    A("s_lshl_b32 s8, s6, 9"); A(f"s_add_u32 s8, s8, {XT}")
    A("v_and_b32 v3, 31, v1"); A("v_lshlrev_b32 v25, 4, v3")
    A("buffer_load_dword v160, v26, s[44:47], s12 offen")
    gather([(96, "buffer_load_dwordx4 v[96:99], v25, s[44:47], s8 offen sc1")])
    A("v_lshlrev_b32 v100, 16, v98"); A("v_and_b32 v101, 0xffff0000, v98")
    A("v_lshl_add_u32 v2, v1, 3, v7"); A("s_mov_b64 exec, 0xff"); A(f"ds_write_b64 v2, v[100:101] offset:{10*256}"); A("s_mov_b64 exec, -1")
    A("s_getreg_b32 s8, hwreg(HW_REG_XCC_ID, 0, 4)")
    A("v_xor_b32 v3, s8, v96"); A("v_or_b32 v3, v3, v112")
    A("v_cmp_ne_u32 vcc, 0, v3")
    A("s_cmp_eq_u64 vcc, 0"); A(f"s_cselect_b32 s8, {1 if force_global else 2}, 1")
    A("v_mov_b32 v3, s8"); A(f"v_lshl_add_u32 v2, v1, 2, v7"); A(f"ds_write_b32 v2, v3 offset:{11*256}")
    A("L_nomode:")
    if fpre in (1, 3):
        A("s_cmp_lg_u32 s9, 2"); A("s_cbranch_scc1 L_nofpre")
        wait_lds("v7", fpt)
        A(f"s_mul_i32 s8, s2, {FBLK}"); A(f"s_add_u32 s8, s8, {FP}"); A("v_lshlrev_b32 v2, 7, v1")
        A("s_mov_b32 exec_hi, 0")
        A("buffer_load_dword v160, v2, s[44:47], s8 offen")
        A("s_mov_b64 exec, -1")
        A("L_nofpre:")
    if fpre == 2:
        wait_lds("v7", 1, off=11*256)
        A("v_readfirstlane_b32 s63, v2")
        for k in range(4): A(f"v_xor_b32 v{156+k}, 1, v15")
        A("s_cmp_eq_u32 s63, 2"); A("s_cbranch_scc0 L_nofpre")
        A("buffer_store_dwordx4 v[156:159], v153, s[44:47], s66 offen")
        A("L_nofpre:")
    if eb == 1: A("s_endpgm")
    A("s_cmp_ge_u32 s5, 56"); A("s_cbranch_scc1 L_Bnow1")
    wait_lds("v7", 132)
    stamp(1)
    p1_run()
    flag(2)
    A("s_cmp_lg_u32 s9, 0"); A("s_cbranch_scc1 L_Bnow1")
    wait_lds("v8", 2, off=1024)
    A("s_mov_b64 exec, s[60:61]")
    A("buffer_store_dword v15, v24, s[44:47], s53 offen sc1")
    A("s_mov_b64 exec, -1")
    A("L_Bnow1:")
    stamp(2)
    if eb == 2: A("s_endpgm")
    def w2fr():
        for ks in range(3):
            for q in range(2):
                f = 64 + (ks*2 + q)*4
                A(f"ds_read_b64_tr_b16 v[{f}:{f+1}], v{150+q} offset:{R1 + ks*8192}")
                A(f"ds_read_b64_tr_b16 v[{f+2}:{f+3}], v{150+q} offset:{R1 + ks*8192 + 4096}")
    A("s_add_u32 s14, s67, 56"); A("s_add_u32 s15, s67, 60")
    get_mode()
    wait_lds("v7", 124)
    A("s_add_u32 s8, s7, 1"); A("s_and_b32 s62, s8, 2")
    L = A.lab("P"); Ld = L + "d"; Lr = L + "r"
    A(f"{L}:")
    A("s_load_dwordx16 s[84:99], s[54:55], 0 glc")
    A("s_waitcnt lgkmcnt(0)")
    for i in range(4):
        A(f"s_cmp_eq_u64 s[{84+2*i}:{85+2*i}], s[42:43]"); A(f"s_cbranch_scc0 {Lr}")
    A("s_cmp_eq_u32 s62, 0"); A(f"s_cbranch_scc1 {Ld}")
    for i in range(4, 6):
        A(f"s_cmp_eq_u64 s[{84+2*i}:{85+2*i}], s[42:43]"); A(f"s_cbranch_scc0 {Lr}")
    A(f"s_branch {Ld}")
    A(f"{Lr}:")
    if hint_sleep: A(f"s_sleep {hint_sleep}")
    spin_tail(L, Ld, 16)
    stamp(3)
    if eb == 3: A("s_endpgm")
    A("s_mov_b64 exec, s[64:65]")
    gather([(32+4*i, f"buffer_load_dwordx4 v[{32+4*i}:{35+4*i}], v29, s[44:47], s{56+i} offen sc1") for i in range(4)], full="s[64:65]", cnt="v162")
    sum4(32, 4, 4, 16)
    for k in range(4): A(f"v_max_f32 v{16+k}, 0, v{16+k}")
    A("v_cvt_pk_bf16_f32 v20, v16, v17"); A("v_cvt_pk_bf16_f32 v21, v18, v19")
    A("ds_write_b64 v154, v[20:21] offset:256")
    A("s_mov_b64 exec, -1")
    flag(3)
    stamp(4)
    if eb == 4: A("s_endpgm")
    def bfin():
        if bpre:
            A("ds_read_b32 v2, v7"); A("s_waitcnt lgkmcnt(0)"); A("v_readfirstlane_b32 s13, v2")
            A("s_cmp_lt_i32 s13, s14"); A("s_cbranch_scc1 L_w2no")
            w2fr()
            A("L_w2no:")
        wait_lds("v8", 3, off=1024)
        for ks in range(3): A(f"ds_read_b128 v[{32+4*ks}:{35+4*ks}], v152 offset:{256 + ks*64}")
        A(f"ds_read_b64 v[44:45], v152 offset:{256 + 192}")
        if bpre:
            A("s_cmp_ge_i32 s13, s14"); A("s_cbranch_scc1 L_w2have")
        wait_lds("v7", "s14")
        w2fr()
        A("L_w2have:")
        A("s_waitcnt lgkmcnt(0)")
        for ks in range(3):
            for q in range(2):
                f = 64 + (ks*2 + q)*4
                c = "0" if ks == 0 else f"v[{128+4*q}:{131+4*q}]"
                A(f"v_mfma_f32_16x16x32_bf16 v[{128+4*q}:{131+4*q}], v[{f}:{f+3}], v[{32+4*ks}:{35+4*ks}], {c}")
        A("s_lshl_b32 s8, s9, 8"); A("v_add_u32 v3, s8, v7")
        wait_lds("v3", 7, off=256)
        A("ds_read_b128 v[96:99], v147")
        wait_lds("v7", "s15")
        stamp(5)
        for q in range(2): A(f"ds_read_b64_tr_b16 v[{88+2*q}:{89+2*q}], v{150+q} offset:{R1 + 3*8192}")
        for q in range(2):
            A(f"s_waitcnt lgkmcnt({1-q})")
            A(f"v_mfma_f32_16x16x16_bf16 v[{128+4*q}:{131+4*q}], v[{88+2*q}:{89+2*q}], v[44:45], v[{128+4*q}:{131+4*q}]")
        for k in range(4): A(f"v_cndmask_b32 v{16+k}, v{128+k}, v{132+k}, s[50:51]")
        for k in range(4): A(f"v_fmac_f32 v{96+k}, v165, v{16+k}")
        A("v_cvt_pk_bf16_f32 v156, v96, v97"); A("v_cvt_pk_bf16_f32 v158, v98, v99")
    A("v_xor_b32 v157, 0x80000000, v15"); A("v_mov_b32 v159, v157")
    gather([(27, f"buffer_load_dword v27, v26, s[44:47], s12 offen {lf}")], tags=(0,), mid=bfin)
    A("s_cmp_eq_u32 s53, 2"); A("s_cbranch_scc0 L_fg")
    A("buffer_store_dwordx4 v[156:159], v153, s[44:47], s66 offen")
    A("s_branch L_fe")
    A("L_fg:")
    A("buffer_store_dwordx4 v[156:159], v153, s[44:47], s66 offen sc1")
    A("L_fe:")
    stamp(6)
    dump_stamps(7, ["v161", "v162"])
    A("s_endpgm")
    A("L_codeend:")

    body = A.render().replace(' nt lds', f' {sf} lds')
    out = HEADER
    out += f"; @launch grid=(256,1,1) block=(576,1,1) lds={LDS_BYTES}\n"
    out += '.amdgcn_target "amdgcn-amd-amdhsa--gfx950"\n.text\n'
    out += f".globl {NAME}\n.p2align 8\n.type {NAME},@function\n"
    out += body
    out += f""".section .rodata,"a"
.p2align 6
.amdhsa_kernel {NAME}
  .amdhsa_next_free_vgpr 168
  .amdhsa_next_free_sgpr 102
  .amdhsa_accum_offset 168
  .amdhsa_group_segment_fixed_size 0
  .amdhsa_kernarg_size 96
  .amdhsa_user_sgpr_count 2
  .amdhsa_user_sgpr_kernarg_segment_ptr 1
  .amdhsa_system_sgpr_workgroup_id_x 1
  .amdhsa_float_denorm_mode_32 3
.end_amdhsa_kernel
"""
    return out

if __name__ == "__main__":
    import json
    kw = json.loads(sys.argv[2]) if len(sys.argv) > 2 else {}
    open(sys.argv[1], "w").write(gen(**kw))
```

```python
import sys
sys.path.insert(0, "work")
from asmlib import Asm

NAME = "gated_mix__sliding_block_cached__dense_activation_relu__decode_kernel"
HEADER = open("gated_mix__sliding_block_cached__dense_activation_relu__decode.s.ref").read().split("; Override launch")[0]

XT = 0x1000
HH = 0x8000
LSE = 0x20000
DT = 0x3000
OF = 0x40000
QP = 0x80000
HP = 0x100000
OP = 0x180000
FP = 0x280000
FBLK = 4352
WS_USED = 0x500000
DIAG = 0x500000
R0, R1, R2, R3, M = 0x0, 0x8000, 0x10000, 0x18000, 0x20000
XS = M
QB = M + 0x1000
OB = M + 0x1A00
AC = M + 0x2C00
PB = AC
RB = AC + 0x1000
TB = AC + 0x2000
ST = M + 0x6E00
FL = M + 0x7000
LDS_BYTES = 160 * 1024
TAGK = 0x9E3779B1
SPIN_LIMIT = 400000
L2E = 0x3FB8AA3B
SCALE = 0x3DB504F3

def gen(D=(20, 20), diag=False, mimic=True, elim=0, q_start=68, lsleep=0, force_global=False, fpre=0, lrep=2, hint_sleep=0, rord=1, ackw=0, K1=1, K2=1, st1=6, st2=6, opre=0, oh=2, fpt=100, d2last=0, dwq=36, kmid=1, prof=None, pp=4, sf='nt', lprio=3, dtail=1, of='', st0=0, xoff=1, wopre=1, bpre=1, dkv=0, lh=0, opg=0, gt=12, xt=60, lf='sc1', bwait=1, ea=99, eb=99):
    A = Asm()
    DK = dkv or D[0]
    SP = [68, 70, 72, 74, 76, 78, 80, 82, 62, 100, 32, 36]
    role = ["A"]
    def stamp(i):
        if diag: A(f"s_memrealtime s[{SP[i]}:{SP[i]+1}]")
        if prof and prof == f"{role[0]}{i}": A("s_memrealtime s[68:69]")
    def profend():
        if prof and prof[0] == role[0]:
            L = A.lab("PR")
            A(f"{L}:"); A("s_memrealtime s[70:71]"); A("s_waitcnt lgkmcnt(0)"); A("s_sub_u32 s72, s70, s68"); A("s_cmp_lt_u32 s72, 2000"); A(f"s_cbranch_scc1 {L}")
    def dump_stamps(n, extra=(), final=False):
        if not diag: return
        A("s_waitcnt lgkmcnt(0)")
        A("s_mov_b64 exec, -1")
        A("v_mov_b32 v3, 0")
        for i in range(n): A(f"v_writelane_b32 v3, s{SP[i]}, {i}")
        for k, r in enumerate(extra):
            A(f"v_readfirstlane_b32 s60, {r}"); A(f"v_writelane_b32 v3, s60, {12+k}")
        A("s_lshl_b32 s60, s3, 6"); A(f"s_add_u32 s60, s60, {FL + 0xC00}"); A("v_lshl_add_u32 v2, v1, 2, s60")
        A("s_mov_b64 exec, 0xffff")
        A("ds_write_b32 v2, v3")
        if final:
            A("s_mov_b64 exec, -1")
            A("s_sleep 16")
            A("v_lshlrev_b32 v2, 4, v1"); A(f"v_add_u32 v3, {FL + 0xC00}, v2")
            A("ds_read_b128 v[16:19], v3"); A("s_waitcnt lgkmcnt(0)")
            A("s_lshl_b32 s60, s2, 10"); A(f"s_add_u32 s60, s60, {DIAG}")
            A("s_mov_b32 exec_hi, 0xf")
            A("buffer_store_dwordx4 v[16:19], v2, s[44:47], s60 offen")
    def spin_tail(L, Ld, inc=1):
        A(f"s_add_u32 s41, s41, {inc}"); A(f"s_cmp_lt_u32 s41, {SPIN_LIMIT}"); A(f"s_cbranch_scc1 {L}"); A(f"{Ld}:")
    def wait_lds(vaddr, th, vt="v2", off=0):
        L = A.lab("W"); Ld = L + "d"
        A(f"{L}:")
        A(f"ds_read_b32 {vt}, {vaddr}" + (f" offset:{off}" if off else ""))
        A("s_waitcnt lgkmcnt(0)")
        A(f"v_cmp_gt_i32 vcc, {th}, {vt}")
        A(f"s_cbranch_vccz {Ld}")
        if lsleep: A(f"s_sleep {lsleep}")
        spin_tail(L, Ld)
    def srd(d, b, size):
        A(f"s_mov_b32 s{d}, s{b}"); A(f"s_mov_b32 s{d+1}, s{b+1}"); A(f"s_mov_b32 s{d+2}, {size:#x}"); A(f"s_mov_b32 s{d+3}, 0x20000")
    WSZ = 0x800000 if diag else WS_USED

    A(f"{NAME}:")
    A("s_cmp_ge_u32 s2, 256")
    A("s_cbranch_scc1 L_exit")
    A("v_readfirstlane_b32 s3, v0")
    stamp(0)
    A("v_and_b32 v1, 63, v0")
    A("s_mov_b32 s41, 0")
    A("s_lshr_b32 s4, s2, 6")
    A("s_and_b32 s5, s2, 63")
    A("s_and_b32 s6, s2, 7")
    A("s_lshr_b32 s7, s2, 3")
    A("s_lshr_b32 s3, s3, 6")
    A("s_cbranch_scc0 L_loader")
    A("s_getpc_b64 s[54:55]")
    A("L_pc:")
    A("v_subrev_u32 v2, 64, v0"); A("v_lshlrev_b32 v2, 7, v2"); A("v_min_u32 v2, L_codeend-L_pc-4, v2")
    A("global_load_dword v160, v2, s[54:55]")
    A("v_mov_b32 v3, 0")
    A(f"v_lshlrev_b32 v9, 2, v0"); A(f"v_add_u32 v9, {FL}, v9")
    A(f"v_lshlrev_b32 v2, 2, v1"); A(f"v_add_u32 v2, {FL}, v2")
    A("ds_write_b32 v9, v3"); A("ds_write_b32 v2, v3"); A(f"ds_write_b32 v2, v3 offset:{11*256}")
    A("s_waitcnt lgkmcnt(0)")
    A("s_barrier")
    if elim == 1: A("s_endpgm")
    A("s_load_dwordx16 s[16:31], s[0:1], 0")
    A("s_load_dwordx8 s[32:39], s[0:1], 64")
    if fpre == 4:
        A("s_waitcnt lgkmcnt(0)")
        A("s_cmp_lg_u32 s3, 8"); A("s_cbranch_scc1 L_nf4")
        A(f"s_mul_i32 s8, s2, {FBLK}"); A(f"s_add_u32 s8, s8, {FP}"); A("v_lshl_add_u32 v2, v1, 7, s8")
        A("global_load_dword v160, v2, s[38:39]")
        A("L_nf4:")
    if xoff:
        A("s_cmp_gt_u32 s3, 4"); A("s_cbranch_scc1 L_nx")
        A("v_lshrrev_b32 v3, 5, v0"); A("v_subrev_u32 v3, 2, v3")
        A("v_and_b32 v2, 31, v1"); A("v_xor_b32 v2, v2, v3"); A("v_lshlrev_b32 v2, 4, v2"); A("v_lshl_add_u32 v2, v3, 11, v2")
        A("s_lshl_b32 s8, s4, 9"); A("v_add_u32 v2, s8, v2")
        A("s_lshl_b32 s8, s3, 10"); A(f"s_add_u32 m0, s8, {XS - 1024}")
        A("s_waitcnt lgkmcnt(0)")
        A("global_load_lds_dwordx4 v2, s[16:17]")
        A("s_waitcnt vmcnt(0)")
        A("v_mov_b32 v2, 1"); A("ds_write_b32 v9, v2")
        A("L_nx:")
    A("s_cmp_lg_u32 s3, 5"); A("s_cbranch_scc1 L_ng5")
    A("s_and_b32 s8, s7, 7"); A("s_lshl_b32 s8, s8, 11"); A("v_lshlrev_b32 v2, 5, v1"); A("v_add_u32 v3, s8, v2")
    A("s_waitcnt lgkmcnt(0)")
    A("s_load_dword s40, s[38:39], 0")
    A("global_load_dwordx4 v[96:99], v3, s[16:17]"); A("global_load_dwordx4 v[100:103], v3, s[16:17] offset:16")
    A("global_load_dwordx4 v[104:107], v2, s[32:33]"); A("global_load_dwordx4 v[108:111], v2, s[32:33] offset:16")
    A("L_ng5:")
    A("s_waitcnt vmcnt(0) lgkmcnt(0)")
    A("s_branch L_notloader")

    A("L_loader:")
    role[0] = "L"
    A("s_load_dwordx16 s[16:31], s[0:1], 0")
    A("s_load_dwordx8 s[32:39], s[0:1], 64")
    A(f"s_setprio {lprio}")
    if diag: A("s_memtime s[90:91]")
    if not xoff:
        A("v_lshrrev_b32 v14, 5, v1"); A("v_and_b32 v15, 31, v1"); A("v_xor_b32 v15, v15, v14"); A("v_lshlrev_b32 v2, 11, v14"); A("v_lshl_add_u32 v4, v15, 4, v2")
        A("v_xor_b32 v17, 32, v4"); A("v_xor_b32 v18, 64, v4"); A("v_xor_b32 v19, 32, v18")
    A("v_lshrrev_b32 v13, 3, v1"); A("v_and_b32 v2, 6, v13"); A("v_and_b32 v3, 7, v1"); A("v_xor_b32 v3, v3, v2"); A("v_lshlrev_b32 v12, 4, v3")
    A("v_lshl_add_u32 v5, v13, 13, v12"); A("v_mov_b32 v6, v5"); A("v_mov_b32 v7, v5"); A("v_mov_b32 v8, v5")
    A("v_mul_u32_u24 v24, 0x1c00, v13"); A("v_add_u32 v24, v24, v12")
    A("v_lshrrev_b32 v2, 4, v1"); A("v_and_b32 v3, 15, v1"); A("v_xor_b32 v9, v3, v2"); A("v_lshlrev_b32 v9, 4, v9"); A("v_lshl_add_u32 v16, v2, 8, v9")
    A("v_lshlrev_b32 v9, 1, v2"); A("v_xor_b32 v9, v3, v9"); A("v_lshlrev_b32 v9, 4, v9"); A("v_lshl_add_u32 v20, v2, 8, v9")
    A("v_lshl_add_u32 v22, v2, 11, v9")
    A(f"v_mov_b32 v29, {FL}"); A("v_lshl_add_u32 v10, v1, 2, v29"); A("v_and_b32 v2, 3, v1"); A("v_mul_u32_u24 v2, 0x104, v2"); A("v_add_u32 v29, v2, v29")
    A("s_lshl_b32 s8, s4, 9")
    A("s_lshl_b32 s10, s5, 7"); A("s_lshl_b32 s9, s4, 21"); A("s_add_u32 s9, s9, s10")
    A(f"s_mul_i32 s42, s4, {256*7168}"); A("s_add_u32 s42, s42, s10")
    A("s_and_b32 s15, s7, 24"); A("s_add_u32 s15, s15, s6"); A("s_lshl_b32 s15, s15, 5"); A("s_and_b32 s12, s7, 7"); A("s_add_u32 s15, s15, s12")
    A("s_add_u32 s15, s15, 24"); A("s_lshl_b32 s15, s15, 15")
    A("s_lshl_b32 s14, s12, 12")
    A(f"s_mov_b32 m0, {XS}")
    A("s_movk_i32 s46, 0x4000"); A("s_mov_b32 s47, 0x20000"); A("s_mov_b32 s50, 0x800000"); A("s_mov_b32 s51, 0x20000")
    A(f"s_mov_b32 s43, {4 + 4 - (dwq or D[0])}"); A("s_mov_b32 s11, 0xfc00"); A("s_mov_b32 s13, 8")
    A("s_barrier")
    A("s_waitcnt lgkmcnt(0)")
    stamp(3)
    A("s_mov_b64 s[44:45], s[16:17]"); A("s_mov_b64 s[48:49], s[22:23]")
    for i in range(0 if xoff else 4):
        A(f"buffer_load_dwordx4 v{4 if i == 0 else 16+i}, s[44:47], s8 offen offset:{i*1024} lds")
        if i < 3: A("s_addk_i32 s8, 0xc00")
    A("s_mov_b32 m0, 0")
    A(f"s_call_b64 s[52:53], {'L_loop3' if dwq else 'L_loop'}")
    if dwq:
        A(f"s_add_i32 s43, s43, {dwq - DK}")
        if not xoff: A("s_waitcnt vmcnt(32)"); A("v_mov_b32 v11, 4"); A("ds_write_b32 v10, v11")
    stamp(6)
    A("s_mov_b64 s[48:49], s[18:19]"); A("s_mov_b32 s50, 0x2000000"); A("s_mov_b32 s9, s15"); A("s_mov_b32 s13, 8"); A(f"s_mov_b32 s10, {R1}")
    A("v_mov_b32 v5, v16"); A("v_xor_b32 v6, 64, v16"); A("v_xor_b32 v7, 0x80, v16"); A("v_xor_b32 v8, 64, v7")
    A("s_call_b64 s[52:53], L_loopx")
    stamp(7)
    A("s_mov_b64 s[48:49], s[20:21]"); A("s_mov_b32 s9, s15"); A("s_mov_b32 s13, 8")
    A("v_mov_b32 v5, v20"); A("v_xor_b32 v6, 0x80, v20"); A("v_mov_b32 v7, v20"); A("v_mov_b32 v8, v6")
    A("s_call_b64 s[52:53], L_loopx")
    stamp(9)
    if DK != D[0]: A(f"s_add_i32 s43, s43, {DK - D[0]}")
    A("s_cmp_ge_u32 s5, 56"); A("s_cbranch_scc1 L_now1")
    A(f"s_mov_b32 m0, {R3}"); A("s_mov_b32 s50, 0x700000")
    A("s_mov_b64 s[48:49], s[28:29]"); A("s_mov_b32 s9, s42"); A(f"s_mov_b32 s11, {8*7168-1024}"); A("s_mov_b32 s13, 8")
    A("v_mov_b32 v5, v24"); A("v_mov_b32 v6, v24"); A("v_mov_b32 v7, v24"); A("v_mov_b32 v8, v24")
    A("s_call_b64 s[52:53], L_loop")
    A("L_now1:")
    stamp(1)
    assert D[0] <= 32
    A("s_mov_b64 s[48:49], s[24:25]"); A("s_mov_b32 s50, 0x800000")
    A("s_lshl_b32 s9, s7, 10"); A("s_add_u32 s9, s9, s6"); A("s_lshl_b32 s9, s9, 8")
    A("s_movk_i32 s11, 0x1c00"); A("s_mov_b32 s13, 8")
    A("v_mov_b32 v5, v22"); A("v_xor_b32 v6, 0x80, v22"); A("v_mov_b32 v7, v22"); A("v_mov_b32 v8, v6")
    A("s_mov_b32 m0, 0")
    if not elim: wait_lds("v29", 3, off=256)
    L2 = 'L_loop2' if D[1] != D[0] else 'L_loop'
    if D[1] != D[0] and not d2last: A(f"s_add_i32 s43, s43, {D[0] - D[1]}")
    A(f"s_call_b64 s[52:53], {'L_loop' if d2last else L2}")
    if D[1] != D[0] and d2last: A(f"s_add_i32 s43, s43, {D[0] - D[1]}")
    A("s_mov_b64 s[48:49], s[30:31]"); A("s_mov_b32 s50, 0x700000")
    A("s_mul_i32 s9, s7, 0x380"); A("s_add_u32 s9, s9, s6"); A("s_lshl_b32 s9, s9, 8"); A("s_mov_b32 s13, 7")
    A(f"s_call_b64 s[52:53], {L2}")
    Dl = D[1]
    prev = Dl - 4
    for k in range(Dl - 4, -1, -4):
        if k % 8 != 4 and k != 0: continue
        A(f"s_waitcnt vmcnt({k})")
        if prev != k: A(f"s_add_i32 s43, s43, {prev - k}")
        prev = k
        A("v_mov_b32 v11, s43"); A("ds_write_b32 v10, v11")
    stamp(2)
    profend()
    if not elim and (diag or not dtail): A("s_branch L_red")
    A("L_exit:")
    A("s_endpgm")
    A("L_loopx:")
    A("s_xor_b32 m0, s10, s14"); A("s_xor_b32 s8, s9, s14")
    for u in range(4):
        A(f"s_waitcnt vmcnt({DK-1})")
        if u == 3:
            A("v_mov_b32 v11, s43"); A("ds_write_b32 v10, v11")
        A(f"buffer_load_dwordx4 v{5+u}, s[48:51], s8 offen offset:{u*1024} nt lds")
    A("s_addk_i32 s9, 0x1000"); A("s_addk_i32 s10, 0x1000"); A("s_add_i32 s43, s43, 4")
    A("s_sub_u32 s13, s13, 1"); A("s_cmp_lg_u32 s13, 0"); A("s_cbranch_scc1 L_loopx")
    A("s_setpc_b64 s[52:53]")
    for lab, Dd in (("L_loop3", dwq), ("L_loop", D[0]), ("L_loop2", D[1])):
        if lab == "L_loop2" and D[1] == D[0]: continue
        if lab == "L_loop3" and not dwq: continue
        A(f"{lab}:")
        for u in range(4):
            A(f"s_waitcnt vmcnt({Dd-1})")
            if u == 3:
                A("v_mov_b32 v11, s43"); A("ds_write_b32 v10, v11")
            A(f"buffer_load_dwordx4 v{5+u}, s[48:51], s9 offen offset:{u*1024} nt lds")
            A("s_add_u32 s9, s9, s11")
        A("s_addk_i32 s9, 0x1000"); A("s_add_u32 m0, m0, 0x1000"); A("s_add_i32 s43, s43, 4")
        A("s_sub_u32 s13, s13, 1"); A("s_cmp_lg_u32 s13, 0"); A(f"s_cbranch_scc1 {lab}")
        A("s_setpc_b64 s[52:53]")

    def flag(stage):
        A(f"v_mov_b32 v2, {stage}"); A("ds_write_b32 v9, v2")
    def gather(loads, full="-1", tb=112, mid=None, cnt=None, tags=(1, 3)):
        N = len(loads)
        L = A.lab("G"); Ld = L + "d"; Lc = L + "c"
        for d, t in loads: A(t)
        if mid: mid()
        A(f"{Lc}:")
        if diag and cnt: A(f"v_add_u32 {cnt}, 1, {cnt}")
        A("s_waitcnt vmcnt(0)")
        for i, (d, t) in enumerate(loads):
            A(f"v_xor_b32 v{tb+i}, v{d+tags[0]}, v15")
            if len(tags) > 1: A(f"v_bitop3_b32 v{tb+i}, v{tb+i}, v{d+tags[1]}, v15 bitop3:0xf6")
        if N == 1: A(f"v_cmp_ne_u32 vcc, 0, v{tb}")
        else:
            A(f"v_or_b32 v2, v{tb}, v{tb+1}")
            for i in range(2, N, 2): A(f"v_or3_b32 v2, v2, v{tb+i}, v{tb+i+1}")
            A("v_cmp_ne_u32 vcc, 0, v2")
        A(f"s_cbranch_vccz {Ld}")
        A("s_add_u32 s41, s41, 16"); A(f"s_cmp_ge_u32 s41, {SPIN_LIMIT}"); A(f"s_cbranch_scc1 {Ld}")
        for i in range(N): A(f"v_cmp_ne_u32 s[{16+2*i}:{17+2*i}], 0, v{tb+i}")
        for i, (d, t) in enumerate(loads):
            m = 16 + 2*i
            sk = A.lab("S")
            A(f"s_mov_b64 exec, s[{m}:{m+1}]"); A(f"s_cbranch_execz {sk}"); A(t); A(f"{sk}:")
        A(f"s_mov_b64 exec, {full}")
        A(f"s_branch {Lc}")
        A(f"{Ld}:")
    def sum4(base, n, stride, out):
        for k, off in enumerate((0, 2)):
            for i in range(n):
                r = base + stride * i + off
                if i == 0:
                    A(f"v_lshlrev_b32 v{out+2*k}, 16, v{r}"); A(f"v_and_b32 v{out+2*k+1}, 0xffff0000, v{r}")
                else:
                    A(f"v_lshlrev_b32 v2, 16, v{r}"); A(f"v_and_b32 v3, 0xffff0000, v{r}")
                    A(f"v_add_f32 v{out+2*k}, v{out+2*k}, v2"); A(f"v_add_f32 v{out+2*k+1}, v{out+2*k+1}, v3")
    def unitpos(dst, u):
        A(f"v_lshrrev_b32 v2, 3, {u}"); A(f"v_lshlrev_b32 {dst}, 6, v2")
        A(f"v_and_b32 v2, 3, {u}"); A(f"v_lshl_add_u32 {dst}, v2, 4, {dst}")
        A(f"v_bfe_u32 v2, {u}, 2, 1"); A(f"v_lshl_add_u32 {dst}, v2, 3, {dst}")

    A("L_red:")
    srd(44, 38, WSZ)
    srd(64, 34, 16384)
    A(f"v_mov_b32 v3, {FL}")
    A(f"ds_read_b32 v15, v3 offset:{9*256}")
    A("v_lshlrev_b32 v28, 4, v1")
    A(f"s_mul_i32 s56, s2, {FBLK}"); A(f"s_add_u32 s56, s56, {FP}"); A("s_add_u32 s57, s56, 4096")
    if diag: A("v_mov_b32 v163, 0")
    if ea < 99 or eb < 99: A("s_branch L_redend")
    A("v_and_b32 v2, 7, v1"); A("v_lshlrev_b32 v30, 3, v2"); A("v_lshrrev_b32 v2, 4, v1"); A("v_lshl_add_u32 v30, v2, 1, v30")
    A("s_lshr_b32 s12, s7, 2"); A("s_lshl_b32 s12, s12, 11"); A("s_lshl_b32 s8, s6, 8"); A("s_add_u32 s12, s12, s8")
    A("s_and_b32 s8, s7, 3"); A("s_lshl_b32 s8, s8, 6"); A("s_add_u32 s12, s12, s8")
    def xred():
        A("v_permlane32_swap_b32 v64, v66"); A("v_permlane32_swap_b32 v65, v67")
        A("v_add_f32 v64, v64, v66"); A("v_add_f32 v65, v65, v67")
        A("v_permlane16_swap_b32 v64, v65"); A("v_add_f32 v64, v64, v65")
        A("v_add_f32_dpp v64, v64, v64 row_ror:8 row_mask:0xf bank_mask:0xf")
    def gate(out, gv):
        A("v_cvt_pk_bf16_f32 v64, v64, v64"); A("v_lshlrev_b32 v64, 16, v64")
        A(f"v_mul_f32 v64, {gv}, v64")
        A("v_cvt_pk_bf16_f32 v64, v64, v64"); A(f"v_lshlrev_b32 {out}, 16, v64")
    A(f"v_add_u32 v31, {RB}, v28")
    wait_lds("v29", 8, off=256)
    stamp(4)
    if dtail: A("s_branch L_redend")
    A("ds_read_b128 v[64:67], v31"); A("s_waitcnt lgkmcnt(0)")
    A("v_add_f32 v64, v64, v65"); A("v_add_f32 v66, v66, v67"); A("v_add_f32 v64, v64, v66")
    A("v_cvt_pk_bf16_f32 v26, v64, v64")
    A("s_mov_b32 exec_lo, 0x00ff00ff"); A("s_mov_b32 exec_hi, 0x00ff00ff")
    A("buffer_store_short v26, v30, s[64:67], s12 offen")
    A("s_cmp_lg_u32 s2, 0"); A("s_cbranch_scc1 L_redend")
    A("s_mov_b64 exec, 1")
    A("v_mov_b32 v2, 0")
    A("buffer_store_dword v15, v2, s[44:47], 0 offen sc1")
    A("L_redend:")
    stamp(5)
    if diag:
        A("s_memtime s[92:93]"); A("s_waitcnt lgkmcnt(0)"); A("s_sub_u32 s92, s92, s90"); A("s_mov_b64 exec, -1"); A("v_mov_b32 v164, s92")
    dump_stamps(10, ["v163", "v164"], final=True)
    A("s_endpgm")

    A("L_notloader:")
    role[0] = "A"
    srd(44, 38, WSZ)
    A("v_and_b32 v4, 15, v1"); A("v_lshrrev_b32 v5, 4, v1"); A("v_and_b32 v6, 7, v1")
    A(f"v_mov_b32 v7, {FL}")
    A("v_and_b32 v2, 3, v1"); A("v_mul_u32_u24 v2, 0x104, v2"); A(f"v_add_u32 v8, {FL+256}, v2")
    A("v_lshrrev_b32 v2, 1, v5"); A("v_xor_b32 v2, v2, v6"); A("v_lshlrev_b32 v2, 4, v2"); A("v_lshl_add_u32 v10, v6, 9, v2")
    A("v_and_b32 v2, 1, v5"); A("v_lshl_add_u32 v10, v2, 3, v10"); A(f"v_add_u32 v10, {XS}, v10")
    A("v_lshrrev_b32 v11, 2, v1")
    A("v_and_b32 v12, 3, v1"); A("v_lshlrev_b32 v12, 3, v12")
    A("s_mov_b32 s48, 0x00ff00ff"); A("s_mov_b32 s49, 0x00ff00ff")
    A("s_mov_b32 s50, 0xff00ff00"); A("s_mov_b32 s51, 0xff00ff00")
    A("s_sub_u32 s9, s3, 1"); A("s_and_b32 s9, s9, 3")
    A("v_lshrrev_b32 v2, 1, v11"); A("v_and_b32 v2, 3, v2"); A("v_xor_b32 v2, s9, v2"); A("v_lshlrev_b32 v2, 5, v2")
    A("v_lshl_add_u32 v13, v11, 7, v2"); A("v_add_u32 v13, v13, v12")
    A("v_lshlrev_b32 v14, 14, v6"); A("v_lshl_add_u32 v14, v5, 4, v14")
    A("s_lshl_b32 s52, s4, 17"); A("s_lshl_b32 s8, s5, 8"); A("s_add_u32 s52, s52, s8"); A("s_lshl_b32 s8, s9, 6"); A("s_add_u32 s52, s52, s8")
    A("v_and_b32 v2, 7, v11"); A("v_lshlrev_b32 v2, 5, v2"); A("v_lshl_add_u32 v28, v11, 8, v2"); A("v_add_u32 v28, v28, v12")
    A("s_lshl_b32 s8, s9, 6"); A("v_xor_b32 v150, s8, v28"); A("v_xor_b32 v151, 32, v150")
    A("v_mul_u32_u24 v152, 544, v6"); A("v_lshl_add_u32 v152, v5, 4, v152"); A(f"v_add_u32 v152, {OB}, v152")
    A("v_lshrrev_b32 v2, 1, v6"); A("v_lshlrev_b32 v153, 18, v2"); A("v_and_b32 v2, 1, v6"); A("v_lshl_add_u32 v153, v2, 14, v153")
    A("v_lshl_add_u32 v153, v5, 4, v153"); A("v_lshrrev_b32 v2, 3, v4"); A("v_lshl_add_u32 v153, v2, 6, v153")
    A("s_lshl_b32 s66, s6, 3"); A("s_add_u32 s66, s66, s9"); A("s_lshl_b32 s66, s66, 5"); A("s_add_u32 s66, s66, s7"); A("s_lshl_b32 s66, s66, 7")
    A(f"s_add_u32 s66, s66, {OP}")
    A("v_and_b32 v3, 31, v1"); unitpos("v154", "v3")
    A("v_lshrrev_b32 v2, 5, v1"); A("v_mul_u32_u24 v2, 544, v2"); A("v_add_u32 v154, v154, v2")
    A("s_mul_i32 s8, s9, 1088"); A(f"s_add_u32 s8, s8, {OB}"); A("v_add_u32 v154, s8, v154")
    A("s_lshl_b32 s8, s9, 10"); A(f"s_add_u32 s8, s8, {TB}"); A("v_lshl_add_u32 v147, v1, 4, s8")
    A("s_cmp_ge_u32 s5, 56"); A("s_cselect_b32 s67, 100, 64"); A("s_cselect_b32 s8, 0, 68"); A("s_add_u32 s67, s67, s8")
    if diag:
        A("v_mov_b32 v161, 0"); A("v_mov_b32 v162, 0"); A("v_mov_b32 v163, 0")
    A("s_cmp_ge_u32 s3, 5"); A("s_cbranch_scc1 L_B")

    def p1_run():
        for ks in range(8):
            A(f"ds_read_b64_tr_b16 v[{64+4*ks}:{65+4*ks}], v13 offset:{ks*4096}")
            A(f"ds_read_b64_tr_b16 v[{66+4*ks}:{67+4*ks}], v13 offset:{ks*4096 + 2048}")
        for ks in range(8):
            A(f"s_waitcnt lgkmcnt({min(15, 14 - 2*ks)})")
            c = "0" if ks == 0 else "v[16:19]"
            A(f"v_mfma_f32_16x16x32_bf16 v[16:19], v[{64+4*ks}:{67+4*ks}], v[{32+4*ks}:{35+4*ks}], {c}")
        A("v_cvt_pk_bf16_f32 v20, v16, v17"); A("v_cvt_pk_bf16_f32 v22, v18, v19")
        A("s_mov_b64 exec, s[48:49]")
        A("buffer_store_dwordx4 v[20:23], v14, s[44:47], s52 offen sc1")
        A("s_mov_b64 exec, -1")
    def xfrags():
        if xoff: wait_lds("v8", 1)
        else: wait_lds("v7", 4)
        for var in range(4):
            if var: A(f"v_xor_b32 v3, {var*32}, v10")
            for kk in range(4):
                ks = kk*2 + (var >> 1); hh = var & 1
                A(f"ds_read_b64 v[{32+4*ks+2*hh}:{33+4*ks+2*hh}], {'v3' if var else 'v10'} offset:{kk*128}")
    def get_mode():
        wait_lds("v7", 1, off=11*256)
        A("v_readfirstlane_b32 s53, v2")
        A("v_lshl_add_u32 v3, v6, 3, v7"); A(f"ds_read_b64 v[164:165], v3 offset:{10*256}")
        A("v_mov_b32 v157, v15"); A("v_mov_b32 v159, v15")
    def publish_final(acc, glob=False):
        A(f"v_cvt_pk_bf16_f32 v16, v{acc}, v{acc+1}"); A(f"v_cvt_pk_bf16_f32 v17, v{acc+2}, v{acc+3}")
        A(f"v_cvt_pk_bf16_f32 v18, v{acc+4}, v{acc+5}"); A(f"v_cvt_pk_bf16_f32 v19, v{acc+6}, v{acc+7}")
        A("v_cndmask_b32 v156, v16, v18, s[50:51]"); A("v_cndmask_b32 v158, v17, v19, s[50:51]")
        if glob:
            A("buffer_store_dwordx4 v[156:159], v153, s[44:47], s66 offen sc1"); return
        Lg = A.lab("F"); Le = Lg + "e"
        A("s_cmp_eq_u32 s53, 2"); A(f"s_cbranch_scc0 {Lg}")
        A("buffer_store_dwordx4 v[156:159], v153, s[44:47], s66 offen")
        A(f"s_branch {Le}")
        A(f"{Lg}:")
        A("buffer_store_dwordx4 v[156:159], v153, s[44:47], s66 offen sc1")
        A(f"{Le}:")

    A("s_load_dword s40, s[38:39], 0")
    A(f"s_add_u32 s52, s52, {QP}")
    A("s_and_b32 s10, s7, 24"); A("s_add_u32 s10, s10, s6")
    A("s_lshr_b32 s11, s10, 2")
    A("s_and_b32 s12, s10, 3")
    A("s_and_b32 s13, s7, 7")
    A("v_xor_b32 v2, v5, v4"); A("v_lshlrev_b32 v2, 4, v2"); A("v_lshl_add_u32 v24, v4, 8, v2")
    A("s_lshl_b32 s8, s9, 13"); A(f"s_add_u32 s8, s8, {R1}"); A("v_add_u32 v24, s8, v24")
    A("v_xor_b32 v25, 64, v24"); A("v_xor_b32 v26, 0x80, v24"); A("v_xor_b32 v27, 0xc0, v24")
    A(f"v_add_u32 v148, {R2}, v150"); A(f"v_add_u32 v149, {R2}, v151")
    A("s_lshr_b32 s14, s13, 1"); A("s_xor_b32 s14, s14, s9"); A("s_lshl_b32 s14, s14, 3"); A("s_add_u32 s14, s14, 44")
    A("v_lshlrev_b32 v29, 4, v1")
    A("s_lshl_b32 s56, s11, 14"); A("s_lshl_b32 s8, s12, 12"); A("s_add_u32 s56, s56, s8"); A("s_lshl_b32 s8, s9, 10"); A("s_add_u32 s56, s56, s8")
    A(f"s_add_u32 s56, s56, {QP}"); A("s_add_u32 s57, s56, 0x20000"); A("s_add_u32 s58, s56, 0x40000"); A("s_add_u32 s59, s56, 0x60000")
    A("v_lshrrev_b32 v2, 5, v1"); A("v_mul_u32_u24 v2, 288, v2"); A("v_and_b32 v3, 31, v1"); A("v_lshl_add_u32 v30, v3, 3, v2")
    A("s_mul_i32 s8, s9, 576"); A(f"s_add_u32 s8, s8, {QB}"); A("v_add_u32 v30, s8, v30")
    A("v_mul_u32_u24 v31, 288, v6"); A("v_lshl_add_u32 v31, v5, 4, v31"); A(f"v_add_u32 v31, {QB}, v31")
    A(f"v_add_u32 v106, {PB}, v29"); A("s_lshl_b32 s8, s9, 10"); A("v_add_u32 v104, s8, v106")
    A("v_lshlrev_b32 v107, 5, v6"); A(f"v_add_u32 v107, {ST}, v107"); A("s_lshl_b32 s8, s9, 2"); A("v_add_u32 v105, s8, v107")
    A("v_lshrrev_b32 v2, 3, v4")
    A("v_lshlrev_b32 v108, 12, v6"); A("v_lshl_add_u32 v108, v5, 4, v108"); A("v_lshl_add_u32 v108, v2, 6, v108")
    A("v_lshlrev_b32 v109, 6, v6")
    A("s_lshl_b32 s8, s9, 1"); A("s_lshl_b32 s42, 3, s8"); A("s_mov_b32 s43, 0")
    A("s_lshl_b32 s84, s10, 15"); A("s_lshl_b32 s8, s9, 7"); A("s_add_u32 s84, s84, s8"); A(f"s_add_u32 s84, s84, {OP}")
    A("s_lshl_b32 s8, s13, 9"); A("s_add_u32 s60, s84, s8")
    A("s_lshl_b32 s8, s13, 12"); A("s_add_u32 s84, s84, s8")
    A("s_lshl_b32 s85, s10, 9"); A(f"s_add_u32 s85, s85, {LSE}")
    A("s_lshl_b32 s8, s13, 3"); A("s_add_u32 s61, s85, s8")
    A("s_lshl_b32 s8, s13, 6"); A("s_add_u32 s85, s85, s8")
    A("v_lshrrev_b32 v2, 3, v1"); A("v_lshlrev_b32 v144, 9, v2"); A("v_lshl_add_u32 v144, v6, 4, v144"); A("v_lshlrev_b32 v145, 3, v2")
    A("s_lshl_b32 s86, s12, 3"); A("s_add_u32 s86, s86, s13"); A("s_lshl_b32 s86, s86, 3"); A("s_add_u32 s86, s86, s11"); A("s_lshl_b32 s86, s86, 2")
    A("s_add_u32 s86, s86, s9"); A("s_lshl_b32 s86, s86, 7"); A(f"s_add_u32 s86, s86, {OF}")
    A("v_lshrrev_b32 v2, 5, v1"); A("v_lshlrev_b32 v146, 3, v2"); A("v_lshl_add_u32 v146, v6, 4, v146")
    A("s_lshl_b32 s87, s7, 2"); A("s_add_u32 s87, s87, s9"); A("s_lshl_b32 s87, s87, 10"); A(f"s_add_u32 s87, s87, {OF}")
    A(f"s_mov_b32 s64, {SCALE:#x}"); A(f"s_mov_b32 s65, {L2E:#x}")
    xfrags()
    A(f"s_add_u32 s40, s40, {TAGK:#x}")
    A("v_mov_b32 v15, s40"); A("v_mov_b32 v21, s40"); A("v_mov_b32 v23, s40")
    A(f"v_mov_b32 v3, {FL + 9*256}"); A("v_lshl_add_u32 v3, v1, 2, v3"); A("ds_write_b32 v3, v15")
    wait_lds("v7", 36)
    stamp(1)
    p1_run()
    flag(2)
    if opre == 2:
        A("buffer_load_dword v160, v144, s[44:47], s84 offen")
        A("buffer_load_dword v160, v145, s[44:47], s85 offen")
    stamp(2)
    def kpull():
        wait_lds("v7", "s14")
        for t in range(2):
            for s in range(4):
                A(f"ds_read_b128 v[{32+16*t+4*s}:{35+16*t+4*s}], v{24+s} offset:{t*4096}")
        A("s_waitcnt lgkmcnt(0)")
        flag(3)
    if not kmid: kpull()
    A("v_mov_b32 v111, v15")
    if ea == 0: kpull(); A("s_endpgm")
    wait_lds("v7", q_start)
    stamp(3)
    def amode():
        if kmid: kpull()
    gather([(64+4*sp, f"buffer_load_dwordx4 v[{64+4*sp}:{67+4*sp}], v29, s[44:47], s{56+sp} offen sc1") for sp in range(4)], cnt="v161", mid=amode)
    stamp(4)
    sum4(64, 4, 4, 16)
    A("v_cvt_pk_bf16_f32 v20, v16, v17"); A("v_cvt_pk_bf16_f32 v21, v18, v19")
    A("ds_write_b64 v30, v[20:21]")
    flag(4)
    wait_lds("v8", 4)
    A("ds_read_b32 v28, v7")
    for s in range(4):
        A(f"ds_read_b128 v[{64+4*s}:{67+4*s}], v31 offset:{s*64}")
    for s in range(4):
        A(f"s_waitcnt lgkmcnt({3-s})")
        for t in range(2):
            c = "0" if s == 0 else f"v[{16+4*t}:{19+4*t}]"
            A(f"v_mfma_f32_16x16x32_bf16 v[{16+4*t}:{19+4*t}], v[{32+16*t+4*s}:{35+16*t+4*s}], v[{64+4*s}:{67+4*s}], {c}")
    def vreads():
        for w in range(4):
            for q in range(2):
                f = 112 + (w*2 + q)*4
                A(f"ds_read_b64_tr_b16 v[{f}:{f+1}], v{148+q} offset:{w*8192}")
                A(f"ds_read_b64_tr_b16 v[{f+2}:{f+3}], v{148+q} offset:{w*8192 + 4096}")
    A("v_readfirstlane_b32 s15, v28")
    A("s_cmp_lt_i32 s15, 100"); A("s_cbranch_scc1 L_vlate")
    vreads()
    A("L_vlate:")
    A("s_nop 4")
    if mimic:
        for i in range(4):
            a, b = 16 + 2*i, 17 + 2*i
            A(f"v_cvt_pk_bf16_f32 v2, v{a}, v{b}")
            A(f"v_lshlrev_b32 v{a}, 16, v2"); A(f"v_and_b32 v{b}, 0xffff0000, v2")
            A(f"v_mul_f32 v{a}, s64, v{a}"); A(f"v_mul_f32 v{b}, s64, v{b}")
            A(f"v_cvt_pk_bf16_f32 v2, v{a}, v{b}")
            A(f"v_lshlrev_b32 v{a}, 16, v2"); A(f"v_and_b32 v{b}, 0xffff0000, v2")
    else:
        for i in range(8): A(f"v_mul_f32 v{16+i}, s64, v{16+i}")
    A("v_max3_f32 v2, v16, v17, v18"); A("v_max3_f32 v3, v19, v20, v21"); A("v_max3_f32 v2, v2, v22, v23"); A("v_max_f32 v2, v2, v3")
    A("v_mov_b32 v3, v2"); A("v_permlane16_swap_b32 v2, v3"); A("v_max_f32 v2, v2, v3")
    A("v_mov_b32 v3, v2"); A("v_permlane32_swap_b32 v2, v3"); A("v_max_f32 v2, v2, v3")
    A("v_mul_f32 v96, s65, v2")
    for i in range(8): A(f"v_fma_f32 v{16+i}, v{16+i}, s65, -v96")
    for i in range(8): A(f"v_exp_f32 v{16+i}, v{16+i}")
    for i in range(4): A(f"v_cvt_pk_bf16_f32 v{100+i}, v{16+2*i}, v{17+2*i}")
    A("ds_write_b128 v104, v[100:103]")
    A("v_add_f32 v2, v16, v17"); A("v_add_f32 v3, v18, v19"); A("v_add_f32 v2, v2, v20"); A("v_add_f32 v3, v3, v21")
    A("v_add_f32 v2, v2, v22"); A("v_add_f32 v3, v3, v23"); A("v_add_f32 v97, v2, v3")
    A("v_mov_b32 v3, v97"); A("v_permlane16_swap_b32 v97, v3"); A("v_add_f32 v97, v97, v3")
    A("v_mov_b32 v3, v97"); A("v_permlane32_swap_b32 v97, v3"); A("v_add_f32 v97, v97, v3")
    A("s_mov_b64 exec, 0xff")
    A("ds_write2_b32 v105, v96, v97 offset0:0 offset1:4")
    A("s_mov_b64 exec, -1")
    flag(5)
    stamp(5)
    A("s_cmp_ge_i32 s15, 100"); A("s_cbranch_scc1 L_vdone")
    wait_lds("v7", 100)
    vreads()
    A("L_vdone:")
    get_mode()
    wait_lds("v8", 5)
    for w in range(4): A(f"ds_read_b128 v[{64+4*w}:{67+4*w}], v106 offset:{w*1024}")
    A("ds_read_b128 v[16:19], v107"); A("ds_read_b128 v[20:23], v107 offset:16")
    for w in range(4):
        A(f"s_waitcnt lgkmcnt({5-w})")
        for q in range(2):
            f = 112 + (w*2 + q)*4; d = 32 + (w*2 + q)*4
            A(f"v_mfma_f32_16x16x32_bf16 v[{d}:{d+3}], v[{f}:{f+3}], v[{64+4*w}:{67+4*w}], 0")
    A("s_waitcnt lgkmcnt(0)")
    A("v_max3_f32 v2, v16, v17, v18"); A("v_max_f32 v2, v2, v19")
    for i in range(4): A(f"v_sub_f32 v{16+i}, v{16+i}, v2")
    for i in range(4): A(f"v_exp_f32 v{16+i}, v{16+i}")
    A("v_mul_f32 v3, v16, v20")
    for i in range(1, 4): A(f"v_fmac_f32 v3, v{16+i}, v{20+i}")
    A("v_rcp_f32 v20, v3"); A("v_log_f32 v21, v3")
    for i in range(4): A(f"v_mul_f32 v{16+i}, v{16+i}, v20")
    A("v_add_f32 v110, v2, v21")
    for k in range(8): A(f"v_mul_f32 v{80+k}, v16, v{32+k}")
    for w in range(1, 4):
        for k in range(8): A(f"v_fmac_f32 v{80+k}, v{16+w}, v{32+8*w+k}")
    A("v_cvt_pk_bf16_f32 v16, v80, v81"); A("v_cvt_pk_bf16_f32 v17, v82, v83"); A("v_cvt_pk_bf16_f32 v18, v84, v85"); A("v_cvt_pk_bf16_f32 v19, v86, v87")
    A("v_cndmask_b32 v156, v16, v18, s[50:51]"); A("v_cndmask_b32 v158, v17, v19, s[50:51]")
    if ea == 1: A("s_endpgm")
    if opg == 1: A("s_branch L_opg")
    A("s_cmp_eq_u32 s53, 2"); A("s_cbranch_scc0 L_opg")
    A("buffer_store_dwordx4 v[156:159], v108, s[44:47], s60 offen")
    A("s_mov_b64 exec, s[42:43]")
    A("buffer_store_dwordx2 v[110:111], v109, s[44:47], s61 offen" + (" sc1" if opg == 2 else ""))
    A("s_branch L_opd")
    A("L_opg:")
    A("buffer_store_dwordx4 v[156:159], v108, s[44:47], s60 offen sc1")
    A("s_mov_b64 exec, s[42:43]")
    A("buffer_store_dwordx2 v[110:111], v109, s[44:47], s61 offen sc1")
    A("L_opd:")
    A("s_mov_b64 exec, -1")
    stamp(6)
    def ring(K, st, mk, nreg, tags, base, dst, cnt):
        L = A.lab("R")
        nl = len(mk(base))
        for k in range(K):
            if k and pp:
                if k == 1:
                    A("ds_read_b32 v2, v7"); A("s_add_u32 s14, s67, 60"); A("s_waitcnt lgkmcnt(0)"); A("v_readfirstlane_b32 s13, v2")
                A(f"s_add_u32 s13, s13, {pp}"); A("s_min_u32 s13, s13, s14")
                wait_lds("v7", "s13")
            elif k and st: A(f"s_sleep {st}")
            for t in mk(base + k*nreg): A(t)
        A(f"{L}:")
        for k in range(K):
            r = base + k*nreg
            if diag: A(f"v_add_u32 {cnt}, 1, {cnt}")
            A(f"s_waitcnt vmcnt({nl*(K-1)})")
            A(f"v_xor_b32 v2, v{r+tags[0]}, v15")
            for tg in tags[1:]: A(f"v_bitop3_b32 v2, v2, v{r+tg}, v15 bitop3:0xf6")
            A("v_cmp_ne_u32 vcc, 0, v2")
            A(f"s_cbranch_vccz {L}_{k}")
            for t in mk(r): A(t)
        A("s_add_u32 s41, s41, 32"); A(f"s_cmp_lt_u32 s41, {SPIN_LIMIT}"); A(f"s_cbranch_scc1 {L}")
        for k in range(K):
            r = base + k*nreg
            A(f"{L}_{k}:")
            for d, o in dst: A(f"v_mov_b32 v{d}, v{r+o}")
            if k < K - 1: A(f"s_branch {L}_e")
        A(f"{L}_e:")
    if ea == 2: A("s_endpgm")
    if lh:
        A("s_add_u32 s54, s38, s85"); A("s_addc_u32 s55, s39, 0")
        L = A.lab("P"); Ld = L + "d"; Lr = L + "r"
        A(f"{L}:")
        A("s_load_dwordx16 s[16:31], s[54:55], 0 glc")
        A("s_waitcnt lgkmcnt(0)")
        for i in range(8):
            A(f"s_cmp_eq_u32 s{17+2*i}, s40"); A(f"s_cbranch_scc0 {Lr}")
        A(f"s_branch {Ld}")
        A(f"{Lr}:")
        spin_tail(L, Ld, 16)
    if st0: A(f"s_sleep {st0}")
    ring(K1, st1, lambda r: [f"buffer_load_dwordx4 v[{r}:{r+3}], v144, s[44:47], s84 offen {lf}", f"buffer_load_dwordx2 v[{r+4}:{r+5}], v145, s[44:47], s85 offen {lf}"],
         6, (1, 3, 5), 112, [(16, 0), (17, 2), (18, 4)], "v162")
    stamp(7)
    A("v_max_f32_dpp v2, v18, v18 row_ror:8 row_mask:0xf bank_mask:0xf")
    A("v_lshlrev_b32 v96, 16, v16"); A("v_and_b32 v97, 0xffff0000, v16")
    A("v_mov_b32 v3, v2"); A("v_lshlrev_b32 v98, 16, v17"); A("v_and_b32 v99, 0xffff0000, v17")
    A("v_permlane16_swap_b32 v2, v3"); A("v_max_f32 v2, v2, v3")
    A("v_mov_b32 v3, v2"); A("v_permlane32_swap_b32 v2, v3"); A("v_max_f32 v2, v2, v3")
    A("v_sub_f32 v18, v18, v2"); A("v_exp_f32 v18, v18")
    for k in range(4): A(f"v_mul_f32 v{96+k}, v18, v{96+k}")
    A("v_mov_b32 v19, v18")
    A("v_permlane32_swap_b32 v96, v98"); A("v_permlane32_swap_b32 v97, v99"); A("v_permlane32_swap_b32 v18, v19")
    A("v_add_f32 v96, v96, v98"); A("v_add_f32 v97, v97, v99"); A("v_add_f32 v18, v18, v19")
    A("v_mov_b32 v98, v96"); A("v_mov_b32 v99, v97"); A("v_mov_b32 v19, v18")
    A("v_permlane16_swap_b32 v96, v98"); A("v_permlane16_swap_b32 v97, v99"); A("v_permlane16_swap_b32 v18, v19")
    A("v_add_f32 v18, v18, v19"); A("v_add_f32 v96, v96, v98"); A("v_add_f32 v97, v97, v99")
    for r in (18, 96, 97): A(f"v_add_f32_dpp v{r}, v{r}, v{r} row_ror:8 row_mask:0xf bank_mask:0xf")
    A("v_rcp_f32 v18, v18")
    A("v_mul_f32 v96, v96, v18"); A("v_mul_f32 v97, v97, v18")
    A("v_cvt_pk_bf16_f32 v110, v96, v97")
    A("s_mov_b32 exec_lo, 0xff"); A("s_mov_b32 exec_hi, 0xff")
    A("buffer_store_dwordx2 v[110:111], v146, s[44:47], s86 offen sc1")
    A("s_mov_b64 exec, 1")
    A("s_lshl_b32 s8, s6, 2"); A("s_add_u32 s8, s8, s9"); A("s_lshl_b32 s8, s8, 5"); A("s_add_u32 s8, s8, s7"); A("s_lshl_b32 s8, s8, 2"); A(f"s_add_u32 s8, s8, {DT}")
    A("s_cmp_eq_u32 s53, 2"); A("s_cbranch_scc0 L_dtg")
    A("buffer_store_dword v15, v29, s[44:47], s8 offen")
    A("s_branch L_dtd")
    A("L_dtg:")
    A("buffer_store_dword v15, v29, s[44:47], s8 offen sc1")
    A("L_dtd:")
    A("s_mov_b64 exec, -1")
    A("s_add_u32 s14, s67, 32")
    def wofr():
        wait_lds("v7", "s14")
        for ks in range(4):
            for q in range(2):
                f = 64 + (ks*2 + q)*4
                A(f"ds_read_b64_tr_b16 v[{f}:{f+1}], v{150+q} offset:{R0 + ks*8192}")
                A(f"ds_read_b64_tr_b16 v[{f+2}:{f+3}], v{150+q} offset:{R0 + ks*8192 + 4096}")
    if ea == 3: A("s_endpgm")
    if wopre: wofr()
    if oh:
        A("s_add_u32 s54, s38, s87"); A("s_addc_u32 s55, s39, 0")
        L = A.lab("P"); Ld = L + "d"; Lr = L + "r"
        lines = range(8) if oh == 1 else (0, 4)
        if oh == 2:
            A("s_and_b32 s8, s6, 3"); A("s_lshl_b32 s8, s8, 7"); A("s_add_u32 s54, s54, s8"); A("s_addc_u32 s55, s55, 0")
        A(f"{L}:")
        for i in lines: A(f"s_load_dword s{16+i}, s[54:55], {i*128+4} glc")
        A("s_waitcnt lgkmcnt(0)")
        for i in lines:
            A(f"s_cmp_eq_u32 s{16+i}, s40"); A(f"s_cbranch_scc0 {Lr}")
        A(f"s_branch {Ld}")
        A(f"{Lr}:")
        if hint_sleep: A(f"s_sleep {hint_sleep}")
        spin_tail(L, Ld, 16)
    ring(K2, st2, lambda r: [f"buffer_load_dwordx4 v[{r}:{r+3}], v29, s[44:47], s87 offen sc1"], 4, (1, 3), 32, [(20, 0), (21, 2)], "v163")
    if ea == 4: A("s_endpgm")
    A("ds_write_b64 v154, v[20:21]")
    flag(6)
    stamp(8)
    if not wopre: wofr()
    wait_lds("v8", 6)
    stamp(9)
    for ks in range(4): A(f"ds_read_b128 v[{48+4*ks}:{51+4*ks}], v152 offset:{ks*64}")
    for ks in range(4):
        A(f"s_waitcnt lgkmcnt({3-ks})")
        for q in range(2):
            f = 64 + (ks*2 + q)*4
            c = "0" if ks == 0 else f"v[{136+4*q}:{139+4*q}]"
            A(f"v_mfma_f32_16x16x32_bf16 v[{136+4*q}:{139+4*q}], v[{f}:{f+3}], v[{48+4*ks}:{51+4*ks}], {c}")
    for k in range(4): A(f"v_cndmask_b32 v{16+k}, v{136+k}, v{140+k}, s[50:51]")
    for k in range(4): A(f"v_mul_f32 v{16+k}, v164, v{16+k}")
    A("ds_write_b128 v147, v[16:19]")
    flag(7)
    stamp(10)
    if not dtail:
        A(f"s_mul_i32 s56, s2, {FBLK}"); A("s_lshl_b32 s8, s9, 10"); A("s_add_u32 s56, s56, s8"); A(f"s_add_u32 s56, s56, {FP}")
        A("s_lshl_b32 s8, s9, 2"); A(f"s_add_u32 s8, s8, {RB}"); A("v_add_u32 v30, s8, v29")
        A("s_add_u32 s14, s67, 60")
        if bwait: wait_lds("v7", "s14")
        gather([(100, f"buffer_load_dwordx4 v[100:103], v29, s[44:47], s56 offen {lf}")], tb=104)
        sum4(100, 1, 4, 64)
        xred()
        A("ds_write_b32 v30, v64")
        flag(8)
    else:
        A("s_mul_i32 s8, s9, 96"); A("s_sub_u32 s56, s84, s8")
        A("v_xor_b32 v15, 0x80000000, v15")
        A("v_lshrrev_b32 v2, 1, v1"); A("v_lshlrev_b32 v30, 7, v2"); A("v_and_b32 v2, 1, v1"); A("v_lshl_add_u32 v30, v2, 4, v30")
        A("v_lshlrev_b32 v31, 3, v2"); A("v_lshl_add_u32 v31, v5, 1, v31")
        srd(88, 34, 16384)
        A("s_lshr_b32 s12, s7, 2"); A("s_lshl_b32 s12, s12, 11"); A("s_lshl_b32 s8, s6, 8"); A("s_add_u32 s12, s12, s8")
        A("s_and_b32 s8, s7, 3"); A("s_lshl_b32 s8, s8, 6"); A("s_add_u32 s12, s12, s8"); A("s_lshl_b32 s8, s9, 4"); A("s_add_u32 s12, s12, s8")
        A("s_add_u32 s14, s67, 60")
        if bwait: wait_lds("v7", "s14")
        gather([(100, f"buffer_load_dwordx4 v[100:103], v30, s[44:47], s56 offen {lf}")], tb=104)
        sum4(100, 1, 4, 64)
        xred()
        for r in (4, 2): A(f"v_add_f32_dpp v64, v64, v64 row_ror:{r} row_mask:0xf bank_mask:0xf")
        A("v_cvt_pk_bf16_f32 v64, v64, v64")
        A("s_mov_b32 exec_lo, 0x00030003"); A("s_mov_b32 exec_hi, 0x00030003")
        A(f"buffer_store_short v64, v31, s[88:91], s12 offen {of}")
        A("s_add_u32 s8, s2, s9"); A("s_cbranch_scc1 L_Aend"); A("s_cmp_lg_u32 s8, 0"); A("s_cbranch_scc1 L_Aend")
        A("s_mov_b64 exec, 1")
        A("v_mov_b32 v2, 0")
        A("buffer_store_dword v111, v2, s[44:47], 0 offen sc1")
        A("L_Aend:")
        if diag:
            A("s_mov_b64 exec, -1"); flag(8)
    stamp(11)
    profend()
    dump_stamps(12, ["v161", "v162", "v163"])
    A("s_endpgm")

    A("L_B:")
    role[0] = "B"
    A("s_cmp_lg_u32 s9, 0"); A("s_cbranch_scc1 L_nogate")
    A("v_mov_b32 v16, 0"); A("v_mov_b32 v17, 0")
    for i in range(8):
        x, gw = 96 + i, 104 + i
        A(f"v_lshlrev_b32 v18, 16, v{x}"); A(f"v_and_b32 v19, 0xffff0000, v{x}")
        A(f"v_lshlrev_b32 v20, 16, v{gw}"); A(f"v_and_b32 v21, 0xffff0000, v{gw}")
        A("v_mul_f32 v18, v18, v20"); A("v_mul_f32 v19, v19, v21")
        A("v_cvt_pk_bf16_f32 v18, v18, v19")
        A("v_and_b32 v19, 0xffff0000, v18"); A("v_lshlrev_b32 v18, 16, v18")
        A("v_add_f32 v16, v16, v18"); A("v_add_f32 v17, v17, v19")
    A("v_add_f32 v16, v16, v17")
    for r in (1, 2, 4, 8): A(f"v_add_f32_dpp v16, v16, v16 row_ror:{r} row_mask:0xf bank_mask:0xf")
    for sw in ("v_permlane16_swap_b32", "v_permlane32_swap_b32"):
        A("v_mov_b32 v17, v16"); A(f"{sw} v16, v17"); A("v_add_f32 v16, v16, v17")
    A("v_cvt_pk_bf16_f32 v16, v16, v16"); A("v_lshlrev_b32 v16, 16, v16")
    A(f"v_mul_f32 v16, {0xBFB8AA3B:#x}, v16"); A("v_exp_f32 v16, v16"); A("v_add_f32 v16, 1.0, v16"); A("v_rcp_f32 v16, v16")
    A("v_cvt_pk_bf16_f32 v16, v16, v16"); A("v_lshlrev_b32 v16, 16, v16")
    A("v_sub_f32 v17, 1.0, v16"); A("v_cvt_pk_bf16_f32 v98, v16, v17")
    A(f"s_add_u32 s40, s40, {TAGK:#x}")
    A("s_getreg_b32 s8, hwreg(HW_REG_XCC_ID, 0, 4)")
    A("v_mov_b32 v96, s8"); A("v_mov_b32 v97, s40"); A("v_mov_b32 v99, s40")
    A("s_lshl_b32 s8, s6, 5"); A("s_add_u32 s8, s8, s7"); A("s_lshl_b32 s8, s8, 4"); A(f"s_add_u32 s8, s8, {XT}")
    A("v_mov_b32 v2, 0"); A("s_mov_b64 exec, 1")
    A("buffer_store_dwordx4 v[96:99], v2, s[44:47], s8 offen sc1")
    A("s_mov_b64 exec, -1")
    A("L_nogate:")
    A(f"s_add_u32 s52, s52, {HP}")
    A(f"v_add_u32 v13, {R3}, v13")
    A("s_mul_i32 s10, s5, 37"); A("s_lshr_b32 s10, s10, 8")
    A("s_mul_i32 s8, s10, 7"); A("s_sub_u32 s11, s5, s8")
    A("s_lshr_b32 s12, s11, 1")
    A("s_and_b32 s13, s11, 1"); A("s_min_u32 s8, s12, 1"); A("s_add_u32 s13, s13, s8")
    A("s_lshl_b32 s53, s10, 2"); A("s_add_u32 s53, s53, s12"); A("s_lshl_b32 s53, s53, 10")
    A("s_lshl_b32 s13, s13, 4"); A("s_lshl_b32 s8, s4, 2"); A("s_add_u32 s53, s53, s8"); A(f"s_add_u32 s53, s53, {HH}")
    A("v_lshrrev_b32 v2, 3, v1"); A("v_xor_b32 v2, 1, v2"); A("v_mul_u32_u24 v2, s13, v2"); A("v_lshl_add_u32 v24, v1, 7, v2")
    A("s_bitcmp1_b32 s11, 0"); A("s_mov_b32 s60, 0xff"); A("s_cselect_b32 s60, 0xffff, s60"); A("s_mov_b32 s61, 0")
    A("s_lshl_b32 s8, s2, 7"); A(f"s_add_u32 s8, s8, {HH}"); A("s_add_u32 s54, s38, s8"); A("s_addc_u32 s55, s39, 0")
    A("v_lshrrev_b32 v2, 5, v1"); A("v_lshlrev_b32 v2, 14, v2"); A("v_and_b32 v3, 31, v1"); A("v_lshl_add_u32 v29, v3, 4, v2")
    A("s_mul_i32 s56, s7, 448"); A("s_lshl_b32 s8, s9, 15"); A("s_add_u32 s56, s56, s8"); A(f"s_add_u32 s56, s56, {HP}")
    A("s_add_u32 s57, s56, 0x20000"); A("s_add_u32 s58, s56, 0x40000"); A("s_add_u32 s59, s56, 0x60000")
    A("s_mov_b32 s64, 0x0fffffff"); A("s_mov_b32 s65, 0x0fffffff")
    A("v_lshlrev_b32 v26, 2, v3")
    A("s_lshl_b32 s12, s6, 2"); A("s_and_b32 s8, s7, 3"); A("s_add_u32 s12, s12, s8"); A("s_lshl_b32 s12, s12, 7"); A(f"s_add_u32 s12, s12, {DT}")
    xfrags()
    wait_lds("v8", 2)
    A(f"ds_read_b32 v15, v7 offset:{9*256}")
    A("s_waitcnt lgkmcnt(0)")
    A("v_readfirstlane_b32 s42, v15")
    A("v_mov_b32 v21, v15"); A("v_mov_b32 v23, v15")
    A("s_mov_b32 s43, s42")
    if eb == 0: A("s_endpgm")
    A("s_cmp_lg_u32 s9, 1"); A("s_cbranch_scc1 L_nomode")
    wait_lds("v7", xt)
    A("s_lshl_b32 s8, s6, 9"); A(f"s_add_u32 s8, s8, {XT}")
    A("v_and_b32 v3, 31, v1"); A("v_lshlrev_b32 v25, 4, v3")
    A("buffer_load_dword v160, v26, s[44:47], s12 offen")
    gather([(96, "buffer_load_dwordx4 v[96:99], v25, s[44:47], s8 offen sc1")])
    A("v_lshlrev_b32 v100, 16, v98"); A("v_and_b32 v101, 0xffff0000, v98")
    A("v_lshl_add_u32 v2, v1, 3, v7"); A("s_mov_b64 exec, 0xff"); A(f"ds_write_b64 v2, v[100:101] offset:{10*256}"); A("s_mov_b64 exec, -1")
    A("s_getreg_b32 s8, hwreg(HW_REG_XCC_ID, 0, 4)")
    A("v_xor_b32 v3, s8, v96"); A("v_or_b32 v3, v3, v112")
    A("v_cmp_ne_u32 vcc, 0, v3")
    A("s_cmp_eq_u64 vcc, 0"); A(f"s_cselect_b32 s8, {1 if force_global else 2}, 1")
    A("v_mov_b32 v3, s8"); A(f"v_lshl_add_u32 v2, v1, 2, v7"); A(f"ds_write_b32 v2, v3 offset:{11*256}")
    A("L_nomode:")
    if fpre in (1, 3):
        A("s_cmp_lg_u32 s9, 2"); A("s_cbranch_scc1 L_nofpre")
        wait_lds("v7", fpt)
        A(f"s_mul_i32 s8, s2, {FBLK}"); A(f"s_add_u32 s8, s8, {FP}"); A("v_lshlrev_b32 v2, 7, v1")
        A("s_mov_b32 exec_hi, 0")
        A("buffer_load_dword v160, v2, s[44:47], s8 offen")
        A("s_mov_b64 exec, -1")
        A("L_nofpre:")
    if fpre == 2:
        wait_lds("v7", 1, off=11*256)
        A("v_readfirstlane_b32 s63, v2")
        for k in range(4): A(f"v_xor_b32 v{156+k}, 1, v15")
        A("s_cmp_eq_u32 s63, 2"); A("s_cbranch_scc0 L_nofpre")
        A("buffer_store_dwordx4 v[156:159], v153, s[44:47], s66 offen")
        A("L_nofpre:")
    if eb == 1: A("s_endpgm")
    A("s_cmp_ge_u32 s5, 56"); A("s_cbranch_scc1 L_Bnow1")
    wait_lds("v7", 132)
    stamp(1)
    p1_run()
    flag(2)
    A("s_cmp_lg_u32 s9, 0"); A("s_cbranch_scc1 L_Bnow1")
    wait_lds("v8", 2, off=1024)
    A("s_mov_b64 exec, s[60:61]")
    A("buffer_store_dword v15, v24, s[44:47], s53 offen sc1")
    A("s_mov_b64 exec, -1")
    A("L_Bnow1:")
    stamp(2)
    if eb == 2: A("s_endpgm")
    def w2fr():
        for ks in range(3):
            for q in range(2):
                f = 64 + (ks*2 + q)*4
                A(f"ds_read_b64_tr_b16 v[{f}:{f+1}], v{150+q} offset:{R1 + ks*8192}")
                A(f"ds_read_b64_tr_b16 v[{f+2}:{f+3}], v{150+q} offset:{R1 + ks*8192 + 4096}")
    A("s_add_u32 s14, s67, 56"); A("s_add_u32 s15, s67, 60")
    get_mode()
    wait_lds("v7", 124)
    A("s_add_u32 s8, s7, 1"); A("s_and_b32 s62, s8, 2")
    L = A.lab("P"); Ld = L + "d"; Lr = L + "r"
    A(f"{L}:")
    A("s_load_dwordx16 s[84:99], s[54:55], 0 glc")
    A("s_waitcnt lgkmcnt(0)")
    for i in range(4):
        A(f"s_cmp_eq_u64 s[{84+2*i}:{85+2*i}], s[42:43]"); A(f"s_cbranch_scc0 {Lr}")
    A("s_cmp_eq_u32 s62, 0"); A(f"s_cbranch_scc1 {Ld}")
    for i in range(4, 6):
        A(f"s_cmp_eq_u64 s[{84+2*i}:{85+2*i}], s[42:43]"); A(f"s_cbranch_scc0 {Lr}")
    A(f"s_branch {Ld}")
    A(f"{Lr}:")
    if hint_sleep: A(f"s_sleep {hint_sleep}")
    spin_tail(L, Ld, 16)
    stamp(3)
    if eb == 3: A("s_endpgm")
    A("s_mov_b64 exec, s[64:65]")
    gather([(32+4*i, f"buffer_load_dwordx4 v[{32+4*i}:{35+4*i}], v29, s[44:47], s{56+i} offen sc1") for i in range(4)], full="s[64:65]", cnt="v162")
    sum4(32, 4, 4, 16)
    for k in range(4): A(f"v_max_f32 v{16+k}, 0, v{16+k}")
    A("v_cvt_pk_bf16_f32 v20, v16, v17"); A("v_cvt_pk_bf16_f32 v21, v18, v19")
    A("ds_write_b64 v154, v[20:21] offset:256")
    A("s_mov_b64 exec, -1")
    flag(3)
    stamp(4)
    if eb == 4: A("s_endpgm")
    def bfin():
        if bpre:
            A("ds_read_b32 v2, v7"); A("s_waitcnt lgkmcnt(0)"); A("v_readfirstlane_b32 s13, v2")
            A("s_cmp_lt_i32 s13, s14"); A("s_cbranch_scc1 L_w2no")
            w2fr()
            A("L_w2no:")
        wait_lds("v8", 3, off=1024)
        for ks in range(3): A(f"ds_read_b128 v[{32+4*ks}:{35+4*ks}], v152 offset:{256 + ks*64}")
        A(f"ds_read_b64 v[44:45], v152 offset:{256 + 192}")
        if bpre:
            A("s_cmp_ge_i32 s13, s14"); A("s_cbranch_scc1 L_w2have")
        wait_lds("v7", "s14")
        w2fr()
        A("L_w2have:")
        A("s_waitcnt lgkmcnt(0)")
        for ks in range(3):
            for q in range(2):
                f = 64 + (ks*2 + q)*4
                c = "0" if ks == 0 else f"v[{128+4*q}:{131+4*q}]"
                A(f"v_mfma_f32_16x16x32_bf16 v[{128+4*q}:{131+4*q}], v[{f}:{f+3}], v[{32+4*ks}:{35+4*ks}], {c}")
        A("s_lshl_b32 s8, s9, 8"); A("v_add_u32 v3, s8, v7")
        wait_lds("v3", 7, off=256)
        A("ds_read_b128 v[96:99], v147")
        wait_lds("v7", "s15")
        stamp(5)
        for q in range(2): A(f"ds_read_b64_tr_b16 v[{88+2*q}:{89+2*q}], v{150+q} offset:{R1 + 3*8192}")
        for q in range(2):
            A(f"s_waitcnt lgkmcnt({1-q})")
            A(f"v_mfma_f32_16x16x16_bf16 v[{128+4*q}:{131+4*q}], v[{88+2*q}:{89+2*q}], v[44:45], v[{128+4*q}:{131+4*q}]")
        for k in range(4): A(f"v_cndmask_b32 v{16+k}, v{128+k}, v{132+k}, s[50:51]")
        for k in range(4): A(f"v_fmac_f32 v{96+k}, v165, v{16+k}")
        A("v_cvt_pk_bf16_f32 v156, v96, v97"); A("v_cvt_pk_bf16_f32 v158, v98, v99")
    A("v_xor_b32 v157, 0x80000000, v15"); A("v_mov_b32 v159, v157")
    gather([(27, f"buffer_load_dword v27, v26, s[44:47], s12 offen {lf}")], tags=(0,), mid=bfin)
    A("s_cmp_eq_u32 s53, 2"); A("s_cbranch_scc0 L_fg")
    A("buffer_store_dwordx4 v[156:159], v153, s[44:47], s66 offen")
    A("s_branch L_fe")
    A("L_fg:")
    A("buffer_store_dwordx4 v[156:159], v153, s[44:47], s66 offen sc1")
    A("L_fe:")
    stamp(6)
    profend()
    dump_stamps(7, ["v161", "v162"])
    A("s_endpgm")
    A("L_codeend:")

    body = A.render().replace(' nt lds', f' {sf} lds')
    out = HEADER
    out += f"; @launch grid=(256,1,1) block=(576,1,1) lds={LDS_BYTES}\n"
    out += '.amdgcn_target "amdgcn-amd-amdhsa--gfx950"\n.text\n'
    out += f".globl {NAME}\n.p2align 8\n.type {NAME},@function\n"
    out += body
    out += f""".section .rodata,"a"
.p2align 6
.amdhsa_kernel {NAME}
  .amdhsa_next_free_vgpr 168
  .amdhsa_next_free_sgpr 102
  .amdhsa_accum_offset 168
  .amdhsa_group_segment_fixed_size 0
  .amdhsa_kernarg_size 96
  .amdhsa_user_sgpr_count 2
  .amdhsa_user_sgpr_kernarg_segment_ptr 1
  .amdhsa_system_sgpr_workgroup_id_x 1
  .amdhsa_float_denorm_mode_32 3
.end_amdhsa_kernel
"""
    return out

if __name__ == "__main__":
    import json
    kw = json.loads(sys.argv[2]) if len(sys.argv) > 2 else {}
    open(sys.argv[1], "w").write(gen(**kw))
```

```python
import sys
sys.path.insert(0, "work")
from asmlib import Asm

NAME = "gated_mix__sliding_block_cached__dense_activation_relu__decode_kernel"
HEADER = open("gated_mix__sliding_block_cached__dense_activation_relu__decode.s.ref").read().split("; Override launch")[0]

XT = 0x1000
HH = 0x8000
LSE = 0x20000
DT = 0x3000
OF = 0x40000
QP = 0x80000
HP = 0x100000
OP = 0x180000
FP = 0x280000
FBLK = 4352
WS_USED = 0x500000
DIAG = 0x500000
R0, R1, R2, R3, M = 0x0, 0x8000, 0x10000, 0x18000, 0x20000
XS = M
QB = M + 0x1000
OB = M + 0x1A00
AC = M + 0x2C00
PB = AC
RB = AC + 0x1000
TB = AC + 0x2000
ST = M + 0x6E00
FL = M + 0x7000
LDS_BYTES = 160 * 1024
TAGK = 0x9E3779B1
SPIN_LIMIT = 400000
L2E = 0x3FB8AA3B
SCALE = 0x3DB504F3

def gen(D=(20, 20), diag=False, mimic=True, elim=0, q_start=68, lsleep=0, force_global=False, fpre=0, lrep=2, hint_sleep=0, rord=1, ackw=0, K1=1, K2=1, st1=6, st2=6, opre=0, oh=2, fpt=100, d2last=0, dwq=36, kmid=1, prof=None, amp=0, pp=4, sf='nt', lprio=3, dtail=1, of='', st0=0, xoff=1, wopre=1, bpre=1, dkv=0, lh=0, opg=0, gt=12, xt=60, lf='sc1', bwait=1, ea=99, eb=99):
    A = Asm()
    DK = dkv or D[0]
    SP = [68, 70, 72, 74, 76, 78, 80, 82, 62, 100, 32, 36]
    role = ["A"]
    def stamp(i):
        if diag: A(f"s_memrealtime s[{SP[i]}:{SP[i]+1}]")
        if prof and prof == f"{role[0]}{i}": A("s_memrealtime s[68:69]")
        if amp and i == 0: A("s_memrealtime s[74:75]")
    def profend():
        if prof and prof[0] == role[0]:
            L = A.lab("PR")
            if amp:
                A("s_waitcnt lgkmcnt(0)"); A("s_sub_u32 s72, s68, s74"); A(f"s_mul_i32 s72, s72, {amp}"); A("s_add_u32 s68, s74, s72")
                A(f"{L}:"); A("s_memrealtime s[70:71]"); A("s_waitcnt lgkmcnt(0)"); A("s_sub_u32 s72, s70, s68"); A("s_cmp_lt_i32 s72, 2000"); A(f"s_cbranch_scc1 {L}")
                return
            A(f"{L}:"); A("s_memrealtime s[70:71]"); A("s_waitcnt lgkmcnt(0)"); A("s_sub_u32 s72, s70, s68"); A("s_cmp_lt_u32 s72, 2000"); A(f"s_cbranch_scc1 {L}")
    def dump_stamps(n, extra=(), final=False):
        if not diag: return
        A("s_waitcnt lgkmcnt(0)")
        A("s_mov_b64 exec, -1")
        A("v_mov_b32 v3, 0")
        for i in range(n): A(f"v_writelane_b32 v3, s{SP[i]}, {i}")
        for k, r in enumerate(extra):
            A(f"v_readfirstlane_b32 s60, {r}"); A(f"v_writelane_b32 v3, s60, {12+k}")
        A("s_lshl_b32 s60, s3, 6"); A(f"s_add_u32 s60, s60, {FL + 0xC00}"); A("v_lshl_add_u32 v2, v1, 2, s60")
        A("s_mov_b64 exec, 0xffff")
        A("ds_write_b32 v2, v3")
        if final:
            A("s_mov_b64 exec, -1")
            A("s_sleep 16")
            A("v_lshlrev_b32 v2, 4, v1"); A(f"v_add_u32 v3, {FL + 0xC00}, v2")
            A("ds_read_b128 v[16:19], v3"); A("s_waitcnt lgkmcnt(0)")
            A("s_lshl_b32 s60, s2, 10"); A(f"s_add_u32 s60, s60, {DIAG}")
            A("s_mov_b32 exec_hi, 0xf")
            A("buffer_store_dwordx4 v[16:19], v2, s[44:47], s60 offen")
    def spin_tail(L, Ld, inc=1):
        A(f"s_add_u32 s41, s41, {inc}"); A(f"s_cmp_lt_u32 s41, {SPIN_LIMIT}"); A(f"s_cbranch_scc1 {L}"); A(f"{Ld}:")
    def wait_lds(vaddr, th, vt="v2", off=0):
        L = A.lab("W"); Ld = L + "d"
        A(f"{L}:")
        A(f"ds_read_b32 {vt}, {vaddr}" + (f" offset:{off}" if off else ""))
        A("s_waitcnt lgkmcnt(0)")
        A(f"v_cmp_gt_i32 vcc, {th}, {vt}")
        A(f"s_cbranch_vccz {Ld}")
        if lsleep: A(f"s_sleep {lsleep}")
        spin_tail(L, Ld)
    def srd(d, b, size):
        A(f"s_mov_b32 s{d}, s{b}"); A(f"s_mov_b32 s{d+1}, s{b+1}"); A(f"s_mov_b32 s{d+2}, {size:#x}"); A(f"s_mov_b32 s{d+3}, 0x20000")
    WSZ = 0x800000 if diag else WS_USED

    A(f"{NAME}:")
    A("s_cmp_ge_u32 s2, 256")
    A("s_cbranch_scc1 L_exit")
    A("v_readfirstlane_b32 s3, v0")
    stamp(0)
    A("v_and_b32 v1, 63, v0")
    A("s_mov_b32 s41, 0")
    A("s_lshr_b32 s4, s2, 6")
    A("s_and_b32 s5, s2, 63")
    A("s_and_b32 s6, s2, 7")
    A("s_lshr_b32 s7, s2, 3")
    A("s_lshr_b32 s3, s3, 6")
    A("s_cbranch_scc0 L_loader")
    A("s_getpc_b64 s[54:55]")
    A("L_pc:")
    A("v_subrev_u32 v2, 64, v0"); A("v_lshlrev_b32 v2, 7, v2"); A("v_min_u32 v2, L_codeend-L_pc-4, v2")
    A("global_load_dword v160, v2, s[54:55]")
    A("v_mov_b32 v3, 0")
    A(f"v_lshlrev_b32 v9, 2, v0"); A(f"v_add_u32 v9, {FL}, v9")
    A(f"v_lshlrev_b32 v2, 2, v1"); A(f"v_add_u32 v2, {FL}, v2")
    A("ds_write_b32 v9, v3"); A("ds_write_b32 v2, v3"); A(f"ds_write_b32 v2, v3 offset:{11*256}")
    A("s_waitcnt lgkmcnt(0)")
    A("s_barrier")
    if elim == 1: A("s_endpgm")
    A("s_load_dwordx16 s[16:31], s[0:1], 0")
    A("s_load_dwordx8 s[32:39], s[0:1], 64")
    if fpre == 4:
        A("s_waitcnt lgkmcnt(0)")
        A("s_cmp_lg_u32 s3, 8"); A("s_cbranch_scc1 L_nf4")
        A(f"s_mul_i32 s8, s2, {FBLK}"); A(f"s_add_u32 s8, s8, {FP}"); A("v_lshl_add_u32 v2, v1, 7, s8")
        A("global_load_dword v160, v2, s[38:39]")
        A("L_nf4:")
    if xoff:
        A("s_cmp_gt_u32 s3, 4"); A("s_cbranch_scc1 L_nx")
        A("v_lshrrev_b32 v3, 5, v0"); A("v_subrev_u32 v3, 2, v3")
        A("v_and_b32 v2, 31, v1"); A("v_xor_b32 v2, v2, v3"); A("v_lshlrev_b32 v2, 4, v2"); A("v_lshl_add_u32 v2, v3, 11, v2")
        A("s_lshl_b32 s8, s4, 9"); A("v_add_u32 v2, s8, v2")
        A("s_lshl_b32 s8, s3, 10"); A(f"s_add_u32 m0, s8, {XS - 1024}")
        A("s_waitcnt lgkmcnt(0)")
        A("global_load_lds_dwordx4 v2, s[16:17]")
        A("s_waitcnt vmcnt(0)")
        A("v_mov_b32 v2, 1"); A("ds_write_b32 v9, v2")
        A("L_nx:")
    A("s_cmp_lg_u32 s3, 5"); A("s_cbranch_scc1 L_ng5")
    A("s_and_b32 s8, s7, 7"); A("s_lshl_b32 s8, s8, 11"); A("v_lshlrev_b32 v2, 5, v1"); A("v_add_u32 v3, s8, v2")
    A("s_waitcnt lgkmcnt(0)")
    A("s_load_dword s40, s[38:39], 0")
    A("global_load_dwordx4 v[96:99], v3, s[16:17]"); A("global_load_dwordx4 v[100:103], v3, s[16:17] offset:16")
    A("global_load_dwordx4 v[104:107], v2, s[32:33]"); A("global_load_dwordx4 v[108:111], v2, s[32:33] offset:16")
    A("L_ng5:")
    A("s_waitcnt vmcnt(0) lgkmcnt(0)")
    A("s_branch L_notloader")

    A("L_loader:")
    role[0] = "L"
    A("s_load_dwordx16 s[16:31], s[0:1], 0")
    A("s_load_dwordx8 s[32:39], s[0:1], 64")
    A(f"s_setprio {lprio}")
    if diag: A("s_memtime s[90:91]")
    if not xoff:
        A("v_lshrrev_b32 v14, 5, v1"); A("v_and_b32 v15, 31, v1"); A("v_xor_b32 v15, v15, v14"); A("v_lshlrev_b32 v2, 11, v14"); A("v_lshl_add_u32 v4, v15, 4, v2")
        A("v_xor_b32 v17, 32, v4"); A("v_xor_b32 v18, 64, v4"); A("v_xor_b32 v19, 32, v18")
    A("v_lshrrev_b32 v13, 3, v1"); A("v_and_b32 v2, 6, v13"); A("v_and_b32 v3, 7, v1"); A("v_xor_b32 v3, v3, v2"); A("v_lshlrev_b32 v12, 4, v3")
    A("v_lshl_add_u32 v5, v13, 13, v12"); A("v_mov_b32 v6, v5"); A("v_mov_b32 v7, v5"); A("v_mov_b32 v8, v5")
    A("v_mul_u32_u24 v24, 0x1c00, v13"); A("v_add_u32 v24, v24, v12")
    A("v_lshrrev_b32 v2, 4, v1"); A("v_and_b32 v3, 15, v1"); A("v_xor_b32 v9, v3, v2"); A("v_lshlrev_b32 v9, 4, v9"); A("v_lshl_add_u32 v16, v2, 8, v9")
    A("v_lshlrev_b32 v9, 1, v2"); A("v_xor_b32 v9, v3, v9"); A("v_lshlrev_b32 v9, 4, v9"); A("v_lshl_add_u32 v20, v2, 8, v9")
    A("v_lshl_add_u32 v22, v2, 11, v9")
    A(f"v_mov_b32 v29, {FL}"); A("v_lshl_add_u32 v10, v1, 2, v29"); A("v_and_b32 v2, 3, v1"); A("v_mul_u32_u24 v2, 0x104, v2"); A("v_add_u32 v29, v2, v29")
    A("s_lshl_b32 s8, s4, 9")
    A("s_lshl_b32 s10, s5, 7"); A("s_lshl_b32 s9, s4, 21"); A("s_add_u32 s9, s9, s10")
    A(f"s_mul_i32 s42, s4, {256*7168}"); A("s_add_u32 s42, s42, s10")
    A("s_and_b32 s15, s7, 24"); A("s_add_u32 s15, s15, s6"); A("s_lshl_b32 s15, s15, 5"); A("s_and_b32 s12, s7, 7"); A("s_add_u32 s15, s15, s12")
    A("s_add_u32 s15, s15, 24"); A("s_lshl_b32 s15, s15, 15")
    A("s_lshl_b32 s14, s12, 12")
    A(f"s_mov_b32 m0, {XS}")
    A("s_movk_i32 s46, 0x4000"); A("s_mov_b32 s47, 0x20000"); A("s_mov_b32 s50, 0x800000"); A("s_mov_b32 s51, 0x20000")
    A(f"s_mov_b32 s43, {4 + 4 - (dwq or D[0])}"); A("s_mov_b32 s11, 0xfc00"); A("s_mov_b32 s13, 8")
    A("s_barrier")
    A("s_waitcnt lgkmcnt(0)")
    stamp(3)
    A("s_mov_b64 s[44:45], s[16:17]"); A("s_mov_b64 s[48:49], s[22:23]")
    for i in range(0 if xoff else 4):
        A(f"buffer_load_dwordx4 v{4 if i == 0 else 16+i}, s[44:47], s8 offen offset:{i*1024} lds")
        if i < 3: A("s_addk_i32 s8, 0xc00")
    A("s_mov_b32 m0, 0")
    A(f"s_call_b64 s[52:53], {'L_loop3' if dwq else 'L_loop'}")
    if dwq:
        A(f"s_add_i32 s43, s43, {dwq - DK}")
        if not xoff: A("s_waitcnt vmcnt(32)"); A("v_mov_b32 v11, 4"); A("ds_write_b32 v10, v11")
    stamp(6)
    A("s_mov_b64 s[48:49], s[18:19]"); A("s_mov_b32 s50, 0x2000000"); A("s_mov_b32 s9, s15"); A("s_mov_b32 s13, 8"); A(f"s_mov_b32 s10, {R1}")
    A("v_mov_b32 v5, v16"); A("v_xor_b32 v6, 64, v16"); A("v_xor_b32 v7, 0x80, v16"); A("v_xor_b32 v8, 64, v7")
    A("s_call_b64 s[52:53], L_loopx")
    stamp(7)
    A("s_mov_b64 s[48:49], s[20:21]"); A("s_mov_b32 s9, s15"); A("s_mov_b32 s13, 8")
    A("v_mov_b32 v5, v20"); A("v_xor_b32 v6, 0x80, v20"); A("v_mov_b32 v7, v20"); A("v_mov_b32 v8, v6")
    A("s_call_b64 s[52:53], L_loopx")
    stamp(9)
    if DK != D[0]: A(f"s_add_i32 s43, s43, {DK - D[0]}")
    A("s_cmp_ge_u32 s5, 56"); A("s_cbranch_scc1 L_now1")
    A(f"s_mov_b32 m0, {R3}"); A("s_mov_b32 s50, 0x700000")
    A("s_mov_b64 s[48:49], s[28:29]"); A("s_mov_b32 s9, s42"); A(f"s_mov_b32 s11, {8*7168-1024}"); A("s_mov_b32 s13, 8")
    A("v_mov_b32 v5, v24"); A("v_mov_b32 v6, v24"); A("v_mov_b32 v7, v24"); A("v_mov_b32 v8, v24")
    A("s_call_b64 s[52:53], L_loop")
    A("L_now1:")
    stamp(1)
    assert D[0] <= 32
    A("s_mov_b64 s[48:49], s[24:25]"); A("s_mov_b32 s50, 0x800000")
    A("s_lshl_b32 s9, s7, 10"); A("s_add_u32 s9, s9, s6"); A("s_lshl_b32 s9, s9, 8")
    A("s_movk_i32 s11, 0x1c00"); A("s_mov_b32 s13, 8")
    A("v_mov_b32 v5, v22"); A("v_xor_b32 v6, 0x80, v22"); A("v_mov_b32 v7, v22"); A("v_mov_b32 v8, v6")
    A("s_mov_b32 m0, 0")
    if not elim: wait_lds("v29", 3, off=256)
    L2 = 'L_loop2' if D[1] != D[0] else 'L_loop'
    if D[1] != D[0] and not d2last: A(f"s_add_i32 s43, s43, {D[0] - D[1]}")
    A(f"s_call_b64 s[52:53], {'L_loop' if d2last else L2}")
    if D[1] != D[0] and d2last: A(f"s_add_i32 s43, s43, {D[0] - D[1]}")
    A("s_mov_b64 s[48:49], s[30:31]"); A("s_mov_b32 s50, 0x700000")
    A("s_mul_i32 s9, s7, 0x380"); A("s_add_u32 s9, s9, s6"); A("s_lshl_b32 s9, s9, 8"); A("s_mov_b32 s13, 7")
    A(f"s_call_b64 s[52:53], {L2}")
    Dl = D[1]
    prev = Dl - 4
    for k in range(Dl - 4, -1, -4):
        if k % 8 != 4 and k != 0: continue
        A(f"s_waitcnt vmcnt({k})")
        if prev != k: A(f"s_add_i32 s43, s43, {prev - k}")
        prev = k
        A("v_mov_b32 v11, s43"); A("ds_write_b32 v10, v11")
    stamp(2)
    profend()
    if not elim and (diag or not dtail): A("s_branch L_red")
    A("L_exit:")
    A("s_endpgm")
    A("L_loopx:")
    A("s_xor_b32 m0, s10, s14"); A("s_xor_b32 s8, s9, s14")
    for u in range(4):
        A(f"s_waitcnt vmcnt({DK-1})")
        if u == 3:
            A("v_mov_b32 v11, s43"); A("ds_write_b32 v10, v11")
        A(f"buffer_load_dwordx4 v{5+u}, s[48:51], s8 offen offset:{u*1024} nt lds")
    A("s_addk_i32 s9, 0x1000"); A("s_addk_i32 s10, 0x1000"); A("s_add_i32 s43, s43, 4")
    A("s_sub_u32 s13, s13, 1"); A("s_cmp_lg_u32 s13, 0"); A("s_cbranch_scc1 L_loopx")
    A("s_setpc_b64 s[52:53]")
    for lab, Dd in (("L_loop3", dwq), ("L_loop", D[0]), ("L_loop2", D[1])):
        if lab == "L_loop2" and D[1] == D[0]: continue
        if lab == "L_loop3" and not dwq: continue
        A(f"{lab}:")
        for u in range(4):
            A(f"s_waitcnt vmcnt({Dd-1})")
            if u == 3:
                A("v_mov_b32 v11, s43"); A("ds_write_b32 v10, v11")
            A(f"buffer_load_dwordx4 v{5+u}, s[48:51], s9 offen offset:{u*1024} nt lds")
            A("s_add_u32 s9, s9, s11")
        A("s_addk_i32 s9, 0x1000"); A("s_add_u32 m0, m0, 0x1000"); A("s_add_i32 s43, s43, 4")
        A("s_sub_u32 s13, s13, 1"); A("s_cmp_lg_u32 s13, 0"); A(f"s_cbranch_scc1 {lab}")
        A("s_setpc_b64 s[52:53]")

    def flag(stage):
        A(f"v_mov_b32 v2, {stage}"); A("ds_write_b32 v9, v2")
    def gather(loads, full="-1", tb=112, mid=None, cnt=None, tags=(1, 3)):
        N = len(loads)
        L = A.lab("G"); Ld = L + "d"; Lc = L + "c"
        for d, t in loads: A(t)
        if mid: mid()
        A(f"{Lc}:")
        if diag and cnt: A(f"v_add_u32 {cnt}, 1, {cnt}")
        A("s_waitcnt vmcnt(0)")
        for i, (d, t) in enumerate(loads):
            A(f"v_xor_b32 v{tb+i}, v{d+tags[0]}, v15")
            if len(tags) > 1: A(f"v_bitop3_b32 v{tb+i}, v{tb+i}, v{d+tags[1]}, v15 bitop3:0xf6")
        if N == 1: A(f"v_cmp_ne_u32 vcc, 0, v{tb}")
        else:
            A(f"v_or_b32 v2, v{tb}, v{tb+1}")
            for i in range(2, N, 2): A(f"v_or3_b32 v2, v2, v{tb+i}, v{tb+i+1}")
            A("v_cmp_ne_u32 vcc, 0, v2")
        A(f"s_cbranch_vccz {Ld}")
        A("s_add_u32 s41, s41, 16"); A(f"s_cmp_ge_u32 s41, {SPIN_LIMIT}"); A(f"s_cbranch_scc1 {Ld}")
        for i in range(N): A(f"v_cmp_ne_u32 s[{16+2*i}:{17+2*i}], 0, v{tb+i}")
        for i, (d, t) in enumerate(loads):
            m = 16 + 2*i
            sk = A.lab("S")
            A(f"s_mov_b64 exec, s[{m}:{m+1}]"); A(f"s_cbranch_execz {sk}"); A(t); A(f"{sk}:")
        A(f"s_mov_b64 exec, {full}")
        A(f"s_branch {Lc}")
        A(f"{Ld}:")
    def sum4(base, n, stride, out):
        for k, off in enumerate((0, 2)):
            for i in range(n):
                r = base + stride * i + off
                if i == 0:
                    A(f"v_lshlrev_b32 v{out+2*k}, 16, v{r}"); A(f"v_and_b32 v{out+2*k+1}, 0xffff0000, v{r}")
                else:
                    A(f"v_lshlrev_b32 v2, 16, v{r}"); A(f"v_and_b32 v3, 0xffff0000, v{r}")
                    A(f"v_add_f32 v{out+2*k}, v{out+2*k}, v2"); A(f"v_add_f32 v{out+2*k+1}, v{out+2*k+1}, v3")
    def unitpos(dst, u):
        A(f"v_lshrrev_b32 v2, 3, {u}"); A(f"v_lshlrev_b32 {dst}, 6, v2")
        A(f"v_and_b32 v2, 3, {u}"); A(f"v_lshl_add_u32 {dst}, v2, 4, {dst}")
        A(f"v_bfe_u32 v2, {u}, 2, 1"); A(f"v_lshl_add_u32 {dst}, v2, 3, {dst}")

    A("L_red:")
    srd(44, 38, WSZ)
    srd(64, 34, 16384)
    A(f"v_mov_b32 v3, {FL}")
    A(f"ds_read_b32 v15, v3 offset:{9*256}")
    A("v_lshlrev_b32 v28, 4, v1")
    A(f"s_mul_i32 s56, s2, {FBLK}"); A(f"s_add_u32 s56, s56, {FP}"); A("s_add_u32 s57, s56, 4096")
    if diag: A("v_mov_b32 v163, 0")
    if ea < 99 or eb < 99: A("s_branch L_redend")
    A("v_and_b32 v2, 7, v1"); A("v_lshlrev_b32 v30, 3, v2"); A("v_lshrrev_b32 v2, 4, v1"); A("v_lshl_add_u32 v30, v2, 1, v30")
    A("s_lshr_b32 s12, s7, 2"); A("s_lshl_b32 s12, s12, 11"); A("s_lshl_b32 s8, s6, 8"); A("s_add_u32 s12, s12, s8")
    A("s_and_b32 s8, s7, 3"); A("s_lshl_b32 s8, s8, 6"); A("s_add_u32 s12, s12, s8")
    def xred():
        A("v_permlane32_swap_b32 v64, v66"); A("v_permlane32_swap_b32 v65, v67")
        A("v_add_f32 v64, v64, v66"); A("v_add_f32 v65, v65, v67")
        A("v_permlane16_swap_b32 v64, v65"); A("v_add_f32 v64, v64, v65")
        A("v_add_f32_dpp v64, v64, v64 row_ror:8 row_mask:0xf bank_mask:0xf")
    def gate(out, gv):
        A("v_cvt_pk_bf16_f32 v64, v64, v64"); A("v_lshlrev_b32 v64, 16, v64")
        A(f"v_mul_f32 v64, {gv}, v64")
        A("v_cvt_pk_bf16_f32 v64, v64, v64"); A(f"v_lshlrev_b32 {out}, 16, v64")
    A(f"v_add_u32 v31, {RB}, v28")
    wait_lds("v29", 8, off=256)
    stamp(4)
    if dtail: A("s_branch L_redend")
    A("ds_read_b128 v[64:67], v31"); A("s_waitcnt lgkmcnt(0)")
    A("v_add_f32 v64, v64, v65"); A("v_add_f32 v66, v66, v67"); A("v_add_f32 v64, v64, v66")
    A("v_cvt_pk_bf16_f32 v26, v64, v64")
    A("s_mov_b32 exec_lo, 0x00ff00ff"); A("s_mov_b32 exec_hi, 0x00ff00ff")
    A("buffer_store_short v26, v30, s[64:67], s12 offen")
    A("s_cmp_lg_u32 s2, 0"); A("s_cbranch_scc1 L_redend")
    A("s_mov_b64 exec, 1")
    A("v_mov_b32 v2, 0")
    A("buffer_store_dword v15, v2, s[44:47], 0 offen sc1")
    A("L_redend:")
    stamp(5)
    if diag:
        A("s_memtime s[92:93]"); A("s_waitcnt lgkmcnt(0)"); A("s_sub_u32 s92, s92, s90"); A("s_mov_b64 exec, -1"); A("v_mov_b32 v164, s92")
    dump_stamps(10, ["v163", "v164"], final=True)
    A("s_endpgm")

    A("L_notloader:")
    role[0] = "A"
    srd(44, 38, WSZ)
    A("v_and_b32 v4, 15, v1"); A("v_lshrrev_b32 v5, 4, v1"); A("v_and_b32 v6, 7, v1")
    A(f"v_mov_b32 v7, {FL}")
    A("v_and_b32 v2, 3, v1"); A("v_mul_u32_u24 v2, 0x104, v2"); A(f"v_add_u32 v8, {FL+256}, v2")
    A("v_lshrrev_b32 v2, 1, v5"); A("v_xor_b32 v2, v2, v6"); A("v_lshlrev_b32 v2, 4, v2"); A("v_lshl_add_u32 v10, v6, 9, v2")
    A("v_and_b32 v2, 1, v5"); A("v_lshl_add_u32 v10, v2, 3, v10"); A(f"v_add_u32 v10, {XS}, v10")
    A("v_lshrrev_b32 v11, 2, v1")
    A("v_and_b32 v12, 3, v1"); A("v_lshlrev_b32 v12, 3, v12")
    A("s_mov_b32 s48, 0x00ff00ff"); A("s_mov_b32 s49, 0x00ff00ff")
    A("s_mov_b32 s50, 0xff00ff00"); A("s_mov_b32 s51, 0xff00ff00")
    A("s_sub_u32 s9, s3, 1"); A("s_and_b32 s9, s9, 3")
    A("v_lshrrev_b32 v2, 1, v11"); A("v_and_b32 v2, 3, v2"); A("v_xor_b32 v2, s9, v2"); A("v_lshlrev_b32 v2, 5, v2")
    A("v_lshl_add_u32 v13, v11, 7, v2"); A("v_add_u32 v13, v13, v12")
    A("v_lshlrev_b32 v14, 14, v6"); A("v_lshl_add_u32 v14, v5, 4, v14")
    A("s_lshl_b32 s52, s4, 17"); A("s_lshl_b32 s8, s5, 8"); A("s_add_u32 s52, s52, s8"); A("s_lshl_b32 s8, s9, 6"); A("s_add_u32 s52, s52, s8")
    A("v_and_b32 v2, 7, v11"); A("v_lshlrev_b32 v2, 5, v2"); A("v_lshl_add_u32 v28, v11, 8, v2"); A("v_add_u32 v28, v28, v12")
    A("s_lshl_b32 s8, s9, 6"); A("v_xor_b32 v150, s8, v28"); A("v_xor_b32 v151, 32, v150")
    A("v_mul_u32_u24 v152, 544, v6"); A("v_lshl_add_u32 v152, v5, 4, v152"); A(f"v_add_u32 v152, {OB}, v152")
    A("v_lshrrev_b32 v2, 1, v6"); A("v_lshlrev_b32 v153, 18, v2"); A("v_and_b32 v2, 1, v6"); A("v_lshl_add_u32 v153, v2, 14, v153")
    A("v_lshl_add_u32 v153, v5, 4, v153"); A("v_lshrrev_b32 v2, 3, v4"); A("v_lshl_add_u32 v153, v2, 6, v153")
    A("s_lshl_b32 s66, s6, 3"); A("s_add_u32 s66, s66, s9"); A("s_lshl_b32 s66, s66, 5"); A("s_add_u32 s66, s66, s7"); A("s_lshl_b32 s66, s66, 7")
    A(f"s_add_u32 s66, s66, {OP}")
    A("v_and_b32 v3, 31, v1"); unitpos("v154", "v3")
    A("v_lshrrev_b32 v2, 5, v1"); A("v_mul_u32_u24 v2, 544, v2"); A("v_add_u32 v154, v154, v2")
    A("s_mul_i32 s8, s9, 1088"); A(f"s_add_u32 s8, s8, {OB}"); A("v_add_u32 v154, s8, v154")
    A("s_lshl_b32 s8, s9, 10"); A(f"s_add_u32 s8, s8, {TB}"); A("v_lshl_add_u32 v147, v1, 4, s8")
    A("s_cmp_ge_u32 s5, 56"); A("s_cselect_b32 s67, 100, 64"); A("s_cselect_b32 s8, 0, 68"); A("s_add_u32 s67, s67, s8")
    if diag:
        A("v_mov_b32 v161, 0"); A("v_mov_b32 v162, 0"); A("v_mov_b32 v163, 0")
    A("s_cmp_ge_u32 s3, 5"); A("s_cbranch_scc1 L_B")

    def p1_run():
        for ks in range(8):
            A(f"ds_read_b64_tr_b16 v[{64+4*ks}:{65+4*ks}], v13 offset:{ks*4096}")
            A(f"ds_read_b64_tr_b16 v[{66+4*ks}:{67+4*ks}], v13 offset:{ks*4096 + 2048}")
        for ks in range(8):
            A(f"s_waitcnt lgkmcnt({min(15, 14 - 2*ks)})")
            c = "0" if ks == 0 else "v[16:19]"
            A(f"v_mfma_f32_16x16x32_bf16 v[16:19], v[{64+4*ks}:{67+4*ks}], v[{32+4*ks}:{35+4*ks}], {c}")
        A("v_cvt_pk_bf16_f32 v20, v16, v17"); A("v_cvt_pk_bf16_f32 v22, v18, v19")
        A("s_mov_b64 exec, s[48:49]")
        A("buffer_store_dwordx4 v[20:23], v14, s[44:47], s52 offen sc1")
        A("s_mov_b64 exec, -1")
    def xfrags():
        if xoff: wait_lds("v8", 1)
        else: wait_lds("v7", 4)
        for var in range(4):
            if var: A(f"v_xor_b32 v3, {var*32}, v10")
            for kk in range(4):
                ks = kk*2 + (var >> 1); hh = var & 1
                A(f"ds_read_b64 v[{32+4*ks+2*hh}:{33+4*ks+2*hh}], {'v3' if var else 'v10'} offset:{kk*128}")
    def get_mode():
        wait_lds("v7", 1, off=11*256)
        A("v_readfirstlane_b32 s53, v2")
        A("v_lshl_add_u32 v3, v6, 3, v7"); A(f"ds_read_b64 v[164:165], v3 offset:{10*256}")
        A("v_mov_b32 v157, v15"); A("v_mov_b32 v159, v15")
    def publish_final(acc, glob=False):
        A(f"v_cvt_pk_bf16_f32 v16, v{acc}, v{acc+1}"); A(f"v_cvt_pk_bf16_f32 v17, v{acc+2}, v{acc+3}")
        A(f"v_cvt_pk_bf16_f32 v18, v{acc+4}, v{acc+5}"); A(f"v_cvt_pk_bf16_f32 v19, v{acc+6}, v{acc+7}")
        A("v_cndmask_b32 v156, v16, v18, s[50:51]"); A("v_cndmask_b32 v158, v17, v19, s[50:51]")
        if glob:
            A("buffer_store_dwordx4 v[156:159], v153, s[44:47], s66 offen sc1"); return
        Lg = A.lab("F"); Le = Lg + "e"
        A("s_cmp_eq_u32 s53, 2"); A(f"s_cbranch_scc0 {Lg}")
        A("buffer_store_dwordx4 v[156:159], v153, s[44:47], s66 offen")
        A(f"s_branch {Le}")
        A(f"{Lg}:")
        A("buffer_store_dwordx4 v[156:159], v153, s[44:47], s66 offen sc1")
        A(f"{Le}:")

    A("s_load_dword s40, s[38:39], 0")
    A(f"s_add_u32 s52, s52, {QP}")
    A("s_and_b32 s10, s7, 24"); A("s_add_u32 s10, s10, s6")
    A("s_lshr_b32 s11, s10, 2")
    A("s_and_b32 s12, s10, 3")
    A("s_and_b32 s13, s7, 7")
    A("v_xor_b32 v2, v5, v4"); A("v_lshlrev_b32 v2, 4, v2"); A("v_lshl_add_u32 v24, v4, 8, v2")
    A("s_lshl_b32 s8, s9, 13"); A(f"s_add_u32 s8, s8, {R1}"); A("v_add_u32 v24, s8, v24")
    A("v_xor_b32 v25, 64, v24"); A("v_xor_b32 v26, 0x80, v24"); A("v_xor_b32 v27, 0xc0, v24")
    A(f"v_add_u32 v148, {R2}, v150"); A(f"v_add_u32 v149, {R2}, v151")
    A("s_lshr_b32 s14, s13, 1"); A("s_xor_b32 s14, s14, s9"); A("s_lshl_b32 s14, s14, 3"); A("s_add_u32 s14, s14, 44")
    A("v_lshlrev_b32 v29, 4, v1")
    A("s_lshl_b32 s56, s11, 14"); A("s_lshl_b32 s8, s12, 12"); A("s_add_u32 s56, s56, s8"); A("s_lshl_b32 s8, s9, 10"); A("s_add_u32 s56, s56, s8")
    A(f"s_add_u32 s56, s56, {QP}"); A("s_add_u32 s57, s56, 0x20000"); A("s_add_u32 s58, s56, 0x40000"); A("s_add_u32 s59, s56, 0x60000")
    A("v_lshrrev_b32 v2, 5, v1"); A("v_mul_u32_u24 v2, 288, v2"); A("v_and_b32 v3, 31, v1"); A("v_lshl_add_u32 v30, v3, 3, v2")
    A("s_mul_i32 s8, s9, 576"); A(f"s_add_u32 s8, s8, {QB}"); A("v_add_u32 v30, s8, v30")
    A("v_mul_u32_u24 v31, 288, v6"); A("v_lshl_add_u32 v31, v5, 4, v31"); A(f"v_add_u32 v31, {QB}, v31")
    A(f"v_add_u32 v106, {PB}, v29"); A("s_lshl_b32 s8, s9, 10"); A("v_add_u32 v104, s8, v106")
    A("v_lshlrev_b32 v107, 5, v6"); A(f"v_add_u32 v107, {ST}, v107"); A("s_lshl_b32 s8, s9, 2"); A("v_add_u32 v105, s8, v107")
    A("v_lshrrev_b32 v2, 3, v4")
    A("v_lshlrev_b32 v108, 12, v6"); A("v_lshl_add_u32 v108, v5, 4, v108"); A("v_lshl_add_u32 v108, v2, 6, v108")
    A("v_lshlrev_b32 v109, 6, v6")
    A("s_lshl_b32 s8, s9, 1"); A("s_lshl_b32 s42, 3, s8"); A("s_mov_b32 s43, 0")
    A("s_lshl_b32 s84, s10, 15"); A("s_lshl_b32 s8, s9, 7"); A("s_add_u32 s84, s84, s8"); A(f"s_add_u32 s84, s84, {OP}")
    A("s_lshl_b32 s8, s13, 9"); A("s_add_u32 s60, s84, s8")
    A("s_lshl_b32 s8, s13, 12"); A("s_add_u32 s84, s84, s8")
    A("s_lshl_b32 s85, s10, 9"); A(f"s_add_u32 s85, s85, {LSE}")
    A("s_lshl_b32 s8, s13, 3"); A("s_add_u32 s61, s85, s8")
    A("s_lshl_b32 s8, s13, 6"); A("s_add_u32 s85, s85, s8")
    A("v_lshrrev_b32 v2, 3, v1"); A("v_lshlrev_b32 v144, 9, v2"); A("v_lshl_add_u32 v144, v6, 4, v144"); A("v_lshlrev_b32 v145, 3, v2")
    A("s_lshl_b32 s86, s12, 3"); A("s_add_u32 s86, s86, s13"); A("s_lshl_b32 s86, s86, 3"); A("s_add_u32 s86, s86, s11"); A("s_lshl_b32 s86, s86, 2")
    A("s_add_u32 s86, s86, s9"); A("s_lshl_b32 s86, s86, 7"); A(f"s_add_u32 s86, s86, {OF}")
    A("v_lshrrev_b32 v2, 5, v1"); A("v_lshlrev_b32 v146, 3, v2"); A("v_lshl_add_u32 v146, v6, 4, v146")
    A("s_lshl_b32 s87, s7, 2"); A("s_add_u32 s87, s87, s9"); A("s_lshl_b32 s87, s87, 10"); A(f"s_add_u32 s87, s87, {OF}")
    A(f"s_mov_b32 s64, {SCALE:#x}"); A(f"s_mov_b32 s65, {L2E:#x}")
    xfrags()
    A(f"s_add_u32 s40, s40, {TAGK:#x}")
    A("v_mov_b32 v15, s40"); A("v_mov_b32 v21, s40"); A("v_mov_b32 v23, s40")
    A(f"v_mov_b32 v3, {FL + 9*256}"); A("v_lshl_add_u32 v3, v1, 2, v3"); A("ds_write_b32 v3, v15")
    wait_lds("v7", 36)
    stamp(1)
    p1_run()
    flag(2)
    if opre == 2:
        A("buffer_load_dword v160, v144, s[44:47], s84 offen")
        A("buffer_load_dword v160, v145, s[44:47], s85 offen")
    stamp(2)
    def kpull():
        wait_lds("v7", "s14")
        for t in range(2):
            for s in range(4):
                A(f"ds_read_b128 v[{32+16*t+4*s}:{35+16*t+4*s}], v{24+s} offset:{t*4096}")
        A("s_waitcnt lgkmcnt(0)")
        flag(3)
    if not kmid: kpull()
    A("v_mov_b32 v111, v15")
    if ea == 0: kpull(); A("s_endpgm")
    wait_lds("v7", q_start)
    stamp(3)
    def amode():
        if kmid: kpull()
    gather([(64+4*sp, f"buffer_load_dwordx4 v[{64+4*sp}:{67+4*sp}], v29, s[44:47], s{56+sp} offen sc1") for sp in range(4)], cnt="v161", mid=amode)
    stamp(4)
    sum4(64, 4, 4, 16)
    A("v_cvt_pk_bf16_f32 v20, v16, v17"); A("v_cvt_pk_bf16_f32 v21, v18, v19")
    A("ds_write_b64 v30, v[20:21]")
    flag(4)
    wait_lds("v8", 4)
    A("ds_read_b32 v28, v7")
    for s in range(4):
        A(f"ds_read_b128 v[{64+4*s}:{67+4*s}], v31 offset:{s*64}")
    for s in range(4):
        A(f"s_waitcnt lgkmcnt({3-s})")
        for t in range(2):
            c = "0" if s == 0 else f"v[{16+4*t}:{19+4*t}]"
            A(f"v_mfma_f32_16x16x32_bf16 v[{16+4*t}:{19+4*t}], v[{32+16*t+4*s}:{35+16*t+4*s}], v[{64+4*s}:{67+4*s}], {c}")
    def vreads():
        for w in range(4):
            for q in range(2):
                f = 112 + (w*2 + q)*4
                A(f"ds_read_b64_tr_b16 v[{f}:{f+1}], v{148+q} offset:{w*8192}")
                A(f"ds_read_b64_tr_b16 v[{f+2}:{f+3}], v{148+q} offset:{w*8192 + 4096}")
    A("v_readfirstlane_b32 s15, v28")
    A("s_cmp_lt_i32 s15, 100"); A("s_cbranch_scc1 L_vlate")
    vreads()
    A("L_vlate:")
    A("s_nop 4")
    if mimic:
        for i in range(4):
            a, b = 16 + 2*i, 17 + 2*i
            A(f"v_cvt_pk_bf16_f32 v2, v{a}, v{b}")
            A(f"v_lshlrev_b32 v{a}, 16, v2"); A(f"v_and_b32 v{b}, 0xffff0000, v2")
            A(f"v_mul_f32 v{a}, s64, v{a}"); A(f"v_mul_f32 v{b}, s64, v{b}")
            A(f"v_cvt_pk_bf16_f32 v2, v{a}, v{b}")
            A(f"v_lshlrev_b32 v{a}, 16, v2"); A(f"v_and_b32 v{b}, 0xffff0000, v2")
    else:
        for i in range(8): A(f"v_mul_f32 v{16+i}, s64, v{16+i}")
    A("v_max3_f32 v2, v16, v17, v18"); A("v_max3_f32 v3, v19, v20, v21"); A("v_max3_f32 v2, v2, v22, v23"); A("v_max_f32 v2, v2, v3")
    A("v_mov_b32 v3, v2"); A("v_permlane16_swap_b32 v2, v3"); A("v_max_f32 v2, v2, v3")
    A("v_mov_b32 v3, v2"); A("v_permlane32_swap_b32 v2, v3"); A("v_max_f32 v2, v2, v3")
    A("v_mul_f32 v96, s65, v2")
    for i in range(8): A(f"v_fma_f32 v{16+i}, v{16+i}, s65, -v96")
    for i in range(8): A(f"v_exp_f32 v{16+i}, v{16+i}")
    for i in range(4): A(f"v_cvt_pk_bf16_f32 v{100+i}, v{16+2*i}, v{17+2*i}")
    A("ds_write_b128 v104, v[100:103]")
    A("v_add_f32 v2, v16, v17"); A("v_add_f32 v3, v18, v19"); A("v_add_f32 v2, v2, v20"); A("v_add_f32 v3, v3, v21")
    A("v_add_f32 v2, v2, v22"); A("v_add_f32 v3, v3, v23"); A("v_add_f32 v97, v2, v3")
    A("v_mov_b32 v3, v97"); A("v_permlane16_swap_b32 v97, v3"); A("v_add_f32 v97, v97, v3")
    A("v_mov_b32 v3, v97"); A("v_permlane32_swap_b32 v97, v3"); A("v_add_f32 v97, v97, v3")
    A("s_mov_b64 exec, 0xff")
    A("ds_write2_b32 v105, v96, v97 offset0:0 offset1:4")
    A("s_mov_b64 exec, -1")
    flag(5)
    stamp(5)
    A("s_cmp_ge_i32 s15, 100"); A("s_cbranch_scc1 L_vdone")
    wait_lds("v7", 100)
    vreads()
    A("L_vdone:")
    get_mode()
    wait_lds("v8", 5)
    for w in range(4): A(f"ds_read_b128 v[{64+4*w}:{67+4*w}], v106 offset:{w*1024}")
    A("ds_read_b128 v[16:19], v107"); A("ds_read_b128 v[20:23], v107 offset:16")
    for w in range(4):
        A(f"s_waitcnt lgkmcnt({5-w})")
        for q in range(2):
            f = 112 + (w*2 + q)*4; d = 32 + (w*2 + q)*4
            A(f"v_mfma_f32_16x16x32_bf16 v[{d}:{d+3}], v[{f}:{f+3}], v[{64+4*w}:{67+4*w}], 0")
    A("s_waitcnt lgkmcnt(0)")
    A("v_max3_f32 v2, v16, v17, v18"); A("v_max_f32 v2, v2, v19")
    for i in range(4): A(f"v_sub_f32 v{16+i}, v{16+i}, v2")
    for i in range(4): A(f"v_exp_f32 v{16+i}, v{16+i}")
    A("v_mul_f32 v3, v16, v20")
    for i in range(1, 4): A(f"v_fmac_f32 v3, v{16+i}, v{20+i}")
    A("v_rcp_f32 v20, v3"); A("v_log_f32 v21, v3")
    for i in range(4): A(f"v_mul_f32 v{16+i}, v{16+i}, v20")
    A("v_add_f32 v110, v2, v21")
    for k in range(8): A(f"v_mul_f32 v{80+k}, v16, v{32+k}")
    for w in range(1, 4):
        for k in range(8): A(f"v_fmac_f32 v{80+k}, v{16+w}, v{32+8*w+k}")
    A("v_cvt_pk_bf16_f32 v16, v80, v81"); A("v_cvt_pk_bf16_f32 v17, v82, v83"); A("v_cvt_pk_bf16_f32 v18, v84, v85"); A("v_cvt_pk_bf16_f32 v19, v86, v87")
    A("v_cndmask_b32 v156, v16, v18, s[50:51]"); A("v_cndmask_b32 v158, v17, v19, s[50:51]")
    if ea == 1: A("s_endpgm")
    if opg == 1: A("s_branch L_opg")
    A("s_cmp_eq_u32 s53, 2"); A("s_cbranch_scc0 L_opg")
    A("buffer_store_dwordx4 v[156:159], v108, s[44:47], s60 offen")
    A("s_mov_b64 exec, s[42:43]")
    A("buffer_store_dwordx2 v[110:111], v109, s[44:47], s61 offen" + (" sc1" if opg == 2 else ""))
    A("s_branch L_opd")
    A("L_opg:")
    A("buffer_store_dwordx4 v[156:159], v108, s[44:47], s60 offen sc1")
    A("s_mov_b64 exec, s[42:43]")
    A("buffer_store_dwordx2 v[110:111], v109, s[44:47], s61 offen sc1")
    A("L_opd:")
    A("s_mov_b64 exec, -1")
    stamp(6)
    def ring(K, st, mk, nreg, tags, base, dst, cnt):
        L = A.lab("R")
        nl = len(mk(base))
        for k in range(K):
            if k and pp:
                if k == 1:
                    A("ds_read_b32 v2, v7"); A("s_add_u32 s14, s67, 60"); A("s_waitcnt lgkmcnt(0)"); A("v_readfirstlane_b32 s13, v2")
                A(f"s_add_u32 s13, s13, {pp}"); A("s_min_u32 s13, s13, s14")
                wait_lds("v7", "s13")
            elif k and st: A(f"s_sleep {st}")
            for t in mk(base + k*nreg): A(t)
        A(f"{L}:")
        for k in range(K):
            r = base + k*nreg
            if diag: A(f"v_add_u32 {cnt}, 1, {cnt}")
            A(f"s_waitcnt vmcnt({nl*(K-1)})")
            A(f"v_xor_b32 v2, v{r+tags[0]}, v15")
            for tg in tags[1:]: A(f"v_bitop3_b32 v2, v2, v{r+tg}, v15 bitop3:0xf6")
            A("v_cmp_ne_u32 vcc, 0, v2")
            A(f"s_cbranch_vccz {L}_{k}")
            for t in mk(r): A(t)
        A("s_add_u32 s41, s41, 32"); A(f"s_cmp_lt_u32 s41, {SPIN_LIMIT}"); A(f"s_cbranch_scc1 {L}")
        for k in range(K):
            r = base + k*nreg
            A(f"{L}_{k}:")
            for d, o in dst: A(f"v_mov_b32 v{d}, v{r+o}")
            if k < K - 1: A(f"s_branch {L}_e")
        A(f"{L}_e:")
    if ea == 2: A("s_endpgm")
    if lh:
        A("s_add_u32 s54, s38, s85"); A("s_addc_u32 s55, s39, 0")
        L = A.lab("P"); Ld = L + "d"; Lr = L + "r"
        A(f"{L}:")
        A("s_load_dwordx16 s[16:31], s[54:55], 0 glc")
        A("s_waitcnt lgkmcnt(0)")
        for i in range(8):
            A(f"s_cmp_eq_u32 s{17+2*i}, s40"); A(f"s_cbranch_scc0 {Lr}")
        A(f"s_branch {Ld}")
        A(f"{Lr}:")
        spin_tail(L, Ld, 16)
    if st0: A(f"s_sleep {st0}")
    ring(K1, st1, lambda r: [f"buffer_load_dwordx4 v[{r}:{r+3}], v144, s[44:47], s84 offen {lf}", f"buffer_load_dwordx2 v[{r+4}:{r+5}], v145, s[44:47], s85 offen {lf}"],
         6, (1, 3, 5), 112, [(16, 0), (17, 2), (18, 4)], "v162")
    stamp(7)
    A("v_max_f32_dpp v2, v18, v18 row_ror:8 row_mask:0xf bank_mask:0xf")
    A("v_lshlrev_b32 v96, 16, v16"); A("v_and_b32 v97, 0xffff0000, v16")
    A("v_mov_b32 v3, v2"); A("v_lshlrev_b32 v98, 16, v17"); A("v_and_b32 v99, 0xffff0000, v17")
    A("v_permlane16_swap_b32 v2, v3"); A("v_max_f32 v2, v2, v3")
    A("v_mov_b32 v3, v2"); A("v_permlane32_swap_b32 v2, v3"); A("v_max_f32 v2, v2, v3")
    A("v_sub_f32 v18, v18, v2"); A("v_exp_f32 v18, v18")
    for k in range(4): A(f"v_mul_f32 v{96+k}, v18, v{96+k}")
    A("v_mov_b32 v19, v18")
    A("v_permlane32_swap_b32 v96, v98"); A("v_permlane32_swap_b32 v97, v99"); A("v_permlane32_swap_b32 v18, v19")
    A("v_add_f32 v96, v96, v98"); A("v_add_f32 v97, v97, v99"); A("v_add_f32 v18, v18, v19")
    A("v_mov_b32 v98, v96"); A("v_mov_b32 v99, v97"); A("v_mov_b32 v19, v18")
    A("v_permlane16_swap_b32 v96, v98"); A("v_permlane16_swap_b32 v97, v99"); A("v_permlane16_swap_b32 v18, v19")
    A("v_add_f32 v18, v18, v19"); A("v_add_f32 v96, v96, v98"); A("v_add_f32 v97, v97, v99")
    for r in (18, 96, 97): A(f"v_add_f32_dpp v{r}, v{r}, v{r} row_ror:8 row_mask:0xf bank_mask:0xf")
    A("v_rcp_f32 v18, v18")
    A("v_mul_f32 v96, v96, v18"); A("v_mul_f32 v97, v97, v18")
    A("v_cvt_pk_bf16_f32 v110, v96, v97")
    A("s_mov_b32 exec_lo, 0xff"); A("s_mov_b32 exec_hi, 0xff")
    A("buffer_store_dwordx2 v[110:111], v146, s[44:47], s86 offen sc1")
    A("s_mov_b64 exec, 1")
    A("s_lshl_b32 s8, s6, 2"); A("s_add_u32 s8, s8, s9"); A("s_lshl_b32 s8, s8, 5"); A("s_add_u32 s8, s8, s7"); A("s_lshl_b32 s8, s8, 2"); A(f"s_add_u32 s8, s8, {DT}")
    A("s_cmp_eq_u32 s53, 2"); A("s_cbranch_scc0 L_dtg")
    A("buffer_store_dword v15, v29, s[44:47], s8 offen")
    A("s_branch L_dtd")
    A("L_dtg:")
    A("buffer_store_dword v15, v29, s[44:47], s8 offen sc1")
    A("L_dtd:")
    A("s_mov_b64 exec, -1")
    A("s_add_u32 s14, s67, 32")
    def wofr():
        wait_lds("v7", "s14")
        for ks in range(4):
            for q in range(2):
                f = 64 + (ks*2 + q)*4
                A(f"ds_read_b64_tr_b16 v[{f}:{f+1}], v{150+q} offset:{R0 + ks*8192}")
                A(f"ds_read_b64_tr_b16 v[{f+2}:{f+3}], v{150+q} offset:{R0 + ks*8192 + 4096}")
    if ea == 3: A("s_endpgm")
    if wopre: wofr()
    if oh:
        A("s_add_u32 s54, s38, s87"); A("s_addc_u32 s55, s39, 0")
        L = A.lab("P"); Ld = L + "d"; Lr = L + "r"
        lines = range(8) if oh == 1 else (0, 4)
        if oh == 2:
            A("s_and_b32 s8, s6, 3"); A("s_lshl_b32 s8, s8, 7"); A("s_add_u32 s54, s54, s8"); A("s_addc_u32 s55, s55, 0")
        A(f"{L}:")
        for i in lines: A(f"s_load_dword s{16+i}, s[54:55], {i*128+4} glc")
        A("s_waitcnt lgkmcnt(0)")
        for i in lines:
            A(f"s_cmp_eq_u32 s{16+i}, s40"); A(f"s_cbranch_scc0 {Lr}")
        A(f"s_branch {Ld}")
        A(f"{Lr}:")
        if hint_sleep: A(f"s_sleep {hint_sleep}")
        spin_tail(L, Ld, 16)
    ring(K2, st2, lambda r: [f"buffer_load_dwordx4 v[{r}:{r+3}], v29, s[44:47], s87 offen sc1"], 4, (1, 3), 32, [(20, 0), (21, 2)], "v163")
    if ea == 4: A("s_endpgm")
    A("ds_write_b64 v154, v[20:21]")
    flag(6)
    stamp(8)
    if not wopre: wofr()
    wait_lds("v8", 6)
    stamp(9)
    for ks in range(4): A(f"ds_read_b128 v[{48+4*ks}:{51+4*ks}], v152 offset:{ks*64}")
    for ks in range(4):
        A(f"s_waitcnt lgkmcnt({3-ks})")
        for q in range(2):
            f = 64 + (ks*2 + q)*4
            c = "0" if ks == 0 else f"v[{136+4*q}:{139+4*q}]"
            A(f"v_mfma_f32_16x16x32_bf16 v[{136+4*q}:{139+4*q}], v[{f}:{f+3}], v[{48+4*ks}:{51+4*ks}], {c}")
    for k in range(4): A(f"v_cndmask_b32 v{16+k}, v{136+k}, v{140+k}, s[50:51]")
    for k in range(4): A(f"v_mul_f32 v{16+k}, v164, v{16+k}")
    A("ds_write_b128 v147, v[16:19]")
    flag(7)
    stamp(10)
    if not dtail:
        A(f"s_mul_i32 s56, s2, {FBLK}"); A("s_lshl_b32 s8, s9, 10"); A("s_add_u32 s56, s56, s8"); A(f"s_add_u32 s56, s56, {FP}")
        A("s_lshl_b32 s8, s9, 2"); A(f"s_add_u32 s8, s8, {RB}"); A("v_add_u32 v30, s8, v29")
        A("s_add_u32 s14, s67, 60")
        if bwait: wait_lds("v7", "s14")
        gather([(100, f"buffer_load_dwordx4 v[100:103], v29, s[44:47], s56 offen {lf}")], tb=104)
        sum4(100, 1, 4, 64)
        xred()
        A("ds_write_b32 v30, v64")
        flag(8)
    else:
        A("s_mul_i32 s8, s9, 96"); A("s_sub_u32 s56, s84, s8")
        A("v_xor_b32 v15, 0x80000000, v15")
        A("v_lshrrev_b32 v2, 1, v1"); A("v_lshlrev_b32 v30, 7, v2"); A("v_and_b32 v2, 1, v1"); A("v_lshl_add_u32 v30, v2, 4, v30")
        A("v_lshlrev_b32 v31, 3, v2"); A("v_lshl_add_u32 v31, v5, 1, v31")
        srd(88, 34, 16384)
        A("s_lshr_b32 s12, s7, 2"); A("s_lshl_b32 s12, s12, 11"); A("s_lshl_b32 s8, s6, 8"); A("s_add_u32 s12, s12, s8")
        A("s_and_b32 s8, s7, 3"); A("s_lshl_b32 s8, s8, 6"); A("s_add_u32 s12, s12, s8"); A("s_lshl_b32 s8, s9, 4"); A("s_add_u32 s12, s12, s8")
        A("s_add_u32 s14, s67, 60")
        if bwait: wait_lds("v7", "s14")
        gather([(100, f"buffer_load_dwordx4 v[100:103], v30, s[44:47], s56 offen {lf}")], tb=104)
        sum4(100, 1, 4, 64)
        xred()
        for r in (4, 2): A(f"v_add_f32_dpp v64, v64, v64 row_ror:{r} row_mask:0xf bank_mask:0xf")
        A("v_cvt_pk_bf16_f32 v64, v64, v64")
        A("s_mov_b32 exec_lo, 0x00030003"); A("s_mov_b32 exec_hi, 0x00030003")
        A(f"buffer_store_short v64, v31, s[88:91], s12 offen {of}")
        A("s_add_u32 s8, s2, s9"); A("s_cbranch_scc1 L_Aend"); A("s_cmp_lg_u32 s8, 0"); A("s_cbranch_scc1 L_Aend")
        A("s_mov_b64 exec, 1")
        A("v_mov_b32 v2, 0")
        A("buffer_store_dword v111, v2, s[44:47], 0 offen sc1")
        A("L_Aend:")
        if diag:
            A("s_mov_b64 exec, -1"); flag(8)
    stamp(11)
    profend()
    dump_stamps(12, ["v161", "v162", "v163"])
    A("s_endpgm")

    A("L_B:")
    role[0] = "B"
    A("s_cmp_lg_u32 s9, 0"); A("s_cbranch_scc1 L_nogate")
    A("v_mov_b32 v16, 0"); A("v_mov_b32 v17, 0")
    for i in range(8):
        x, gw = 96 + i, 104 + i
        A(f"v_lshlrev_b32 v18, 16, v{x}"); A(f"v_and_b32 v19, 0xffff0000, v{x}")
        A(f"v_lshlrev_b32 v20, 16, v{gw}"); A(f"v_and_b32 v21, 0xffff0000, v{gw}")
        A("v_mul_f32 v18, v18, v20"); A("v_mul_f32 v19, v19, v21")
        A("v_cvt_pk_bf16_f32 v18, v18, v19")
        A("v_and_b32 v19, 0xffff0000, v18"); A("v_lshlrev_b32 v18, 16, v18")
        A("v_add_f32 v16, v16, v18"); A("v_add_f32 v17, v17, v19")
    A("v_add_f32 v16, v16, v17")
    for r in (1, 2, 4, 8): A(f"v_add_f32_dpp v16, v16, v16 row_ror:{r} row_mask:0xf bank_mask:0xf")
    for sw in ("v_permlane16_swap_b32", "v_permlane32_swap_b32"):
        A("v_mov_b32 v17, v16"); A(f"{sw} v16, v17"); A("v_add_f32 v16, v16, v17")
    A("v_cvt_pk_bf16_f32 v16, v16, v16"); A("v_lshlrev_b32 v16, 16, v16")
    A(f"v_mul_f32 v16, {0xBFB8AA3B:#x}, v16"); A("v_exp_f32 v16, v16"); A("v_add_f32 v16, 1.0, v16"); A("v_rcp_f32 v16, v16")
    A("v_cvt_pk_bf16_f32 v16, v16, v16"); A("v_lshlrev_b32 v16, 16, v16")
    A("v_sub_f32 v17, 1.0, v16"); A("v_cvt_pk_bf16_f32 v98, v16, v17")
    A(f"s_add_u32 s40, s40, {TAGK:#x}")
    A("s_getreg_b32 s8, hwreg(HW_REG_XCC_ID, 0, 4)")
    A("v_mov_b32 v96, s8"); A("v_mov_b32 v97, s40"); A("v_mov_b32 v99, s40")
    A("s_lshl_b32 s8, s6, 5"); A("s_add_u32 s8, s8, s7"); A("s_lshl_b32 s8, s8, 4"); A(f"s_add_u32 s8, s8, {XT}")
    A("v_mov_b32 v2, 0"); A("s_mov_b64 exec, 1")
    A("buffer_store_dwordx4 v[96:99], v2, s[44:47], s8 offen sc1")
    A("s_mov_b64 exec, -1")
    A("L_nogate:")
    A(f"s_add_u32 s52, s52, {HP}")
    A(f"v_add_u32 v13, {R3}, v13")
    A("s_mul_i32 s10, s5, 37"); A("s_lshr_b32 s10, s10, 8")
    A("s_mul_i32 s8, s10, 7"); A("s_sub_u32 s11, s5, s8")
    A("s_lshr_b32 s12, s11, 1")
    A("s_and_b32 s13, s11, 1"); A("s_min_u32 s8, s12, 1"); A("s_add_u32 s13, s13, s8")
    A("s_lshl_b32 s53, s10, 2"); A("s_add_u32 s53, s53, s12"); A("s_lshl_b32 s53, s53, 10")
    A("s_lshl_b32 s13, s13, 4"); A("s_lshl_b32 s8, s4, 2"); A("s_add_u32 s53, s53, s8"); A(f"s_add_u32 s53, s53, {HH}")
    A("v_lshrrev_b32 v2, 3, v1"); A("v_xor_b32 v2, 1, v2"); A("v_mul_u32_u24 v2, s13, v2"); A("v_lshl_add_u32 v24, v1, 7, v2")
    A("s_bitcmp1_b32 s11, 0"); A("s_mov_b32 s60, 0xff"); A("s_cselect_b32 s60, 0xffff, s60"); A("s_mov_b32 s61, 0")
    A("s_lshl_b32 s8, s2, 7"); A(f"s_add_u32 s8, s8, {HH}"); A("s_add_u32 s54, s38, s8"); A("s_addc_u32 s55, s39, 0")
    A("v_lshrrev_b32 v2, 5, v1"); A("v_lshlrev_b32 v2, 14, v2"); A("v_and_b32 v3, 31, v1"); A("v_lshl_add_u32 v29, v3, 4, v2")
    A("s_mul_i32 s56, s7, 448"); A("s_lshl_b32 s8, s9, 15"); A("s_add_u32 s56, s56, s8"); A(f"s_add_u32 s56, s56, {HP}")
    A("s_add_u32 s57, s56, 0x20000"); A("s_add_u32 s58, s56, 0x40000"); A("s_add_u32 s59, s56, 0x60000")
    A("s_mov_b32 s64, 0x0fffffff"); A("s_mov_b32 s65, 0x0fffffff")
    A("v_lshlrev_b32 v26, 2, v3")
    A("s_lshl_b32 s12, s6, 2"); A("s_and_b32 s8, s7, 3"); A("s_add_u32 s12, s12, s8"); A("s_lshl_b32 s12, s12, 7"); A(f"s_add_u32 s12, s12, {DT}")
    xfrags()
    wait_lds("v8", 2)
    A(f"ds_read_b32 v15, v7 offset:{9*256}")
    A("s_waitcnt lgkmcnt(0)")
    A("v_readfirstlane_b32 s42, v15")
    A("v_mov_b32 v21, v15"); A("v_mov_b32 v23, v15")
    A("s_mov_b32 s43, s42")
    if eb == 0: A("s_endpgm")
    A("s_cmp_lg_u32 s9, 1"); A("s_cbranch_scc1 L_nomode")
    wait_lds("v7", xt)
    A("s_lshl_b32 s8, s6, 9"); A(f"s_add_u32 s8, s8, {XT}")
    A("v_and_b32 v3, 31, v1"); A("v_lshlrev_b32 v25, 4, v3")
    A("buffer_load_dword v160, v26, s[44:47], s12 offen")
    gather([(96, "buffer_load_dwordx4 v[96:99], v25, s[44:47], s8 offen sc1")])
    A("v_lshlrev_b32 v100, 16, v98"); A("v_and_b32 v101, 0xffff0000, v98")
    A("v_lshl_add_u32 v2, v1, 3, v7"); A("s_mov_b64 exec, 0xff"); A(f"ds_write_b64 v2, v[100:101] offset:{10*256}"); A("s_mov_b64 exec, -1")
    A("s_getreg_b32 s8, hwreg(HW_REG_XCC_ID, 0, 4)")
    A("v_xor_b32 v3, s8, v96"); A("v_or_b32 v3, v3, v112")
    A("v_cmp_ne_u32 vcc, 0, v3")
    A("s_cmp_eq_u64 vcc, 0"); A(f"s_cselect_b32 s8, {1 if force_global else 2}, 1")
    A("v_mov_b32 v3, s8"); A(f"v_lshl_add_u32 v2, v1, 2, v7"); A(f"ds_write_b32 v2, v3 offset:{11*256}")
    A("L_nomode:")
    if fpre in (1, 3):
        A("s_cmp_lg_u32 s9, 2"); A("s_cbranch_scc1 L_nofpre")
        wait_lds("v7", fpt)
        A(f"s_mul_i32 s8, s2, {FBLK}"); A(f"s_add_u32 s8, s8, {FP}"); A("v_lshlrev_b32 v2, 7, v1")
        A("s_mov_b32 exec_hi, 0")
        A("buffer_load_dword v160, v2, s[44:47], s8 offen")
        A("s_mov_b64 exec, -1")
        A("L_nofpre:")
    if fpre == 2:
        wait_lds("v7", 1, off=11*256)
        A("v_readfirstlane_b32 s63, v2")
        for k in range(4): A(f"v_xor_b32 v{156+k}, 1, v15")
        A("s_cmp_eq_u32 s63, 2"); A("s_cbranch_scc0 L_nofpre")
        A("buffer_store_dwordx4 v[156:159], v153, s[44:47], s66 offen")
        A("L_nofpre:")
    if eb == 1: A("s_endpgm")
    A("s_cmp_ge_u32 s5, 56"); A("s_cbranch_scc1 L_Bnow1")
    wait_lds("v7", 132)
    stamp(1)
    p1_run()
    flag(2)
    A("s_cmp_lg_u32 s9, 0"); A("s_cbranch_scc1 L_Bnow1")
    wait_lds("v8", 2, off=1024)
    A("s_mov_b64 exec, s[60:61]")
    A("buffer_store_dword v15, v24, s[44:47], s53 offen sc1")
    A("s_mov_b64 exec, -1")
    A("L_Bnow1:")
    stamp(2)
    if eb == 2: A("s_endpgm")
    def w2fr():
        for ks in range(3):
            for q in range(2):
                f = 64 + (ks*2 + q)*4
                A(f"ds_read_b64_tr_b16 v[{f}:{f+1}], v{150+q} offset:{R1 + ks*8192}")
                A(f"ds_read_b64_tr_b16 v[{f+2}:{f+3}], v{150+q} offset:{R1 + ks*8192 + 4096}")
    A("s_add_u32 s14, s67, 56"); A("s_add_u32 s15, s67, 60")
    get_mode()
    wait_lds("v7", 124)
    A("s_add_u32 s8, s7, 1"); A("s_and_b32 s62, s8, 2")
    L = A.lab("P"); Ld = L + "d"; Lr = L + "r"
    A(f"{L}:")
    A("s_load_dwordx16 s[84:99], s[54:55], 0 glc")
    A("s_waitcnt lgkmcnt(0)")
    for i in range(4):
        A(f"s_cmp_eq_u64 s[{84+2*i}:{85+2*i}], s[42:43]"); A(f"s_cbranch_scc0 {Lr}")
    A("s_cmp_eq_u32 s62, 0"); A(f"s_cbranch_scc1 {Ld}")
    for i in range(4, 6):
        A(f"s_cmp_eq_u64 s[{84+2*i}:{85+2*i}], s[42:43]"); A(f"s_cbranch_scc0 {Lr}")
    A(f"s_branch {Ld}")
    A(f"{Lr}:")
    if hint_sleep: A(f"s_sleep {hint_sleep}")
    spin_tail(L, Ld, 16)
    stamp(3)
    if eb == 3: A("s_endpgm")
    A("s_mov_b64 exec, s[64:65]")
    gather([(32+4*i, f"buffer_load_dwordx4 v[{32+4*i}:{35+4*i}], v29, s[44:47], s{56+i} offen sc1") for i in range(4)], full="s[64:65]", cnt="v162")
    sum4(32, 4, 4, 16)
    for k in range(4): A(f"v_max_f32 v{16+k}, 0, v{16+k}")
    A("v_cvt_pk_bf16_f32 v20, v16, v17"); A("v_cvt_pk_bf16_f32 v21, v18, v19")
    A("ds_write_b64 v154, v[20:21] offset:256")
    A("s_mov_b64 exec, -1")
    flag(3)
    stamp(4)
    if eb == 4: A("s_endpgm")
    def bfin():
        if bpre:
            A("ds_read_b32 v2, v7"); A("s_waitcnt lgkmcnt(0)"); A("v_readfirstlane_b32 s13, v2")
            A("s_cmp_lt_i32 s13, s14"); A("s_cbranch_scc1 L_w2no")
            w2fr()
            A("L_w2no:")
        wait_lds("v8", 3, off=1024)
        for ks in range(3): A(f"ds_read_b128 v[{32+4*ks}:{35+4*ks}], v152 offset:{256 + ks*64}")
        A(f"ds_read_b64 v[44:45], v152 offset:{256 + 192}")
        if bpre:
            A("s_cmp_ge_i32 s13, s14"); A("s_cbranch_scc1 L_w2have")
        wait_lds("v7", "s14")
        w2fr()
        A("L_w2have:")
        A("s_waitcnt lgkmcnt(0)")
        for ks in range(3):
            for q in range(2):
                f = 64 + (ks*2 + q)*4
                c = "0" if ks == 0 else f"v[{128+4*q}:{131+4*q}]"
                A(f"v_mfma_f32_16x16x32_bf16 v[{128+4*q}:{131+4*q}], v[{f}:{f+3}], v[{32+4*ks}:{35+4*ks}], {c}")
        A("s_lshl_b32 s8, s9, 8"); A("v_add_u32 v3, s8, v7")
        wait_lds("v3", 7, off=256)
        A("ds_read_b128 v[96:99], v147")
        wait_lds("v7", "s15")
        stamp(5)
        for q in range(2): A(f"ds_read_b64_tr_b16 v[{88+2*q}:{89+2*q}], v{150+q} offset:{R1 + 3*8192}")
        for q in range(2):
            A(f"s_waitcnt lgkmcnt({1-q})")
            A(f"v_mfma_f32_16x16x16_bf16 v[{128+4*q}:{131+4*q}], v[{88+2*q}:{89+2*q}], v[44:45], v[{128+4*q}:{131+4*q}]")
        for k in range(4): A(f"v_cndmask_b32 v{16+k}, v{128+k}, v{132+k}, s[50:51]")
        for k in range(4): A(f"v_fmac_f32 v{96+k}, v165, v{16+k}")
        A("v_cvt_pk_bf16_f32 v156, v96, v97"); A("v_cvt_pk_bf16_f32 v158, v98, v99")
    A("v_xor_b32 v157, 0x80000000, v15"); A("v_mov_b32 v159, v157")
    gather([(27, f"buffer_load_dword v27, v26, s[44:47], s12 offen {lf}")], tags=(0,), mid=bfin)
    A("s_cmp_eq_u32 s53, 2"); A("s_cbranch_scc0 L_fg")
    A("buffer_store_dwordx4 v[156:159], v153, s[44:47], s66 offen")
    A("s_branch L_fe")
    A("L_fg:")
    A("buffer_store_dwordx4 v[156:159], v153, s[44:47], s66 offen sc1")
    A("L_fe:")
    stamp(6)
    profend()
    dump_stamps(7, ["v161", "v162"])
    A("s_endpgm")
    A("L_codeend:")

    body = A.render().replace(' nt lds', f' {sf} lds')
    out = HEADER
    out += f"; @launch grid=(256,1,1) block=(576,1,1) lds={LDS_BYTES}\n"
    out += '.amdgcn_target "amdgcn-amd-amdhsa--gfx950"\n.text\n'
    out += f".globl {NAME}\n.p2align 8\n.type {NAME},@function\n"
    out += body
    out += f""".section .rodata,"a"
.p2align 6
.amdhsa_kernel {NAME}
  .amdhsa_next_free_vgpr 168
  .amdhsa_next_free_sgpr 102
  .amdhsa_accum_offset 168
  .amdhsa_group_segment_fixed_size 0
  .amdhsa_kernarg_size 96
  .amdhsa_user_sgpr_count 2
  .amdhsa_user_sgpr_kernarg_segment_ptr 1
  .amdhsa_system_sgpr_workgroup_id_x 1
  .amdhsa_float_denorm_mode_32 3
.end_amdhsa_kernel
"""
    return out

if __name__ == "__main__":
    import json
    kw = json.loads(sys.argv[2]) if len(sys.argv) > 2 else {}
    open(sys.argv[1], "w").write(gen(**kw))
```

```python
import sys
sys.path.insert(0, "work")
from asmlib import Asm

NAME = "gated_mix__sliding_block_cached__dense_activation_relu__decode_kernel"
HEADER = open("gated_mix__sliding_block_cached__dense_activation_relu__decode.s.ref").read().split("; Override launch")[0]

XT = 0x1000
HH = 0x8000
LSE = 0x20000
DT = 0x3000
OF = 0x40000
QP = 0x80000
HP = 0x100000
OP = 0x180000
FP = 0x280000
FBLK = 4352
WS_USED = 0x500000
DIAG = 0x500000
R0, R1, R2, R3, M = 0x0, 0x8000, 0x10000, 0x18000, 0x20000
XS = M
QB = M + 0x1000
OB = M + 0x1A00
AC = M + 0x2C00
PB = AC
RB = AC + 0x1000
TB = AC + 0x2000
ST = M + 0x6E00
FL = M + 0x7000
LDS_BYTES = 160 * 1024
TAGK = 0x9E3779B1
SPIN_LIMIT = 400000
L2E = 0x3FB8AA3B
SCALE = 0x3DB504F3

def gen(D=(20, 20), diag=False, mimic=True, elim=0, q_start=68, lsleep=0, force_global=False, fpre=0, lrep=2, hint_sleep=0, rord=1, ackw=0, K1=1, K2=1, st1=6, st2=6, opre=0, oh=2, fpt=100, d2last=0, dwq=36, kmid=1, prof=None, amp=0, pp=4, sf='nt', lprio=3, dtail=1, of='', st0=0, xoff=1, wopre=1, bpre=1, dkv=0, lh=0, opg=0, gt=12, xt=60, lf='sc1', bwait=1, ea=99, eb=99):
    A = Asm()
    DK = dkv or D[0]
    SP = [68, 70, 72, 74, 76, 78, 80, 82, 62, 100, 32, 36]
    role = ["A"]
    def stamp(i):
        if diag: A(f"s_memrealtime s[{SP[i]}:{SP[i]+1}]")
        if prof and prof == f"{role[0]}{i}": A("s_memrealtime s[68:69]")
        if amp and i == 0: A("s_memrealtime s[74:75]")
    def profend():
        if prof and prof[0] == role[0]:
            L = A.lab("PR")
            if amp:
                A("s_waitcnt lgkmcnt(0)"); A("s_sub_u32 s72, s68, s74"); A(f"s_mul_i32 s72, s72, {amp}"); A("s_add_u32 s68, s74, s72")
                A(f"{L}:"); A("s_memrealtime s[70:71]"); A("s_waitcnt lgkmcnt(0)"); A("s_sub_u32 s72, s70, s68"); A("s_cmp_lt_i32 s72, 2000"); A(f"s_cbranch_scc1 {L}")
                return
            A(f"{L}:"); A("s_memrealtime s[70:71]"); A("s_waitcnt lgkmcnt(0)"); A("s_sub_u32 s72, s70, s68"); A("s_cmp_lt_u32 s72, 2000"); A(f"s_cbranch_scc1 {L}")
    def dump_stamps(n, extra=(), final=False):
        if not diag: return
        A("s_waitcnt lgkmcnt(0)")
        A("s_mov_b64 exec, -1")
        A("v_mov_b32 v3, 0")
        for i in range(n): A(f"v_writelane_b32 v3, s{SP[i]}, {i}")
        for k, r in enumerate(extra):
            A(f"v_readfirstlane_b32 s60, {r}"); A(f"v_writelane_b32 v3, s60, {12+k}")
        A("s_lshl_b32 s60, s3, 6"); A(f"s_add_u32 s60, s60, {FL + 0xC00}"); A("v_lshl_add_u32 v2, v1, 2, s60")
        A("s_mov_b64 exec, 0xffff")
        A("ds_write_b32 v2, v3")
        if final:
            A("s_mov_b64 exec, -1")
            A("s_sleep 16")
            A("v_lshlrev_b32 v2, 4, v1"); A(f"v_add_u32 v3, {FL + 0xC00}, v2")
            A("ds_read_b128 v[16:19], v3"); A("s_waitcnt lgkmcnt(0)")
            A("s_lshl_b32 s60, s2, 10"); A(f"s_add_u32 s60, s60, {DIAG}")
            A("s_mov_b32 exec_hi, 0xf")
            A("buffer_store_dwordx4 v[16:19], v2, s[44:47], s60 offen")
    def spin_tail(L, Ld, inc=1):
        A(f"s_add_u32 s41, s41, {inc}"); A(f"s_cmp_lt_u32 s41, {SPIN_LIMIT}"); A(f"s_cbranch_scc1 {L}"); A(f"{Ld}:")
    def wait_lds(vaddr, th, vt="v2", off=0):
        L = A.lab("W"); Ld = L + "d"
        A(f"{L}:")
        A(f"ds_read_b32 {vt}, {vaddr}" + (f" offset:{off}" if off else ""))
        A("s_waitcnt lgkmcnt(0)")
        A(f"v_cmp_gt_i32 vcc, {th}, {vt}")
        A(f"s_cbranch_vccz {Ld}")
        if lsleep: A(f"s_sleep {lsleep}")
        spin_tail(L, Ld)
    def srd(d, b, size):
        A(f"s_mov_b32 s{d}, s{b}"); A(f"s_mov_b32 s{d+1}, s{b+1}"); A(f"s_mov_b32 s{d+2}, {size:#x}"); A(f"s_mov_b32 s{d+3}, 0x20000")
    WSZ = 0x800000 if diag else WS_USED

    A(f"{NAME}:")
    A("s_load_dwordx16 s[16:31], s[0:1], 0")
    A("v_readfirstlane_b32 s3, v0")
    A("s_cmp_ge_u32 s2, 256")
    A("s_cbranch_scc1 L_exit")
    stamp(0)
    A("s_lshr_b32 s4, s2, 6")
    A("s_and_b32 s5, s2, 63")
    A("s_lshr_b32 s3, s3, 6")
    A("s_cbranch_scc1 L_stub")
    role[0] = "L"
    A("v_lshrrev_b32 v13, 3, v0"); A("v_and_b32 v2, 6, v13"); A("v_and_b32 v3, 7, v0"); A("v_xor_b32 v3, v3, v2"); A("v_lshlrev_b32 v12, 4, v3")
    A("v_lshl_add_u32 v5, v13, 13, v12")
    A("s_lshl_b32 s10, s5, 7"); A("s_lshl_b32 s9, s4, 21"); A("s_add_u32 s9, s9, s10")
    A("s_mov_b32 s50, 0x800000"); A("s_mov_b32 s51, 0x20000"); A("s_mov_b32 s11, 0xfc00"); A("s_mov_b32 m0, 0")
    A(f"s_setprio {lprio}")
    A("s_waitcnt lgkmcnt(0)")
    stamp(3)
    A("s_mov_b64 s[48:49], s[22:23]")
    A("L_burst:")
    for u in range(4):
        A(f"buffer_load_dwordx4 v5, s[48:51], s9 offen offset:{u*1024} nt lds")
        A("s_add_u32 s9, s9, s11")
    A("s_addk_i32 s9, 0x1000"); A("s_add_u32 m0, m0, 0x1000"); A("s_bitcmp0_b32 m0, 15"); A("s_cbranch_scc1 L_burst")
    A("s_branch L_loader")

    A("L_stub:")
    A("s_load_dwordx8 s[32:39], s[0:1], 64")
    A("s_getpc_b64 s[54:55]")
    A("L_pc:")
    A("v_subrev_u32 v2, 64, v0"); A("v_lshlrev_b32 v2, 7, v2"); A("v_min_u32 v2, L_codeend-L_pc-4, v2")
    A("global_load_dword v160, v2, s[54:55]")
    A("v_and_b32 v1, 63, v0")
    A("s_mov_b32 s41, 0"); A("s_and_b32 s6, s2, 7"); A("s_lshr_b32 s7, s2, 3")
    A("v_mov_b32 v3, 0")
    A(f"v_lshlrev_b32 v9, 2, v0"); A(f"v_add_u32 v9, {FL}, v9")
    A(f"v_lshlrev_b32 v2, 2, v1"); A(f"v_add_u32 v2, {FL}, v2")
    A("ds_write_b32 v9, v3"); A("ds_write_b32 v2, v3"); A(f"ds_write_b32 v2, v3 offset:{11*256}")
    A("s_cmp_gt_u32 s3, 4"); A("s_cbranch_scc1 L_nx")
    A("v_lshrrev_b32 v3, 5, v0"); A("v_subrev_u32 v3, 2, v3")
    A("v_and_b32 v2, 31, v1"); A("v_xor_b32 v2, v2, v3"); A("v_lshlrev_b32 v2, 4, v2"); A("v_lshl_add_u32 v2, v3, 11, v2")
    A("s_lshl_b32 s8, s4, 9"); A("v_add_u32 v2, s8, v2")
    A("s_lshl_b32 s8, s3, 10"); A(f"s_add_u32 m0, s8, {XS - 1024}")
    A("s_waitcnt lgkmcnt(0)")
    A("global_load_lds_dwordx4 v2, s[16:17]")
    A("L_nx:")
    A("s_cmp_lg_u32 s3, 5"); A("s_cbranch_scc1 L_ng5")
    A("s_and_b32 s8, s7, 7"); A("s_lshl_b32 s8, s8, 11"); A("v_lshlrev_b32 v2, 5, v1"); A("v_add_u32 v3, s8, v2")
    A("s_waitcnt lgkmcnt(0)")
    A("global_load_dwordx4 v[96:99], v3, s[16:17]"); A("global_load_dwordx4 v[100:103], v3, s[16:17] offset:16")
    A("global_load_dwordx4 v[104:107], v2, s[32:33]"); A("global_load_dwordx4 v[108:111], v2, s[32:33] offset:16")
    A("L_ng5:")
    A("s_waitcnt lgkmcnt(0)")
    A("s_barrier")
    if elim == 1: A("s_endpgm")
    A("s_load_dword s40, s[38:39], 0")
    A("s_waitcnt vmcnt(0)")
    A("v_mov_b32 v2, 1"); A("ds_write_b32 v9, v2")
    A("s_branch L_notloader")

    A("L_loader:")
    if diag:
        A("s_load_dwordx8 s[32:39], s[0:1], 64"); A("s_memtime s[96:97]")
    A("v_mov_b32 v1, v0"); A("s_mov_b32 s41, 0"); A("s_and_b32 s6, s2, 7"); A("s_lshr_b32 s7, s2, 3")
    A("v_mul_u32_u24 v24, 0x1c00, v13"); A("v_add_u32 v24, v24, v12")
    A("v_lshrrev_b32 v2, 4, v1"); A("v_and_b32 v3, 15, v1"); A("v_xor_b32 v9, v3, v2"); A("v_lshlrev_b32 v9, 4, v9"); A("v_lshl_add_u32 v16, v2, 8, v9")
    A("v_lshlrev_b32 v9, 1, v2"); A("v_xor_b32 v9, v3, v9"); A("v_lshlrev_b32 v9, 4, v9"); A("v_lshl_add_u32 v20, v2, 8, v9")
    A("v_lshl_add_u32 v22, v2, 11, v9")
    A(f"v_mov_b32 v29, {FL}"); A("v_lshl_add_u32 v10, v1, 2, v29"); A("v_and_b32 v2, 3, v1"); A("v_mul_u32_u24 v2, 0x104, v2"); A("v_add_u32 v29, v2, v29")
    A(f"s_mul_i32 s42, s4, {256*7168}"); A("s_add_u32 s42, s42, s10")
    A("s_and_b32 s15, s7, 24"); A("s_add_u32 s15, s15, s6"); A("s_lshl_b32 s15, s15, 5"); A("s_and_b32 s12, s7, 7"); A("s_add_u32 s15, s15, s12")
    A("s_add_u32 s15, s15, 24"); A("s_lshl_b32 s15, s15, 15")
    A("s_lshl_b32 s14, s12, 12")
    A(f"s_mov_b32 s43, {36 + 4 - DK}")
    A("s_barrier")
    stamp(6)
    A("s_mov_b64 s[48:49], s[18:19]"); A("s_mov_b32 s50, 0x2000000"); A("s_mov_b32 s9, s15"); A("s_mov_b32 s13, 8"); A(f"s_mov_b32 s10, {R1}")
    A("v_mov_b32 v5, v16"); A("v_xor_b32 v6, 64, v16"); A("v_xor_b32 v7, 0x80, v16"); A("v_xor_b32 v8, 64, v7")
    A("s_call_b64 s[52:53], L_loopx")
    stamp(7)
    A("s_mov_b64 s[48:49], s[20:21]"); A("s_mov_b32 s9, s15"); A("s_mov_b32 s13, 8")
    A("v_mov_b32 v5, v20"); A("v_xor_b32 v6, 0x80, v20"); A("v_mov_b32 v7, v20"); A("v_mov_b32 v8, v6")
    A("s_call_b64 s[52:53], L_loopx")
    stamp(9)
    if DK != D[0]: A(f"s_add_i32 s43, s43, {DK - D[0]}")
    A("s_cmp_ge_u32 s5, 56"); A("s_cbranch_scc1 L_now1")
    A(f"s_mov_b32 m0, {R3}"); A("s_mov_b32 s50, 0x700000")
    A("s_mov_b64 s[48:49], s[28:29]"); A("s_mov_b32 s9, s42"); A(f"s_mov_b32 s11, {8*7168-1024}"); A("s_mov_b32 s13, 8")
    A("v_mov_b32 v5, v24"); A("v_mov_b32 v6, v24"); A("v_mov_b32 v7, v24"); A("v_mov_b32 v8, v24")
    A("s_call_b64 s[52:53], L_loop")
    A("L_now1:")
    stamp(1)
    assert D[0] <= 32
    A("s_mov_b64 s[48:49], s[24:25]"); A("s_mov_b32 s50, 0x800000")
    A("s_lshl_b32 s9, s7, 10"); A("s_add_u32 s9, s9, s6"); A("s_lshl_b32 s9, s9, 8")
    A("s_movk_i32 s11, 0x1c00"); A("s_mov_b32 s13, 8")
    A("v_mov_b32 v5, v22"); A("v_xor_b32 v6, 0x80, v22"); A("v_mov_b32 v7, v22"); A("v_mov_b32 v8, v6")
    A("s_mov_b32 m0, 0")
    if not elim: wait_lds("v29", 3, off=256)
    L2 = 'L_loop2' if D[1] != D[0] else 'L_loop'
    if D[1] != D[0] and not d2last: A(f"s_add_i32 s43, s43, {D[0] - D[1]}")
    A(f"s_call_b64 s[52:53], {'L_loop' if d2last else L2}")
    if D[1] != D[0] and d2last: A(f"s_add_i32 s43, s43, {D[0] - D[1]}")
    A("s_mov_b64 s[48:49], s[30:31]"); A("s_mov_b32 s50, 0x700000")
    A("s_mul_i32 s9, s7, 0x380"); A("s_add_u32 s9, s9, s6"); A("s_lshl_b32 s9, s9, 8"); A("s_mov_b32 s13, 7")
    A(f"s_call_b64 s[52:53], {L2}")
    Dl = D[1]
    prev = Dl - 4
    for k in range(Dl - 4, -1, -4):
        if k % 8 != 4 and k != 0: continue
        A(f"s_waitcnt vmcnt({k})")
        if prev != k: A(f"s_add_i32 s43, s43, {prev - k}")
        prev = k
        A("v_mov_b32 v11, s43"); A("ds_write_b32 v10, v11")
    stamp(2)
    profend()
    if not elim and (diag or not dtail): A("s_branch L_red")
    A("L_exit:")
    A("s_endpgm")
    A("L_loopx:")
    A("s_xor_b32 m0, s10, s14"); A("s_xor_b32 s8, s9, s14")
    for u in range(4):
        A(f"s_waitcnt vmcnt({DK-1})")
        if u == 3:
            A("v_mov_b32 v11, s43"); A("ds_write_b32 v10, v11")
        A(f"buffer_load_dwordx4 v{5+u}, s[48:51], s8 offen offset:{u*1024} nt lds")
    A("s_addk_i32 s9, 0x1000"); A("s_addk_i32 s10, 0x1000"); A("s_add_i32 s43, s43, 4")
    A("s_sub_u32 s13, s13, 1"); A("s_cmp_lg_u32 s13, 0"); A("s_cbranch_scc1 L_loopx")
    A("s_setpc_b64 s[52:53]")
    for lab, Dd in (("L_loop3", dwq), ("L_loop", D[0]), ("L_loop2", D[1])):
        if lab == "L_loop2" and D[1] == D[0]: continue
        if lab == "L_loop3": continue
        A(f"{lab}:")
        for u in range(4):
            A(f"s_waitcnt vmcnt({Dd-1})")
            if u == 3:
                A("v_mov_b32 v11, s43"); A("ds_write_b32 v10, v11")
            A(f"buffer_load_dwordx4 v{5+u}, s[48:51], s9 offen offset:{u*1024} nt lds")
            A("s_add_u32 s9, s9, s11")
        A("s_addk_i32 s9, 0x1000"); A("s_add_u32 m0, m0, 0x1000"); A("s_add_i32 s43, s43, 4")
        A("s_sub_u32 s13, s13, 1"); A("s_cmp_lg_u32 s13, 0"); A(f"s_cbranch_scc1 {lab}")
        A("s_setpc_b64 s[52:53]")

    def flag(stage):
        A(f"v_mov_b32 v2, {stage}"); A("ds_write_b32 v9, v2")
    def gather(loads, full="-1", tb=112, mid=None, cnt=None, tags=(1, 3)):
        N = len(loads)
        L = A.lab("G"); Ld = L + "d"; Lc = L + "c"
        for d, t in loads: A(t)
        if mid: mid()
        A(f"{Lc}:")
        if diag and cnt: A(f"v_add_u32 {cnt}, 1, {cnt}")
        A("s_waitcnt vmcnt(0)")
        for i, (d, t) in enumerate(loads):
            A(f"v_xor_b32 v{tb+i}, v{d+tags[0]}, v15")
            if len(tags) > 1: A(f"v_bitop3_b32 v{tb+i}, v{tb+i}, v{d+tags[1]}, v15 bitop3:0xf6")
        if N == 1: A(f"v_cmp_ne_u32 vcc, 0, v{tb}")
        else:
            A(f"v_or_b32 v2, v{tb}, v{tb+1}")
            for i in range(2, N, 2): A(f"v_or3_b32 v2, v2, v{tb+i}, v{tb+i+1}")
            A("v_cmp_ne_u32 vcc, 0, v2")
        A(f"s_cbranch_vccz {Ld}")
        A("s_add_u32 s41, s41, 16"); A(f"s_cmp_ge_u32 s41, {SPIN_LIMIT}"); A(f"s_cbranch_scc1 {Ld}")
        for i in range(N): A(f"v_cmp_ne_u32 s[{16+2*i}:{17+2*i}], 0, v{tb+i}")
        for i, (d, t) in enumerate(loads):
            m = 16 + 2*i
            sk = A.lab("S")
            A(f"s_mov_b64 exec, s[{m}:{m+1}]"); A(f"s_cbranch_execz {sk}"); A(t); A(f"{sk}:")
        A(f"s_mov_b64 exec, {full}")
        A(f"s_branch {Lc}")
        A(f"{Ld}:")
    def sum4(base, n, stride, out):
        for k, off in enumerate((0, 2)):
            for i in range(n):
                r = base + stride * i + off
                if i == 0:
                    A(f"v_lshlrev_b32 v{out+2*k}, 16, v{r}"); A(f"v_and_b32 v{out+2*k+1}, 0xffff0000, v{r}")
                else:
                    A(f"v_lshlrev_b32 v2, 16, v{r}"); A(f"v_and_b32 v3, 0xffff0000, v{r}")
                    A(f"v_add_f32 v{out+2*k}, v{out+2*k}, v2"); A(f"v_add_f32 v{out+2*k+1}, v{out+2*k+1}, v3")
    def unitpos(dst, u):
        A(f"v_lshrrev_b32 v2, 3, {u}"); A(f"v_lshlrev_b32 {dst}, 6, v2")
        A(f"v_and_b32 v2, 3, {u}"); A(f"v_lshl_add_u32 {dst}, v2, 4, {dst}")
        A(f"v_bfe_u32 v2, {u}, 2, 1"); A(f"v_lshl_add_u32 {dst}, v2, 3, {dst}")

    A("L_red:")
    srd(44, 38, WSZ)
    srd(64, 34, 16384)
    A(f"v_mov_b32 v3, {FL}")
    A(f"ds_read_b32 v15, v3 offset:{9*256}")
    A("v_lshlrev_b32 v28, 4, v1")
    A(f"s_mul_i32 s56, s2, {FBLK}"); A(f"s_add_u32 s56, s56, {FP}"); A("s_add_u32 s57, s56, 4096")
    if diag: A("v_mov_b32 v163, 0")
    if ea < 99 or eb < 99: A("s_branch L_redend")
    A("v_and_b32 v2, 7, v1"); A("v_lshlrev_b32 v30, 3, v2"); A("v_lshrrev_b32 v2, 4, v1"); A("v_lshl_add_u32 v30, v2, 1, v30")
    A("s_lshr_b32 s12, s7, 2"); A("s_lshl_b32 s12, s12, 11"); A("s_lshl_b32 s8, s6, 8"); A("s_add_u32 s12, s12, s8")
    A("s_and_b32 s8, s7, 3"); A("s_lshl_b32 s8, s8, 6"); A("s_add_u32 s12, s12, s8")
    def xred():
        A("v_permlane32_swap_b32 v64, v66"); A("v_permlane32_swap_b32 v65, v67")
        A("v_add_f32 v64, v64, v66"); A("v_add_f32 v65, v65, v67")
        A("v_permlane16_swap_b32 v64, v65"); A("v_add_f32 v64, v64, v65")
        A("v_add_f32_dpp v64, v64, v64 row_ror:8 row_mask:0xf bank_mask:0xf")
    def gate(out, gv):
        A("v_cvt_pk_bf16_f32 v64, v64, v64"); A("v_lshlrev_b32 v64, 16, v64")
        A(f"v_mul_f32 v64, {gv}, v64")
        A("v_cvt_pk_bf16_f32 v64, v64, v64"); A(f"v_lshlrev_b32 {out}, 16, v64")
    A(f"v_add_u32 v31, {RB}, v28")
    wait_lds("v29", 8, off=256)
    stamp(4)
    if dtail: A("s_branch L_redend")
    A("ds_read_b128 v[64:67], v31"); A("s_waitcnt lgkmcnt(0)")
    A("v_add_f32 v64, v64, v65"); A("v_add_f32 v66, v66, v67"); A("v_add_f32 v64, v64, v66")
    A("v_cvt_pk_bf16_f32 v26, v64, v64")
    A("s_mov_b32 exec_lo, 0x00ff00ff"); A("s_mov_b32 exec_hi, 0x00ff00ff")
    A("buffer_store_short v26, v30, s[64:67], s12 offen")
    A("s_cmp_lg_u32 s2, 0"); A("s_cbranch_scc1 L_redend")
    A("s_mov_b64 exec, 1")
    A("v_mov_b32 v2, 0")
    A("buffer_store_dword v15, v2, s[44:47], 0 offen sc1")
    A("L_redend:")
    stamp(5)
    if diag:
        A("s_memtime s[98:99]"); A("s_waitcnt lgkmcnt(0)"); A("s_sub_u32 s98, s98, s96"); A("s_mov_b64 exec, -1"); A("v_mov_b32 v164, s98")
    dump_stamps(10, ["v163", "v164"], final=True)
    A("s_endpgm")

    A("L_notloader:")
    role[0] = "A"
    srd(44, 38, WSZ)
    A("v_and_b32 v4, 15, v1"); A("v_lshrrev_b32 v5, 4, v1"); A("v_and_b32 v6, 7, v1")
    A(f"v_mov_b32 v7, {FL}")
    A("v_and_b32 v2, 3, v1"); A("v_mul_u32_u24 v2, 0x104, v2"); A(f"v_add_u32 v8, {FL+256}, v2")
    A("v_lshrrev_b32 v2, 1, v5"); A("v_xor_b32 v2, v2, v6"); A("v_lshlrev_b32 v2, 4, v2"); A("v_lshl_add_u32 v10, v6, 9, v2")
    A("v_and_b32 v2, 1, v5"); A("v_lshl_add_u32 v10, v2, 3, v10"); A(f"v_add_u32 v10, {XS}, v10")
    A("v_lshrrev_b32 v11, 2, v1")
    A("v_and_b32 v12, 3, v1"); A("v_lshlrev_b32 v12, 3, v12")
    A("s_mov_b32 s48, 0x00ff00ff"); A("s_mov_b32 s49, 0x00ff00ff")
    A("s_mov_b32 s50, 0xff00ff00"); A("s_mov_b32 s51, 0xff00ff00")
    A("s_sub_u32 s9, s3, 1"); A("s_and_b32 s9, s9, 3")
    A("v_lshrrev_b32 v2, 1, v11"); A("v_and_b32 v2, 3, v2"); A("v_xor_b32 v2, s9, v2"); A("v_lshlrev_b32 v2, 5, v2")
    A("v_lshl_add_u32 v13, v11, 7, v2"); A("v_add_u32 v13, v13, v12")
    A("v_lshlrev_b32 v14, 14, v6"); A("v_lshl_add_u32 v14, v5, 4, v14")
    A("s_lshl_b32 s52, s4, 17"); A("s_lshl_b32 s8, s5, 8"); A("s_add_u32 s52, s52, s8"); A("s_lshl_b32 s8, s9, 6"); A("s_add_u32 s52, s52, s8")
    A("v_and_b32 v2, 7, v11"); A("v_lshlrev_b32 v2, 5, v2"); A("v_lshl_add_u32 v28, v11, 8, v2"); A("v_add_u32 v28, v28, v12")
    A("s_lshl_b32 s8, s9, 6"); A("v_xor_b32 v150, s8, v28"); A("v_xor_b32 v151, 32, v150")
    A("v_mul_u32_u24 v152, 544, v6"); A("v_lshl_add_u32 v152, v5, 4, v152"); A(f"v_add_u32 v152, {OB}, v152")
    A("v_lshrrev_b32 v2, 1, v6"); A("v_lshlrev_b32 v153, 18, v2"); A("v_and_b32 v2, 1, v6"); A("v_lshl_add_u32 v153, v2, 14, v153")
    A("v_lshl_add_u32 v153, v5, 4, v153"); A("v_lshrrev_b32 v2, 3, v4"); A("v_lshl_add_u32 v153, v2, 6, v153")
    A("s_lshl_b32 s66, s6, 3"); A("s_add_u32 s66, s66, s9"); A("s_lshl_b32 s66, s66, 5"); A("s_add_u32 s66, s66, s7"); A("s_lshl_b32 s66, s66, 7")
    A(f"s_add_u32 s66, s66, {OP}")
    A("v_and_b32 v3, 31, v1"); unitpos("v154", "v3")
    A("v_lshrrev_b32 v2, 5, v1"); A("v_mul_u32_u24 v2, 544, v2"); A("v_add_u32 v154, v154, v2")
    A("s_mul_i32 s8, s9, 1088"); A(f"s_add_u32 s8, s8, {OB}"); A("v_add_u32 v154, s8, v154")
    A("s_lshl_b32 s8, s9, 10"); A(f"s_add_u32 s8, s8, {TB}"); A("v_lshl_add_u32 v147, v1, 4, s8")
    A("s_cmp_ge_u32 s5, 56"); A("s_cselect_b32 s67, 100, 64"); A("s_cselect_b32 s8, 0, 68"); A("s_add_u32 s67, s67, s8")
    if diag:
        A("v_mov_b32 v161, 0"); A("v_mov_b32 v162, 0"); A("v_mov_b32 v163, 0")
    A("s_cmp_ge_u32 s3, 5"); A("s_cbranch_scc1 L_B")

    def p1_run():
        for ks in range(8):
            A(f"ds_read_b64_tr_b16 v[{64+4*ks}:{65+4*ks}], v13 offset:{ks*4096}")
            A(f"ds_read_b64_tr_b16 v[{66+4*ks}:{67+4*ks}], v13 offset:{ks*4096 + 2048}")
        for ks in range(8):
            A(f"s_waitcnt lgkmcnt({min(15, 14 - 2*ks)})")
            c = "0" if ks == 0 else "v[16:19]"
            A(f"v_mfma_f32_16x16x32_bf16 v[16:19], v[{64+4*ks}:{67+4*ks}], v[{32+4*ks}:{35+4*ks}], {c}")
        A("v_cvt_pk_bf16_f32 v20, v16, v17"); A("v_cvt_pk_bf16_f32 v22, v18, v19")
        A("s_mov_b64 exec, s[48:49]")
        A("buffer_store_dwordx4 v[20:23], v14, s[44:47], s52 offen sc1")
        A("s_mov_b64 exec, -1")
    def xfrags():
        if xoff: wait_lds("v8", 1)
        else: wait_lds("v7", 4)
        for var in range(4):
            if var: A(f"v_xor_b32 v3, {var*32}, v10")
            for kk in range(4):
                ks = kk*2 + (var >> 1); hh = var & 1
                A(f"ds_read_b64 v[{32+4*ks+2*hh}:{33+4*ks+2*hh}], {'v3' if var else 'v10'} offset:{kk*128}")
    def get_mode():
        wait_lds("v7", 1, off=11*256)
        A("v_readfirstlane_b32 s53, v2")
        A("v_lshl_add_u32 v3, v6, 3, v7"); A(f"ds_read_b64 v[164:165], v3 offset:{10*256}")
        A("v_mov_b32 v157, v15"); A("v_mov_b32 v159, v15")
    def publish_final(acc, glob=False):
        A(f"v_cvt_pk_bf16_f32 v16, v{acc}, v{acc+1}"); A(f"v_cvt_pk_bf16_f32 v17, v{acc+2}, v{acc+3}")
        A(f"v_cvt_pk_bf16_f32 v18, v{acc+4}, v{acc+5}"); A(f"v_cvt_pk_bf16_f32 v19, v{acc+6}, v{acc+7}")
        A("v_cndmask_b32 v156, v16, v18, s[50:51]"); A("v_cndmask_b32 v158, v17, v19, s[50:51]")
        if glob:
            A("buffer_store_dwordx4 v[156:159], v153, s[44:47], s66 offen sc1"); return
        Lg = A.lab("F"); Le = Lg + "e"
        A("s_cmp_eq_u32 s53, 2"); A(f"s_cbranch_scc0 {Lg}")
        A("buffer_store_dwordx4 v[156:159], v153, s[44:47], s66 offen")
        A(f"s_branch {Le}")
        A(f"{Lg}:")
        A("buffer_store_dwordx4 v[156:159], v153, s[44:47], s66 offen sc1")
        A(f"{Le}:")

    A(f"s_add_u32 s52, s52, {QP}")
    A("s_and_b32 s10, s7, 24"); A("s_add_u32 s10, s10, s6")
    A("s_lshr_b32 s11, s10, 2")
    A("s_and_b32 s12, s10, 3")
    A("s_and_b32 s13, s7, 7")
    A("v_xor_b32 v2, v5, v4"); A("v_lshlrev_b32 v2, 4, v2"); A("v_lshl_add_u32 v24, v4, 8, v2")
    A("s_lshl_b32 s8, s9, 13"); A(f"s_add_u32 s8, s8, {R1}"); A("v_add_u32 v24, s8, v24")
    A("v_xor_b32 v25, 64, v24"); A("v_xor_b32 v26, 0x80, v24"); A("v_xor_b32 v27, 0xc0, v24")
    A(f"v_add_u32 v148, {R2}, v150"); A(f"v_add_u32 v149, {R2}, v151")
    A("s_lshr_b32 s14, s13, 1"); A("s_xor_b32 s14, s14, s9"); A("s_lshl_b32 s14, s14, 3"); A("s_add_u32 s14, s14, 44")
    A("v_lshlrev_b32 v29, 4, v1")
    A("s_lshl_b32 s56, s11, 14"); A("s_lshl_b32 s8, s12, 12"); A("s_add_u32 s56, s56, s8"); A("s_lshl_b32 s8, s9, 10"); A("s_add_u32 s56, s56, s8")
    A(f"s_add_u32 s56, s56, {QP}"); A("s_add_u32 s57, s56, 0x20000"); A("s_add_u32 s58, s56, 0x40000"); A("s_add_u32 s59, s56, 0x60000")
    A("v_lshrrev_b32 v2, 5, v1"); A("v_mul_u32_u24 v2, 288, v2"); A("v_and_b32 v3, 31, v1"); A("v_lshl_add_u32 v30, v3, 3, v2")
    A("s_mul_i32 s8, s9, 576"); A(f"s_add_u32 s8, s8, {QB}"); A("v_add_u32 v30, s8, v30")
    A("v_mul_u32_u24 v31, 288, v6"); A("v_lshl_add_u32 v31, v5, 4, v31"); A(f"v_add_u32 v31, {QB}, v31")
    A(f"v_add_u32 v106, {PB}, v29"); A("s_lshl_b32 s8, s9, 10"); A("v_add_u32 v104, s8, v106")
    A("v_lshlrev_b32 v107, 5, v6"); A(f"v_add_u32 v107, {ST}, v107"); A("s_lshl_b32 s8, s9, 2"); A("v_add_u32 v105, s8, v107")
    A("v_lshrrev_b32 v2, 3, v4")
    A("v_lshlrev_b32 v108, 12, v6"); A("v_lshl_add_u32 v108, v5, 4, v108"); A("v_lshl_add_u32 v108, v2, 6, v108")
    A("v_lshlrev_b32 v109, 6, v6")
    A("s_lshl_b32 s8, s9, 1"); A("s_lshl_b32 s42, 3, s8"); A("s_mov_b32 s43, 0")
    A("s_lshl_b32 s84, s10, 15"); A("s_lshl_b32 s8, s9, 7"); A("s_add_u32 s84, s84, s8"); A(f"s_add_u32 s84, s84, {OP}")
    A("s_lshl_b32 s8, s13, 9"); A("s_add_u32 s60, s84, s8")
    A("s_lshl_b32 s8, s13, 12"); A("s_add_u32 s84, s84, s8")
    A("s_lshl_b32 s85, s10, 9"); A(f"s_add_u32 s85, s85, {LSE}")
    A("s_lshl_b32 s8, s13, 3"); A("s_add_u32 s61, s85, s8")
    A("s_lshl_b32 s8, s13, 6"); A("s_add_u32 s85, s85, s8")
    A("v_lshrrev_b32 v2, 3, v1"); A("v_lshlrev_b32 v144, 9, v2"); A("v_lshl_add_u32 v144, v6, 4, v144"); A("v_lshlrev_b32 v145, 3, v2")
    A("s_lshl_b32 s86, s12, 3"); A("s_add_u32 s86, s86, s13"); A("s_lshl_b32 s86, s86, 3"); A("s_add_u32 s86, s86, s11"); A("s_lshl_b32 s86, s86, 2")
    A("s_add_u32 s86, s86, s9"); A("s_lshl_b32 s86, s86, 7"); A(f"s_add_u32 s86, s86, {OF}")
    A("v_lshrrev_b32 v2, 5, v1"); A("v_lshlrev_b32 v146, 3, v2"); A("v_lshl_add_u32 v146, v6, 4, v146")
    A("s_lshl_b32 s87, s7, 2"); A("s_add_u32 s87, s87, s9"); A("s_lshl_b32 s87, s87, 10"); A(f"s_add_u32 s87, s87, {OF}")
    A(f"s_mov_b32 s64, {SCALE:#x}"); A(f"s_mov_b32 s65, {L2E:#x}")
    xfrags()
    A(f"s_add_u32 s40, s40, {TAGK:#x}")
    A("v_mov_b32 v15, s40"); A("v_mov_b32 v21, s40"); A("v_mov_b32 v23, s40")
    A(f"v_mov_b32 v3, {FL + 9*256}"); A("v_lshl_add_u32 v3, v1, 2, v3"); A("ds_write_b32 v3, v15")
    wait_lds("v7", 36)
    stamp(1)
    p1_run()
    flag(2)
    if opre == 2:
        A("buffer_load_dword v160, v144, s[44:47], s84 offen")
        A("buffer_load_dword v160, v145, s[44:47], s85 offen")
    stamp(2)
    def kpull():
        wait_lds("v7", "s14")
        for t in range(2):
            for s in range(4):
                A(f"ds_read_b128 v[{32+16*t+4*s}:{35+16*t+4*s}], v{24+s} offset:{t*4096}")
        A("s_waitcnt lgkmcnt(0)")
        flag(3)
    if not kmid: kpull()
    A("v_mov_b32 v111, v15")
    if ea == 0: kpull(); A("s_endpgm")
    wait_lds("v7", q_start)
    stamp(3)
    def amode():
        if kmid: kpull()
    gather([(64+4*sp, f"buffer_load_dwordx4 v[{64+4*sp}:{67+4*sp}], v29, s[44:47], s{56+sp} offen sc1") for sp in range(4)], cnt="v161", mid=amode)
    stamp(4)
    sum4(64, 4, 4, 16)
    A("v_cvt_pk_bf16_f32 v20, v16, v17"); A("v_cvt_pk_bf16_f32 v21, v18, v19")
    A("ds_write_b64 v30, v[20:21]")
    flag(4)
    wait_lds("v8", 4)
    A("ds_read_b32 v28, v7")
    for s in range(4):
        A(f"ds_read_b128 v[{64+4*s}:{67+4*s}], v31 offset:{s*64}")
    for s in range(4):
        A(f"s_waitcnt lgkmcnt({3-s})")
        for t in range(2):
            c = "0" if s == 0 else f"v[{16+4*t}:{19+4*t}]"
            A(f"v_mfma_f32_16x16x32_bf16 v[{16+4*t}:{19+4*t}], v[{32+16*t+4*s}:{35+16*t+4*s}], v[{64+4*s}:{67+4*s}], {c}")
    def vreads():
        for w in range(4):
            for q in range(2):
                f = 112 + (w*2 + q)*4
                A(f"ds_read_b64_tr_b16 v[{f}:{f+1}], v{148+q} offset:{w*8192}")
                A(f"ds_read_b64_tr_b16 v[{f+2}:{f+3}], v{148+q} offset:{w*8192 + 4096}")
    A("v_readfirstlane_b32 s15, v28")
    A("s_cmp_lt_i32 s15, 100"); A("s_cbranch_scc1 L_vlate")
    vreads()
    A("L_vlate:")
    A("s_nop 4")
    if mimic:
        for i in range(4):
            a, b = 16 + 2*i, 17 + 2*i
            A(f"v_cvt_pk_bf16_f32 v2, v{a}, v{b}")
            A(f"v_lshlrev_b32 v{a}, 16, v2"); A(f"v_and_b32 v{b}, 0xffff0000, v2")
            A(f"v_mul_f32 v{a}, s64, v{a}"); A(f"v_mul_f32 v{b}, s64, v{b}")
            A(f"v_cvt_pk_bf16_f32 v2, v{a}, v{b}")
            A(f"v_lshlrev_b32 v{a}, 16, v2"); A(f"v_and_b32 v{b}, 0xffff0000, v2")
    else:
        for i in range(8): A(f"v_mul_f32 v{16+i}, s64, v{16+i}")
    A("v_max3_f32 v2, v16, v17, v18"); A("v_max3_f32 v3, v19, v20, v21"); A("v_max3_f32 v2, v2, v22, v23"); A("v_max_f32 v2, v2, v3")
    A("v_mov_b32 v3, v2"); A("v_permlane16_swap_b32 v2, v3"); A("v_max_f32 v2, v2, v3")
    A("v_mov_b32 v3, v2"); A("v_permlane32_swap_b32 v2, v3"); A("v_max_f32 v2, v2, v3")
    A("v_mul_f32 v96, s65, v2")
    for i in range(8): A(f"v_fma_f32 v{16+i}, v{16+i}, s65, -v96")
    for i in range(8): A(f"v_exp_f32 v{16+i}, v{16+i}")
    for i in range(4): A(f"v_cvt_pk_bf16_f32 v{100+i}, v{16+2*i}, v{17+2*i}")
    A("ds_write_b128 v104, v[100:103]")
    A("v_add_f32 v2, v16, v17"); A("v_add_f32 v3, v18, v19"); A("v_add_f32 v2, v2, v20"); A("v_add_f32 v3, v3, v21")
    A("v_add_f32 v2, v2, v22"); A("v_add_f32 v3, v3, v23"); A("v_add_f32 v97, v2, v3")
    A("v_mov_b32 v3, v97"); A("v_permlane16_swap_b32 v97, v3"); A("v_add_f32 v97, v97, v3")
    A("v_mov_b32 v3, v97"); A("v_permlane32_swap_b32 v97, v3"); A("v_add_f32 v97, v97, v3")
    A("s_mov_b64 exec, 0xff")
    A("ds_write2_b32 v105, v96, v97 offset0:0 offset1:4")
    A("s_mov_b64 exec, -1")
    flag(5)
    stamp(5)
    A("s_cmp_ge_i32 s15, 100"); A("s_cbranch_scc1 L_vdone")
    wait_lds("v7", 100)
    vreads()
    A("L_vdone:")
    get_mode()
    wait_lds("v8", 5)
    for w in range(4): A(f"ds_read_b128 v[{64+4*w}:{67+4*w}], v106 offset:{w*1024}")
    A("ds_read_b128 v[16:19], v107"); A("ds_read_b128 v[20:23], v107 offset:16")
    for w in range(4):
        A(f"s_waitcnt lgkmcnt({5-w})")
        for q in range(2):
            f = 112 + (w*2 + q)*4; d = 32 + (w*2 + q)*4
            A(f"v_mfma_f32_16x16x32_bf16 v[{d}:{d+3}], v[{f}:{f+3}], v[{64+4*w}:{67+4*w}], 0")
    A("s_waitcnt lgkmcnt(0)")
    A("v_max3_f32 v2, v16, v17, v18"); A("v_max_f32 v2, v2, v19")
    for i in range(4): A(f"v_sub_f32 v{16+i}, v{16+i}, v2")
    for i in range(4): A(f"v_exp_f32 v{16+i}, v{16+i}")
    A("v_mul_f32 v3, v16, v20")
    for i in range(1, 4): A(f"v_fmac_f32 v3, v{16+i}, v{20+i}")
    A("v_rcp_f32 v20, v3"); A("v_log_f32 v21, v3")
    for i in range(4): A(f"v_mul_f32 v{16+i}, v{16+i}, v20")
    A("v_add_f32 v110, v2, v21")
    for k in range(8): A(f"v_mul_f32 v{80+k}, v16, v{32+k}")
    for w in range(1, 4):
        for k in range(8): A(f"v_fmac_f32 v{80+k}, v{16+w}, v{32+8*w+k}")
    A("v_cvt_pk_bf16_f32 v16, v80, v81"); A("v_cvt_pk_bf16_f32 v17, v82, v83"); A("v_cvt_pk_bf16_f32 v18, v84, v85"); A("v_cvt_pk_bf16_f32 v19, v86, v87")
    A("v_cndmask_b32 v156, v16, v18, s[50:51]"); A("v_cndmask_b32 v158, v17, v19, s[50:51]")
    if ea == 1: A("s_endpgm")
    if opg == 1: A("s_branch L_opg")
    A("s_cmp_eq_u32 s53, 2"); A("s_cbranch_scc0 L_opg")
    A("buffer_store_dwordx4 v[156:159], v108, s[44:47], s60 offen")
    A("s_mov_b64 exec, s[42:43]")
    A("buffer_store_dwordx2 v[110:111], v109, s[44:47], s61 offen" + (" sc1" if opg == 2 else ""))
    A("s_branch L_opd")
    A("L_opg:")
    A("buffer_store_dwordx4 v[156:159], v108, s[44:47], s60 offen sc1")
    A("s_mov_b64 exec, s[42:43]")
    A("buffer_store_dwordx2 v[110:111], v109, s[44:47], s61 offen sc1")
    A("L_opd:")
    A("s_mov_b64 exec, -1")
    stamp(6)
    def ring(K, st, mk, nreg, tags, base, dst, cnt):
        L = A.lab("R")
        nl = len(mk(base))
        for k in range(K):
            if k and pp:
                if k == 1:
                    A("ds_read_b32 v2, v7"); A("s_add_u32 s14, s67, 60"); A("s_waitcnt lgkmcnt(0)"); A("v_readfirstlane_b32 s13, v2")
                A(f"s_add_u32 s13, s13, {pp}"); A("s_min_u32 s13, s13, s14")
                wait_lds("v7", "s13")
            elif k and st: A(f"s_sleep {st}")
            for t in mk(base + k*nreg): A(t)
        A(f"{L}:")
        for k in range(K):
            r = base + k*nreg
            if diag: A(f"v_add_u32 {cnt}, 1, {cnt}")
            A(f"s_waitcnt vmcnt({nl*(K-1)})")
            A(f"v_xor_b32 v2, v{r+tags[0]}, v15")
            for tg in tags[1:]: A(f"v_bitop3_b32 v2, v2, v{r+tg}, v15 bitop3:0xf6")
            A("v_cmp_ne_u32 vcc, 0, v2")
            A(f"s_cbranch_vccz {L}_{k}")
            for t in mk(r): A(t)
        A("s_add_u32 s41, s41, 32"); A(f"s_cmp_lt_u32 s41, {SPIN_LIMIT}"); A(f"s_cbranch_scc1 {L}")
        for k in range(K):
            r = base + k*nreg
            A(f"{L}_{k}:")
            for d, o in dst: A(f"v_mov_b32 v{d}, v{r+o}")
            if k < K - 1: A(f"s_branch {L}_e")
        A(f"{L}_e:")
    if ea == 2: A("s_endpgm")
    if lh:
        A("s_add_u32 s54, s38, s85"); A("s_addc_u32 s55, s39, 0")
        L = A.lab("P"); Ld = L + "d"; Lr = L + "r"
        A(f"{L}:")
        A("s_load_dwordx16 s[16:31], s[54:55], 0 glc")
        A("s_waitcnt lgkmcnt(0)")
        for i in range(8):
            A(f"s_cmp_eq_u32 s{17+2*i}, s40"); A(f"s_cbranch_scc0 {Lr}")
        A(f"s_branch {Ld}")
        A(f"{Lr}:")
        spin_tail(L, Ld, 16)
    if st0: A(f"s_sleep {st0}")
    ring(K1, st1, lambda r: [f"buffer_load_dwordx4 v[{r}:{r+3}], v144, s[44:47], s84 offen {lf}", f"buffer_load_dwordx2 v[{r+4}:{r+5}], v145, s[44:47], s85 offen {lf}"],
         6, (1, 3, 5), 112, [(16, 0), (17, 2), (18, 4)], "v162")
    stamp(7)
    A("v_max_f32_dpp v2, v18, v18 row_ror:8 row_mask:0xf bank_mask:0xf")
    A("v_lshlrev_b32 v96, 16, v16"); A("v_and_b32 v97, 0xffff0000, v16")
    A("v_mov_b32 v3, v2"); A("v_lshlrev_b32 v98, 16, v17"); A("v_and_b32 v99, 0xffff0000, v17")
    A("v_permlane16_swap_b32 v2, v3"); A("v_max_f32 v2, v2, v3")
    A("v_mov_b32 v3, v2"); A("v_permlane32_swap_b32 v2, v3"); A("v_max_f32 v2, v2, v3")
    A("v_sub_f32 v18, v18, v2"); A("v_exp_f32 v18, v18")
    for k in range(4): A(f"v_mul_f32 v{96+k}, v18, v{96+k}")
    A("v_mov_b32 v19, v18")
    A("v_permlane32_swap_b32 v96, v98"); A("v_permlane32_swap_b32 v97, v99"); A("v_permlane32_swap_b32 v18, v19")
    A("v_add_f32 v96, v96, v98"); A("v_add_f32 v97, v97, v99"); A("v_add_f32 v18, v18, v19")
    A("v_mov_b32 v98, v96"); A("v_mov_b32 v99, v97"); A("v_mov_b32 v19, v18")
    A("v_permlane16_swap_b32 v96, v98"); A("v_permlane16_swap_b32 v97, v99"); A("v_permlane16_swap_b32 v18, v19")
    A("v_add_f32 v18, v18, v19"); A("v_add_f32 v96, v96, v98"); A("v_add_f32 v97, v97, v99")
    for r in (18, 96, 97): A(f"v_add_f32_dpp v{r}, v{r}, v{r} row_ror:8 row_mask:0xf bank_mask:0xf")
    A("v_rcp_f32 v18, v18")
    A("v_mul_f32 v96, v96, v18"); A("v_mul_f32 v97, v97, v18")
    A("v_cvt_pk_bf16_f32 v110, v96, v97")
    A("s_mov_b32 exec_lo, 0xff"); A("s_mov_b32 exec_hi, 0xff")
    A("buffer_store_dwordx2 v[110:111], v146, s[44:47], s86 offen sc1")
    A("s_mov_b64 exec, 1")
    A("s_lshl_b32 s8, s6, 2"); A("s_add_u32 s8, s8, s9"); A("s_lshl_b32 s8, s8, 5"); A("s_add_u32 s8, s8, s7"); A("s_lshl_b32 s8, s8, 2"); A(f"s_add_u32 s8, s8, {DT}")
    A("s_cmp_eq_u32 s53, 2"); A("s_cbranch_scc0 L_dtg")
    A("buffer_store_dword v15, v29, s[44:47], s8 offen")
    A("s_branch L_dtd")
    A("L_dtg:")
    A("buffer_store_dword v15, v29, s[44:47], s8 offen sc1")
    A("L_dtd:")
    A("s_mov_b64 exec, -1")
    A("s_add_u32 s14, s67, 32")
    def wofr():
        wait_lds("v7", "s14")
        for ks in range(4):
            for q in range(2):
                f = 64 + (ks*2 + q)*4
                A(f"ds_read_b64_tr_b16 v[{f}:{f+1}], v{150+q} offset:{R0 + ks*8192}")
                A(f"ds_read_b64_tr_b16 v[{f+2}:{f+3}], v{150+q} offset:{R0 + ks*8192 + 4096}")
    if ea == 3: A("s_endpgm")
    if wopre: wofr()
    if oh:
        A("s_add_u32 s54, s38, s87"); A("s_addc_u32 s55, s39, 0")
        L = A.lab("P"); Ld = L + "d"; Lr = L + "r"
        lines = range(8) if oh == 1 else (0, 4)
        if oh == 2:
            A("s_and_b32 s8, s6, 3"); A("s_lshl_b32 s8, s8, 7"); A("s_add_u32 s54, s54, s8"); A("s_addc_u32 s55, s55, 0")
        A(f"{L}:")
        for i in lines: A(f"s_load_dword s{16+i}, s[54:55], {i*128+4} glc")
        A("s_waitcnt lgkmcnt(0)")
        for i in lines:
            A(f"s_cmp_eq_u32 s{16+i}, s40"); A(f"s_cbranch_scc0 {Lr}")
        A(f"s_branch {Ld}")
        A(f"{Lr}:")
        if hint_sleep: A(f"s_sleep {hint_sleep}")
        spin_tail(L, Ld, 16)
    ring(K2, st2, lambda r: [f"buffer_load_dwordx4 v[{r}:{r+3}], v29, s[44:47], s87 offen sc1"], 4, (1, 3), 32, [(20, 0), (21, 2)], "v163")
    if ea == 4: A("s_endpgm")
    A("ds_write_b64 v154, v[20:21]")
    flag(6)
    stamp(8)
    if not wopre: wofr()
    wait_lds("v8", 6)
    stamp(9)
    for ks in range(4): A(f"ds_read_b128 v[{48+4*ks}:{51+4*ks}], v152 offset:{ks*64}")
    for ks in range(4):
        A(f"s_waitcnt lgkmcnt({3-ks})")
        for q in range(2):
            f = 64 + (ks*2 + q)*4
            c = "0" if ks == 0 else f"v[{136+4*q}:{139+4*q}]"
            A(f"v_mfma_f32_16x16x32_bf16 v[{136+4*q}:{139+4*q}], v[{f}:{f+3}], v[{48+4*ks}:{51+4*ks}], {c}")
    for k in range(4): A(f"v_cndmask_b32 v{16+k}, v{136+k}, v{140+k}, s[50:51]")
    for k in range(4): A(f"v_mul_f32 v{16+k}, v164, v{16+k}")
    A("ds_write_b128 v147, v[16:19]")
    flag(7)
    stamp(10)
    if not dtail:
        A(f"s_mul_i32 s56, s2, {FBLK}"); A("s_lshl_b32 s8, s9, 10"); A("s_add_u32 s56, s56, s8"); A(f"s_add_u32 s56, s56, {FP}")
        A("s_lshl_b32 s8, s9, 2"); A(f"s_add_u32 s8, s8, {RB}"); A("v_add_u32 v30, s8, v29")
        A("s_add_u32 s14, s67, 60")
        if bwait: wait_lds("v7", "s14")
        gather([(100, f"buffer_load_dwordx4 v[100:103], v29, s[44:47], s56 offen {lf}")], tb=104)
        sum4(100, 1, 4, 64)
        xred()
        A("ds_write_b32 v30, v64")
        flag(8)
    else:
        A("s_mul_i32 s8, s9, 96"); A("s_sub_u32 s56, s84, s8")
        A("v_xor_b32 v15, 0x80000000, v15")
        A("v_lshrrev_b32 v2, 1, v1"); A("v_lshlrev_b32 v30, 7, v2"); A("v_and_b32 v2, 1, v1"); A("v_lshl_add_u32 v30, v2, 4, v30")
        A("v_lshlrev_b32 v31, 3, v2"); A("v_lshl_add_u32 v31, v5, 1, v31")
        srd(88, 34, 16384)
        A("s_lshr_b32 s12, s7, 2"); A("s_lshl_b32 s12, s12, 11"); A("s_lshl_b32 s8, s6, 8"); A("s_add_u32 s12, s12, s8")
        A("s_and_b32 s8, s7, 3"); A("s_lshl_b32 s8, s8, 6"); A("s_add_u32 s12, s12, s8"); A("s_lshl_b32 s8, s9, 4"); A("s_add_u32 s12, s12, s8")
        A("s_add_u32 s14, s67, 60")
        if bwait: wait_lds("v7", "s14")
        gather([(100, f"buffer_load_dwordx4 v[100:103], v30, s[44:47], s56 offen {lf}")], tb=104)
        sum4(100, 1, 4, 64)
        xred()
        for r in (4, 2): A(f"v_add_f32_dpp v64, v64, v64 row_ror:{r} row_mask:0xf bank_mask:0xf")
        A("v_cvt_pk_bf16_f32 v64, v64, v64")
        A("s_mov_b32 exec_lo, 0x00030003"); A("s_mov_b32 exec_hi, 0x00030003")
        A(f"buffer_store_short v64, v31, s[88:91], s12 offen {of}")
        A("s_add_u32 s8, s2, s9"); A("s_cbranch_scc1 L_Aend"); A("s_cmp_lg_u32 s8, 0"); A("s_cbranch_scc1 L_Aend")
        A("s_mov_b64 exec, 1")
        A("v_mov_b32 v2, 0")
        A("buffer_store_dword v111, v2, s[44:47], 0 offen sc1")
        A("L_Aend:")
        if diag:
            A("s_mov_b64 exec, -1"); flag(8)
    stamp(11)
    profend()
    dump_stamps(12, ["v161", "v162", "v163"])
    A("s_endpgm")

    A("L_B:")
    role[0] = "B"
    A("s_cmp_lg_u32 s9, 0"); A("s_cbranch_scc1 L_nogate")
    A("v_mov_b32 v16, 0"); A("v_mov_b32 v17, 0")
    for i in range(8):
        x, gw = 96 + i, 104 + i
        A(f"v_lshlrev_b32 v18, 16, v{x}"); A(f"v_and_b32 v19, 0xffff0000, v{x}")
        A(f"v_lshlrev_b32 v20, 16, v{gw}"); A(f"v_and_b32 v21, 0xffff0000, v{gw}")
        A("v_mul_f32 v18, v18, v20"); A("v_mul_f32 v19, v19, v21")
        A("v_cvt_pk_bf16_f32 v18, v18, v19")
        A("v_and_b32 v19, 0xffff0000, v18"); A("v_lshlrev_b32 v18, 16, v18")
        A("v_add_f32 v16, v16, v18"); A("v_add_f32 v17, v17, v19")
    A("v_add_f32 v16, v16, v17")
    for r in (1, 2, 4, 8): A(f"v_add_f32_dpp v16, v16, v16 row_ror:{r} row_mask:0xf bank_mask:0xf")
    for sw in ("v_permlane16_swap_b32", "v_permlane32_swap_b32"):
        A("v_mov_b32 v17, v16"); A(f"{sw} v16, v17"); A("v_add_f32 v16, v16, v17")
    A("v_cvt_pk_bf16_f32 v16, v16, v16"); A("v_lshlrev_b32 v16, 16, v16")
    A(f"v_mul_f32 v16, {0xBFB8AA3B:#x}, v16"); A("v_exp_f32 v16, v16"); A("v_add_f32 v16, 1.0, v16"); A("v_rcp_f32 v16, v16")
    A("v_cvt_pk_bf16_f32 v16, v16, v16"); A("v_lshlrev_b32 v16, 16, v16")
    A("v_sub_f32 v17, 1.0, v16"); A("v_cvt_pk_bf16_f32 v98, v16, v17")
    A("s_waitcnt lgkmcnt(0)")
    A(f"s_add_u32 s40, s40, {TAGK:#x}")
    A("s_getreg_b32 s8, hwreg(HW_REG_XCC_ID, 0, 4)")
    A("v_mov_b32 v96, s8"); A("v_mov_b32 v97, s40"); A("v_mov_b32 v99, s40")
    A("s_lshl_b32 s8, s6, 5"); A("s_add_u32 s8, s8, s7"); A("s_lshl_b32 s8, s8, 4"); A(f"s_add_u32 s8, s8, {XT}")
    A("v_mov_b32 v2, 0"); A("s_mov_b64 exec, 1")
    A("buffer_store_dwordx4 v[96:99], v2, s[44:47], s8 offen sc1")
    A("s_mov_b64 exec, -1")
    A("L_nogate:")
    A(f"s_add_u32 s52, s52, {HP}")
    A(f"v_add_u32 v13, {R3}, v13")
    A("s_mul_i32 s10, s5, 37"); A("s_lshr_b32 s10, s10, 8")
    A("s_mul_i32 s8, s10, 7"); A("s_sub_u32 s11, s5, s8")
    A("s_lshr_b32 s12, s11, 1")
    A("s_and_b32 s13, s11, 1"); A("s_min_u32 s8, s12, 1"); A("s_add_u32 s13, s13, s8")
    A("s_lshl_b32 s53, s10, 2"); A("s_add_u32 s53, s53, s12"); A("s_lshl_b32 s53, s53, 10")
    A("s_lshl_b32 s13, s13, 4"); A("s_lshl_b32 s8, s4, 2"); A("s_add_u32 s53, s53, s8"); A(f"s_add_u32 s53, s53, {HH}")
    A("v_lshrrev_b32 v2, 3, v1"); A("v_xor_b32 v2, 1, v2"); A("v_mul_u32_u24 v2, s13, v2"); A("v_lshl_add_u32 v24, v1, 7, v2")
    A("s_bitcmp1_b32 s11, 0"); A("s_mov_b32 s60, 0xff"); A("s_cselect_b32 s60, 0xffff, s60"); A("s_mov_b32 s61, 0")
    A("s_lshl_b32 s8, s2, 7"); A(f"s_add_u32 s8, s8, {HH}"); A("s_add_u32 s54, s38, s8"); A("s_addc_u32 s55, s39, 0")
    A("v_lshrrev_b32 v2, 5, v1"); A("v_lshlrev_b32 v2, 14, v2"); A("v_and_b32 v3, 31, v1"); A("v_lshl_add_u32 v29, v3, 4, v2")
    A("s_mul_i32 s56, s7, 448"); A("s_lshl_b32 s8, s9, 15"); A("s_add_u32 s56, s56, s8"); A(f"s_add_u32 s56, s56, {HP}")
    A("s_add_u32 s57, s56, 0x20000"); A("s_add_u32 s58, s56, 0x40000"); A("s_add_u32 s59, s56, 0x60000")
    A("s_mov_b32 s64, 0x0fffffff"); A("s_mov_b32 s65, 0x0fffffff")
    A("v_lshlrev_b32 v26, 2, v3")
    A("s_lshl_b32 s12, s6, 2"); A("s_and_b32 s8, s7, 3"); A("s_add_u32 s12, s12, s8"); A("s_lshl_b32 s12, s12, 7"); A(f"s_add_u32 s12, s12, {DT}")
    xfrags()
    wait_lds("v8", 2)
    A(f"ds_read_b32 v15, v7 offset:{9*256}")
    A("s_waitcnt lgkmcnt(0)")
    A("v_readfirstlane_b32 s42, v15")
    A("v_mov_b32 v21, v15"); A("v_mov_b32 v23, v15")
    A("s_mov_b32 s43, s42")
    if eb == 0: A("s_endpgm")
    A("s_cmp_lg_u32 s9, 1"); A("s_cbranch_scc1 L_nomode")
    wait_lds("v7", xt)
    A("s_lshl_b32 s8, s6, 9"); A(f"s_add_u32 s8, s8, {XT}")
    A("v_and_b32 v3, 31, v1"); A("v_lshlrev_b32 v25, 4, v3")
    A("buffer_load_dword v160, v26, s[44:47], s12 offen")
    gather([(96, "buffer_load_dwordx4 v[96:99], v25, s[44:47], s8 offen sc1")])
    A("v_lshlrev_b32 v100, 16, v98"); A("v_and_b32 v101, 0xffff0000, v98")
    A("v_lshl_add_u32 v2, v1, 3, v7"); A("s_mov_b64 exec, 0xff"); A(f"ds_write_b64 v2, v[100:101] offset:{10*256}"); A("s_mov_b64 exec, -1")
    A("s_getreg_b32 s8, hwreg(HW_REG_XCC_ID, 0, 4)")
    A("v_xor_b32 v3, s8, v96"); A("v_or_b32 v3, v3, v112")
    A("v_cmp_ne_u32 vcc, 0, v3")
    A("s_cmp_eq_u64 vcc, 0"); A(f"s_cselect_b32 s8, {1 if force_global else 2}, 1")
    A("v_mov_b32 v3, s8"); A(f"v_lshl_add_u32 v2, v1, 2, v7"); A(f"ds_write_b32 v2, v3 offset:{11*256}")
    A("L_nomode:")
    if fpre in (1, 3):
        A("s_cmp_lg_u32 s9, 2"); A("s_cbranch_scc1 L_nofpre")
        wait_lds("v7", fpt)
        A(f"s_mul_i32 s8, s2, {FBLK}"); A(f"s_add_u32 s8, s8, {FP}"); A("v_lshlrev_b32 v2, 7, v1")
        A("s_mov_b32 exec_hi, 0")
        A("buffer_load_dword v160, v2, s[44:47], s8 offen")
        A("s_mov_b64 exec, -1")
        A("L_nofpre:")
    if fpre == 2:
        wait_lds("v7", 1, off=11*256)
        A("v_readfirstlane_b32 s63, v2")
        for k in range(4): A(f"v_xor_b32 v{156+k}, 1, v15")
        A("s_cmp_eq_u32 s63, 2"); A("s_cbranch_scc0 L_nofpre")
        A("buffer_store_dwordx4 v[156:159], v153, s[44:47], s66 offen")
        A("L_nofpre:")
    if eb == 1: A("s_endpgm")
    A("s_cmp_ge_u32 s5, 56"); A("s_cbranch_scc1 L_Bnow1")
    wait_lds("v7", 132)
    stamp(1)
    p1_run()
    flag(2)
    A("s_cmp_lg_u32 s9, 0"); A("s_cbranch_scc1 L_Bnow1")
    wait_lds("v8", 2, off=1024)
    A("s_mov_b64 exec, s[60:61]")
    A("buffer_store_dword v15, v24, s[44:47], s53 offen sc1")
    A("s_mov_b64 exec, -1")
    A("L_Bnow1:")
    stamp(2)
    if eb == 2: A("s_endpgm")
    def w2fr():
        for ks in range(3):
            for q in range(2):
                f = 64 + (ks*2 + q)*4
                A(f"ds_read_b64_tr_b16 v[{f}:{f+1}], v{150+q} offset:{R1 + ks*8192}")
                A(f"ds_read_b64_tr_b16 v[{f+2}:{f+3}], v{150+q} offset:{R1 + ks*8192 + 4096}")
    A("s_add_u32 s14, s67, 56"); A("s_add_u32 s15, s67, 60")
    get_mode()
    wait_lds("v7", 124)
    A("s_add_u32 s8, s7, 1"); A("s_and_b32 s62, s8, 2")
    L = A.lab("P"); Ld = L + "d"; Lr = L + "r"
    A(f"{L}:")
    A("s_load_dwordx16 s[84:99], s[54:55], 0 glc")
    A("s_waitcnt lgkmcnt(0)")
    for i in range(4):
        A(f"s_cmp_eq_u64 s[{84+2*i}:{85+2*i}], s[42:43]"); A(f"s_cbranch_scc0 {Lr}")
    A("s_cmp_eq_u32 s62, 0"); A(f"s_cbranch_scc1 {Ld}")
    for i in range(4, 6):
        A(f"s_cmp_eq_u64 s[{84+2*i}:{85+2*i}], s[42:43]"); A(f"s_cbranch_scc0 {Lr}")
    A(f"s_branch {Ld}")
    A(f"{Lr}:")
    if hint_sleep: A(f"s_sleep {hint_sleep}")
    spin_tail(L, Ld, 16)
    stamp(3)
    if eb == 3: A("s_endpgm")
    A("s_mov_b64 exec, s[64:65]")
    gather([(32+4*i, f"buffer_load_dwordx4 v[{32+4*i}:{35+4*i}], v29, s[44:47], s{56+i} offen sc1") for i in range(4)], full="s[64:65]", cnt="v162")
    sum4(32, 4, 4, 16)
    for k in range(4): A(f"v_max_f32 v{16+k}, 0, v{16+k}")
    A("v_cvt_pk_bf16_f32 v20, v16, v17"); A("v_cvt_pk_bf16_f32 v21, v18, v19")
    A("ds_write_b64 v154, v[20:21] offset:256")
    A("s_mov_b64 exec, -1")
    flag(3)
    stamp(4)
    if eb == 4: A("s_endpgm")
    def bfin():
        if bpre:
            A("ds_read_b32 v2, v7"); A("s_waitcnt lgkmcnt(0)"); A("v_readfirstlane_b32 s13, v2")
            A("s_cmp_lt_i32 s13, s14"); A("s_cbranch_scc1 L_w2no")
            w2fr()
            A("L_w2no:")
        wait_lds("v8", 3, off=1024)
        for ks in range(3): A(f"ds_read_b128 v[{32+4*ks}:{35+4*ks}], v152 offset:{256 + ks*64}")
        A(f"ds_read_b64 v[44:45], v152 offset:{256 + 192}")
        if bpre:
            A("s_cmp_ge_i32 s13, s14"); A("s_cbranch_scc1 L_w2have")
        wait_lds("v7", "s14")
        w2fr()
        A("L_w2have:")
        A("s_waitcnt lgkmcnt(0)")
        for ks in range(3):
            for q in range(2):
                f = 64 + (ks*2 + q)*4
                c = "0" if ks == 0 else f"v[{128+4*q}:{131+4*q}]"
                A(f"v_mfma_f32_16x16x32_bf16 v[{128+4*q}:{131+4*q}], v[{f}:{f+3}], v[{32+4*ks}:{35+4*ks}], {c}")
        A("s_lshl_b32 s8, s9, 8"); A("v_add_u32 v3, s8, v7")
        wait_lds("v3", 7, off=256)
        A("ds_read_b128 v[96:99], v147")
        wait_lds("v7", "s15")
        stamp(5)
        for q in range(2): A(f"ds_read_b64_tr_b16 v[{88+2*q}:{89+2*q}], v{150+q} offset:{R1 + 3*8192}")
        for q in range(2):
            A(f"s_waitcnt lgkmcnt({1-q})")
            A(f"v_mfma_f32_16x16x16_bf16 v[{128+4*q}:{131+4*q}], v[{88+2*q}:{89+2*q}], v[44:45], v[{128+4*q}:{131+4*q}]")
        for k in range(4): A(f"v_cndmask_b32 v{16+k}, v{128+k}, v{132+k}, s[50:51]")
        for k in range(4): A(f"v_fmac_f32 v{96+k}, v165, v{16+k}")
        A("v_cvt_pk_bf16_f32 v156, v96, v97"); A("v_cvt_pk_bf16_f32 v158, v98, v99")
    A("v_xor_b32 v157, 0x80000000, v15"); A("v_mov_b32 v159, v157")
    gather([(27, f"buffer_load_dword v27, v26, s[44:47], s12 offen {lf}")], tags=(0,), mid=bfin)
    A("s_cmp_eq_u32 s53, 2"); A("s_cbranch_scc0 L_fg")
    A("buffer_store_dwordx4 v[156:159], v153, s[44:47], s66 offen")
    A("s_branch L_fe")
    A("L_fg:")
    A("buffer_store_dwordx4 v[156:159], v153, s[44:47], s66 offen sc1")
    A("L_fe:")
    stamp(6)
    profend()
    dump_stamps(7, ["v161", "v162"])
    A("s_endpgm")
    A("L_codeend:")

    body = A.render().replace(' nt lds', f' {sf} lds')
    out = HEADER
    out += f"; @launch grid=(256,1,1) block=(576,1,1) lds={LDS_BYTES}\n"
    out += '.amdgcn_target "amdgcn-amd-amdhsa--gfx950"\n.text\n'
    out += f".globl {NAME}\n.p2align 8\n.type {NAME},@function\n"
    out += body
    out += f""".section .rodata,"a"
.p2align 6
.amdhsa_kernel {NAME}
  .amdhsa_next_free_vgpr 168
  .amdhsa_next_free_sgpr 102
  .amdhsa_accum_offset 168
  .amdhsa_group_segment_fixed_size 0
  .amdhsa_kernarg_size 96
  .amdhsa_user_sgpr_count 2
  .amdhsa_user_sgpr_kernarg_segment_ptr 1
  .amdhsa_system_sgpr_workgroup_id_x 1
  .amdhsa_float_denorm_mode_32 3
.end_amdhsa_kernel
"""
    return out

if __name__ == "__main__":
    import json
    kw = json.loads(sys.argv[2]) if len(sys.argv) > 2 else {}
    open(sys.argv[1], "w").write(gen(**kw))
```

```python
import sys
sys.path.insert(0, "work")
from asmlib import Asm

NAME = "gated_mix__sliding_block_cached__dense_activation_relu__decode_kernel"
HEADER = open("gated_mix__sliding_block_cached__dense_activation_relu__decode.s.ref").read().split("; Override launch")[0]

XT = 0x1000
DT = 0x3000
LSE = 0x4000
HH = 0x8000
OF = 0x40000
QP = 0x80000
HP = 0x100000
OP = 0x180000
WS_USED = 0x280000
DIAG = 0x500000
R0, R1, R2, R3, M = 0x0, 0x8000, 0x10000, 0x18000, 0x20000
XS = M
QB = M + 0x1000
OB = M + 0x1A00
PB = M + 0x2C00
TB = M + 0x3C00
ST = M + 0x4C00
FL = M + 0x5000
LDS_BYTES = M + 0x6000
TAGK = 0x9E3779B1
SPIN_LIMIT = 400000
L2E = 0x3FB8AA3B
SCALE = 0x3DB504F3

def gen(D=20, D2=0, Dh=0, diag=False, mimic=True, q_start=64, force_global=False, xt=72, hstart=96, opre=0, dpre=64, ostart=0, hpstart=0, hwo=0, hflag=1, prof=None, amp=0, elim=0, bwait=1, gml=1, lf='sc1', ls='', hq=0, opf=3, Dhw=32, ea=99, eb=99, eh=99, sf='nt'):
    A = Asm()
    D2 = D2 or D
    SP = [68, 70, 72, 74, 76, 78, 80, 82, 92, 100, 32, 36]
    role = ["A"]
    def stamp(i):
        if diag: A(f"s_memrealtime s[{SP[i]}:{SP[i]+1}]")
        if prof and prof == f"{role[0]}{i}": A("s_memrealtime s[68:69]")
        if amp and i == 0: A("s_memrealtime s[74:75]")
    def finish(n, extra=()):
        if prof and prof[0] == role[0]:
            L = A.lab("PR")
            A("s_waitcnt lgkmcnt(0)"); A("s_sub_u32 s72, s68, s74"); A(f"s_mul_i32 s72, s72, {amp}"); A("s_add_u32 s68, s74, s72")
            A(f"{L}:"); A("s_memrealtime s[70:71]"); A("s_waitcnt lgkmcnt(0)"); A("s_sub_u32 s72, s70, s68"); A("s_cmp_lt_i32 s72, 2000"); A(f"s_cbranch_scc1 {L}")
        if diag:
            A("s_waitcnt lgkmcnt(0)")
            A("s_mov_b64 exec, -1")
            A("v_mov_b32 v3, 0")
            for i in range(n): A(f"v_writelane_b32 v3, s{SP[i]}, {i}")
            for k, r in enumerate(extra):
                A(f"v_readfirstlane_b32 s60, {r}"); A(f"v_writelane_b32 v3, s60, {12+k}")
            A("s_lshl_b32 s60, s3, 6"); A(f"s_add_u32 s60, s60, {FL + 0xC00}"); A("v_lshl_add_u32 v2, v1, 2, s60")
            A("s_mov_b64 exec, 0xffff")
            A("ds_write_b32 v2, v3")
            A("s_mov_b64 exec, -1")
            if role[0] != "L":
                A("v_mov_b32 v2, 63"); A("ds_write_b32 v9, v2")
        if not (diag and role[0] == "L"): A("s_endpgm")
    def spin_tail(L, Ld, inc=1):
        A(f"s_add_u32 s41, s41, {inc}"); A(f"s_cmp_lt_u32 s41, {SPIN_LIMIT}"); A(f"s_cbranch_scc1 {L}"); A(f"{Ld}:")
    def wait_lds(vaddr, th, vt="v2", off=0):
        L = A.lab("W"); Ld = L + "d"
        A(f"{L}:")
        A(f"ds_read_b32 {vt}, {vaddr}" + (f" offset:{off}" if off else ""))
        A("s_waitcnt lgkmcnt(0)")
        A(f"v_cmp_gt_i32 vcc, {th}, {vt}")
        A(f"s_cbranch_vccz {Ld}")
        spin_tail(L, Ld)
    def srd(d, b, size):
        A(f"s_mov_b32 s{d}, s{b}"); A(f"s_mov_b32 s{d+1}, s{b+1}"); A(f"s_mov_b32 s{d+2}, {size:#x}"); A(f"s_mov_b32 s{d+3}, 0x20000")
    WSZ = 0x800000 if diag else WS_USED

    A(f"{NAME}:")
    A("s_load_dwordx16 s[16:31], s[0:1], 0")
    A("v_readfirstlane_b32 s3, v0")
    A("s_cmp_ge_u32 s2, 256")
    A("s_cbranch_scc1 L_exit")
    stamp(0)
    A("s_lshr_b32 s4, s2, 6")
    A("s_and_b32 s5, s2, 63")
    A("s_lshr_b32 s3, s3, 6")
    A("s_cbranch_scc1 L_stub")
    role[0] = "L"
    A("v_lshrrev_b32 v13, 3, v0"); A("v_and_b32 v2, 6, v13"); A("v_and_b32 v3, 7, v0"); A("v_xor_b32 v3, v3, v2"); A("v_lshlrev_b32 v12, 4, v3")
    A("v_lshl_add_u32 v5, v13, 13, v12")
    A("s_lshl_b32 s10, s5, 7"); A("s_lshl_b32 s9, s4, 21"); A("s_add_u32 s9, s9, s10")
    A("s_mov_b32 s50, 0x800000"); A("s_mov_b32 s51, 0x20000"); A("s_mov_b32 s11, 0xfc00"); A("s_mov_b32 m0, 0")
    A("s_setprio 3")
    A("s_waitcnt lgkmcnt(0)")
    A("s_mov_b64 s[48:49], s[22:23]")
    A("L_burst:")
    for u in range(4):
        A(f"buffer_load_dwordx4 v5, s[48:51], s9 offen offset:{u*1024} nt lds")
        A("s_add_u32 s9, s9, s11")
    A("s_addk_i32 s9, 0x1000"); A("s_add_u32 m0, m0, 0x1000"); A("s_bitcmp0_b32 m0, 15"); A("s_cbranch_scc1 L_burst")
    A("s_branch L_loader")

    A("L_stub:")
    A("s_load_dwordx8 s[32:39], s[0:1], 64")
    A("s_getpc_b64 s[54:55]")
    A("L_pc:")
    A("v_subrev_u32 v2, 64, v0"); A("v_lshlrev_b32 v2, 7, v2"); A("v_min_u32 v2, L_codeend-L_pc-4, v2")
    A("global_load_dword v160, v2, s[54:55]")
    A("v_and_b32 v1, 63, v0")
    A("s_mov_b32 s41, 0"); A("s_and_b32 s6, s2, 7"); A("s_lshr_b32 s7, s2, 3")
    A("v_mov_b32 v3, 0")
    A(f"v_lshlrev_b32 v9, 2, v0"); A(f"v_add_u32 v9, {FL}, v9")
    A(f"v_lshlrev_b32 v2, 2, v1"); A(f"v_add_u32 v2, {FL}, v2")
    A("ds_write_b32 v9, v3"); A("ds_write_b32 v2, v3"); A(f"ds_write_b32 v2, v3 offset:{11*256}")
    A("v_lshrrev_b32 v3, 5, v0"); A("v_subrev_u32 v3, 2, v3")
    A("v_and_b32 v2, 31, v1"); A("v_xor_b32 v2, v2, v3"); A("v_lshlrev_b32 v2, 4, v2"); A("v_lshl_add_u32 v2, v3, 11, v2")
    A("s_lshl_b32 s8, s4, 9"); A("v_add_u32 v2, s8, v2")
    A("s_lshl_b32 s8, s3, 10"); A(f"s_add_u32 m0, s8, {XS - 1024}")
    A("s_waitcnt lgkmcnt(0)")
    A("s_load_dword s40, s[38:39], 0")
    A("s_cmp_gt_u32 s3, 4"); A("s_cbranch_scc1 L_nx")
    A("global_load_lds_dwordx4 v2, s[16:17]")
    A("L_nx:")
    A("s_cmp_lg_u32 s3, 5"); A("s_cbranch_scc1 L_ng5")
    A("s_and_b32 s8, s7, 7"); A("s_lshl_b32 s8, s8, 11"); A("v_lshlrev_b32 v2, 5, v1"); A("v_add_u32 v3, s8, v2")
    A("global_load_dwordx4 v[96:99], v3, s[16:17]"); A("global_load_dwordx4 v[100:103], v3, s[16:17] offset:16")
    A("global_load_dwordx4 v[104:107], v2, s[32:33]"); A("global_load_dwordx4 v[108:111], v2, s[32:33] offset:16")
    A("L_ng5:")
    A("s_barrier")
    if elim == 1: A("s_endpgm")
    A("s_waitcnt vmcnt(0) lgkmcnt(0)")
    A("v_mov_b32 v2, 1"); A("ds_write_b32 v9, v2")
    A("s_branch L_notloader")

    def kvcall():
        if Dh:
            La = A.lab("KV")
            A("s_cmp_eq_u32 s12, 7"); A(f"s_cbranch_scc1 {La}h"); A("s_call_b64 s[52:53], L_loopx"); A(f"s_branch {La}e")
            A(f"{La}h:"); A("s_call_b64 s[52:53], L_looph"); A(f"{La}e:")
        else: A("s_call_b64 s[52:53], L_loopx")
    A("L_loader:")
    if diag: A("s_load_dwordx8 s[32:39], s[0:1], 64")
    A("v_mov_b32 v1, v0"); A("s_mov_b32 s41, 0"); A("s_and_b32 s6, s2, 7"); A("s_lshr_b32 s7, s2, 3")
    A("v_lshrrev_b32 v14, 4, v1"); A("v_and_b32 v15, 15, v1")
    A("v_xor_b32 v2, v15, v14"); A("v_lshlrev_b32 v2, 4, v2"); A("v_lshl_add_u32 v5, v14, 8, v2")
    A("v_xor_b32 v6, 64, v5"); A("v_xor_b32 v7, 0x80, v5"); A("v_xor_b32 v8, 64, v7")
    A("v_lshlrev_b32 v9, 1, v14"); A("v_xor_b32 v9, v15, v9"); A("v_lshlrev_b32 v9, 4, v9")
    A(f"v_mov_b32 v29, {FL}"); A("v_lshl_add_u32 v10, v1, 2, v29"); A("v_and_b32 v2, 3, v1"); A("v_mul_u32_u24 v2, 0x104, v2"); A("v_add_u32 v29, v2, v29")
    A(f"s_mul_i32 s42, s4, {256*7168}"); A("s_add_u32 s42, s42, s10")
    A("s_and_b32 s15, s7, 24"); A("s_add_u32 s15, s15, s6"); A("s_lshl_b32 s15, s15, 5"); A("s_and_b32 s12, s7, 7"); A("s_add_u32 s15, s15, s12")
    A("s_add_u32 s15, s15, 24"); A("s_lshl_b32 s15, s15, 15"); A("s_lshl_b32 s14, s12, 12")
    A("s_mov_b64 s[48:49], s[18:19]"); A("s_mov_b32 s50, 0x2000000"); A("s_mov_b32 s9, s15"); A("s_mov_b32 s13, 8"); A(f"s_mov_b32 s10, {R1}")
    A(f"s_mov_b32 s43, {32 + 4 - D}")
    if Dh:
        A("s_cmp_eq_u32 s12, 7"); A(f"s_cselect_b32 s43, {32 + 4 - Dh}, s43")
    A("s_barrier")
    stamp(6)
    kvcall()
    stamp(7)
    A("v_lshl_add_u32 v5, v14, 8, v9"); A("v_xor_b32 v6, 0x80, v5"); A("v_mov_b32 v7, v5"); A("v_mov_b32 v8, v6")
    A("s_mov_b64 s[48:49], s[20:21]"); A("s_mov_b32 s9, s15"); A("s_mov_b32 s13, 8")
    kvcall()
    stamp(3)
    A("s_cmp_eq_u32 s12, 7"); A("s_cbranch_scc1 L_now1")
    A("v_mul_u32_u24 v5, 0x1c00, v13"); A("v_add_u32 v5, v5, v12"); A("v_mov_b32 v6, v5")
    A(f"s_mov_b32 m0, {R3}"); A("s_mov_b32 s50, 0x700000")
    A("s_mov_b64 s[48:49], s[28:29]"); A("s_mov_b32 s9, s42"); A(f"s_mov_b32 s11, {8*7168-1024}"); A("s_mov_b32 s13, 8")
    A("s_call_b64 s[52:53], L_loop")
    A("L_now1:")
    stamp(1)
    A("v_lshl_add_u32 v5, v14, 11, v9"); A("v_xor_b32 v6, 0x80, v5")
    A("s_mov_b64 s[48:49], s[24:25]"); A("s_mov_b32 s50, 0x800000")
    A("s_lshl_b32 s9, s7, 10"); A("s_add_u32 s9, s9, s6"); A("s_lshl_b32 s9, s9, 8")
    A("s_movk_i32 s11, 0x1c00"); A("s_mov_b32 s13, 8"); A("s_mov_b32 m0, 0")
    if not elim: wait_lds("v29", 2, off=256)
    A("s_cmp_eq_u32 s12, 7"); A("s_cbranch_scc0 L_wonorm")
    DW = Dhw or Dh or D
    if DW != (Dh or D): A(f"s_add_i32 s43, s43, {(Dh or D) - DW}")
    A(f"s_call_b64 s[52:53], {'L_loop3' if DW != D else 'L_loop'}")
    if DW > 32: A("s_waitcnt vmcnt(32)"); A("v_mov_b32 v11, 96"); A("ds_write_b32 v10, v11")
    A(f"s_add_i32 s43, s43, {DW - D2}")
    A("s_branch L_now2")
    A("L_wonorm:")
    A("s_call_b64 s[52:53], L_loop")
    if D2 != D: A(f"s_add_i32 s43, s43, {D - D2}")
    A("s_mov_b64 s[48:49], s[30:31]"); A("s_mov_b32 s50, 0x700000")
    A("s_sub_u32 s9, s7, s4"); A("s_lshl_b32 s9, s9, 10"); A("s_add_u32 s9, s9, s6"); A("s_lshl_b32 s9, s9, 8"); A("s_mov_b32 s13, 8")
    if not elim: wait_lds("v29", 3, off=256)
    A(f"s_call_b64 s[52:53], {'L_loop2' if D2 != D else 'L_loop'}")
    A("L_now2:")
    prev = D2 - 4
    for k in (8, 0):
        A(f"s_waitcnt vmcnt({k})")
        A(f"s_add_i32 s43, s43, {prev - k}")
        prev = k
        A("v_mov_b32 v11, s43"); A("ds_write_b32 v10, v11")
    stamp(2)
    if diag or prof: A("s_branch L_ldend")
    A("L_exit:")
    A("s_endpgm")
    for lab, Dd in (("L_loopx", D), ("L_looph", Dh)):
        if not Dd: continue
        A(f"{lab}:")
        A("s_xor_b32 m0, s10, s14"); A("s_xor_b32 s8, s9, s14")
        for u in range(4):
            A(f"s_waitcnt vmcnt({Dd-1})")
            if u == 3:
                A("v_mov_b32 v11, s43"); A("ds_write_b32 v10, v11")
            A(f"buffer_load_dwordx4 v{5+u}, s[48:51], s8 offen offset:{u*1024} nt lds")
        A("s_addk_i32 s9, 0x1000"); A("s_addk_i32 s10, 0x1000"); A("s_add_i32 s43, s43, 4")
        A("s_sub_u32 s13, s13, 1"); A("s_cmp_lg_u32 s13, 0"); A(f"s_cbranch_scc1 {lab}")
        A("s_setpc_b64 s[52:53]")
    for lab, Dd in (("L_loop", D), ("L_loop2", D2), ("L_loop3", DW if DW != D else 0)):
        if lab == "L_loop2" and D2 == D: continue
        if not Dd: continue
        A(f"{lab}:")
        for u in range(4):
            A(f"s_waitcnt vmcnt({Dd-1})")
            if u == 3:
                A("v_mov_b32 v11, s43"); A("ds_write_b32 v10, v11")
            A(f"buffer_load_dwordx4 v{5+(u&1)}, s[48:51], s9 offen offset:{u*1024} nt lds")
            A("s_add_u32 s9, s9, s11")
        A("s_addk_i32 s9, 0x1000"); A("s_add_u32 m0, m0, 0x1000"); A("s_add_i32 s43, s43, 4")
        A("s_sub_u32 s13, s13, 1"); A("s_cmp_lg_u32 s13, 0"); A(f"s_cbranch_scc1 {lab}")
        A("s_setpc_b64 s[52:53]")
    if diag or prof:
        A("L_ldend:")
        finish(8)
    if diag:
        A("v_and_b32 v2, 7, v1"); A("v_mul_u32_u24 v2, 0x104, v2"); A(f"v_add_u32 v29, {FL}, v2")
        if not elim: wait_lds("v29", 63, off=256)
        srd(44, 38, WSZ)
        A("v_lshlrev_b32 v2, 4, v1"); A(f"v_add_u32 v3, {FL + 0xC00}, v2")
        A("ds_read_b128 v[16:19], v3"); A("s_waitcnt lgkmcnt(0)")
        A("s_lshl_b32 s60, s2, 10"); A(f"s_add_u32 s60, s60, {DIAG}")
        A("s_mov_b32 exec_hi, 0xf")
        A("buffer_store_dwordx4 v[16:19], v2, s[44:47], s60 offen")
        A("s_endpgm")

    def flag(stage):
        A(f"v_mov_b32 v2, {stage}"); A("ds_write_b32 v9, v2")
    def gather(loads, tb=112, mid=None, cnt=None):
        N = len(loads)
        mreg = lambda i: 16 + 2*i if i < 8 else 84 + 2*(i - 8)
        L = A.lab("G"); Ld = L + "d"; Lc = L + "c"
        for tg, t in loads: A(t)
        if mid: mid()
        A(f"{Lc}:")
        if diag and cnt: A(f"v_add_u32 {cnt}, 1, {cnt}")
        A("s_waitcnt vmcnt(0)")
        for i, (tg, t) in enumerate(loads):
            A(f"v_xor_b32 v{tb+i}, v{tg[0]}, v15")
            for r in tg[1:]: A(f"v_bitop3_b32 v{tb+i}, v{tb+i}, v{r}, v15 bitop3:0xf6")
        if N == 1: A(f"v_cmp_ne_u32 vcc, 0, v{tb}")
        else:
            A(f"v_or_b32 v2, v{tb}, v{tb+1}")
            for i in range(2, N, 2): A(f"v_or3_b32 v2, v2, v{tb+i}, v{tb+i+1}")
            A("v_cmp_ne_u32 vcc, 0, v2")
        A(f"s_cbranch_vccz {Ld}")
        A("s_add_u32 s41, s41, 16"); A(f"s_cmp_ge_u32 s41, {SPIN_LIMIT}"); A(f"s_cbranch_scc1 {Ld}")
        if N == 1:
            A("s_mov_b64 exec, vcc"); A(loads[0][1])
        else:
            for i in range(N): A(f"v_cmp_ne_u32 s[{mreg(i)}:{mreg(i)+1}], 0, v{tb+i}")
            for i, (tg, t) in enumerate(loads):
                sk = A.lab("S")
                A(f"s_mov_b64 exec, s[{mreg(i)}:{mreg(i)+1}]"); A(f"s_cbranch_execz {sk}"); A(t); A(f"{sk}:")
        A("s_mov_b64 exec, -1")
        A(f"s_branch {Lc}")
        A(f"{Ld}:")
    def ld4(d, va, so, off=0, fl="sc1"):
        return ((d+1, d+3), f"buffer_load_dwordx4 v[{d}:{d+3}], {va}, s[44:47], {so} offen" + (f" offset:{off}" if off else "") + " " + fl)
    def sum4(base, n, stride, out):
        for k, off in enumerate((0, 2)):
            for i in range(n):
                r = base + stride * i + off
                if i == 0:
                    A(f"v_lshlrev_b32 v{out+2*k}, 16, v{r}"); A(f"v_and_b32 v{out+2*k+1}, 0xffff0000, v{r}")
                else:
                    A(f"v_lshlrev_b32 v2, 16, v{r}"); A(f"v_and_b32 v3, 0xffff0000, v{r}")
                    A(f"v_add_f32 v{out+2*k}, v{out+2*k}, v2"); A(f"v_add_f32 v{out+2*k+1}, v{out+2*k+1}, v3")
    def lstore(texts):
        Lg = A.lab("F"); Le = Lg + "e"
        A("s_cmp_eq_u32 s53, 2"); A(f"s_cbranch_scc0 {Lg}")
        for ex, t in texts:
            if ex: A(ex)
            A(t + " " + ls)
        A(f"s_branch {Le}")
        A(f"{Lg}:")
        for ex, t in texts:
            if ex: A(ex)
            A(t + " sc1")
        A(f"{Le}:")
        if any(ex for ex, t in texts): A("s_mov_b64 exec, -1")
    def get_mode():
        wait_lds("v7", 1, off=11*256)
        A("v_readfirstlane_b32 s53, v2")
        A("v_lshl_add_u32 v3, v6, 3, v7"); A(f"ds_read_b64 v[164:165], v3 offset:{10*256}")
    def xfrags():
        wait_lds("v166", 1)
        for var in range(4):
            if var: A(f"v_xor_b32 v3, {var*32}, v10")
            for kk in range(4):
                ks = kk*2 + (var >> 1); hh = var & 1
                A(f"ds_read_b64 v[{32+4*ks+2*hh}:{33+4*ks+2*hh}], {'v3' if var else 'v10'} offset:{kk*128}")
    def p1(base):
        for (k0, k1) in ((0, 6), (6, 8)):
            wait_lds("v7", base + 4*k1)
            if k1 == 8: stamp(1)
            for ks in range(k0, k1):
                A(f"ds_read_b64_tr_b16 v[{64+4*ks}:{65+4*ks}], v13 offset:{ks*4096}")
                A(f"ds_read_b64_tr_b16 v[{66+4*ks}:{67+4*ks}], v13 offset:{ks*4096 + 2048}")
            for ks in range(k0, k1):
                A(f"s_waitcnt lgkmcnt({2*(k1 - 1 - ks)})")
                c = "0" if ks == 0 else "v[16:19]"
                A(f"v_mfma_f32_16x16x32_bf16 v[16:19], v[{64+4*ks}:{67+4*ks}], v[{32+4*ks}:{35+4*ks}], {c}")
        A("v_cvt_pk_bf16_f32 v20, v16, v17"); A("v_cvt_pk_bf16_f32 v22, v18, v19")
        A("s_mov_b64 exec, s[48:49]")
        A("buffer_store_dwordx4 v[20:23], v14, s[44:47], s52 offen sc1")
        A("s_mov_b64 exec, -1")
    def tilefr(region, k0, k1):
        for ks in range(k0, k1):
            for q in range(2):
                f = 64 + (ks*2 + q)*4
                A(f"ds_read_b64_tr_b16 v[{f}:{f+1}], v{150+q} offset:{region + ks*8192}")
                A(f"ds_read_b64_tr_b16 v[{f+2}:{f+3}], v{150+q} offset:{region + ks*8192 + 4096}")
    def tilemm(ks):
        for q in range(2):
            f = 64 + (ks*2 + q)*4
            c = "0" if ks == 0 else f"v[{128+4*q}:{131+4*q}]"
            A(f"v_mfma_f32_16x16x32_bf16 v[{128+4*q}:{131+4*q}], v[{f}:{f+3}], v[{48+4*ks}:{51+4*ks}], {c}")

    A("L_notloader:")
    role[0] = "A"
    srd(44, 38, WSZ)
    A(f"s_add_u32 s40, s40, {TAGK:#x}")
    A("v_mov_b32 v15, s40"); A("v_mov_b32 v21, s40"); A("v_mov_b32 v23, s40")
    A("v_and_b32 v4, 15, v1"); A("v_lshrrev_b32 v5, 4, v1"); A("v_and_b32 v6, 7, v1")
    A("v_lshlrev_b32 v29, 4, v1")
    A("s_cmp_lg_u32 s3, 5"); A("s_cbranch_scc1 L_nogate")
    A("v_mov_b32 v16, 0"); A("v_mov_b32 v17, 0")
    for i in range(8):
        x, gw = 96 + i, 104 + i
        A(f"v_lshlrev_b32 v18, 16, v{x}"); A(f"v_and_b32 v19, 0xffff0000, v{x}")
        A(f"v_lshlrev_b32 v24, 16, v{gw}"); A(f"v_and_b32 v25, 0xffff0000, v{gw}")
        A("v_mul_f32 v18, v18, v24"); A("v_mul_f32 v19, v19, v25")
        A("v_cvt_pk_bf16_f32 v18, v18, v19")
        A("v_and_b32 v19, 0xffff0000, v18"); A("v_lshlrev_b32 v18, 16, v18")
        A("v_add_f32 v16, v16, v18"); A("v_add_f32 v17, v17, v19")
    A("v_add_f32 v16, v16, v17")
    for r in (1, 2, 4, 8): A(f"v_add_f32_dpp v16, v16, v16 row_ror:{r} row_mask:0xf bank_mask:0xf")
    for sw in ("v_permlane16_swap_b32", "v_permlane32_swap_b32"):
        A("v_mov_b32 v17, v16"); A(f"{sw} v16, v17"); A("v_add_f32 v16, v16, v17")
    A("v_cvt_pk_bf16_f32 v16, v16, v16"); A("v_lshlrev_b32 v16, 16, v16")
    A(f"v_mul_f32 v16, {0xBFB8AA3B:#x}, v16"); A("v_exp_f32 v16, v16"); A("v_add_f32 v16, 1.0, v16"); A("v_rcp_f32 v16, v16")
    A("v_cvt_pk_bf16_f32 v16, v16, v16"); A("v_lshlrev_b32 v16, 16, v16")
    A("v_sub_f32 v17, 1.0, v16"); A("v_cvt_pk_bf16_f32 v22, v16, v17")
    A("s_getreg_b32 s8, hwreg(HW_REG_XCC_ID, 0, 4)")
    A("v_mov_b32 v20, s8")
    A("s_lshl_b32 s8, s6, 5"); A("s_add_u32 s8, s8, s7"); A("s_lshl_b32 s8, s8, 4"); A(f"s_add_u32 s8, s8, {XT}")
    A("s_mov_b64 exec, 1")
    A("buffer_store_dwordx4 v[20:23], v29, s[44:47], s8 offen sc1")
    A("s_mov_b64 exec, -1")
    A("L_nogate:")
    if prof == "B9": A("s_memrealtime s[68:69]")
    A(f"v_mov_b32 v7, {FL}")
    A("v_and_b32 v2, 3, v1"); A("v_mul_u32_u24 v2, 0x104, v2"); A(f"v_add_u32 v8, {FL+256}, v2")
    A("v_mul_u32_u24 v2, 0x104, v6"); A(f"v_add_u32 v166, {FL+256}, v2")
    A("v_lshrrev_b32 v2, 1, v5"); A("v_xor_b32 v2, v2, v6"); A("v_lshlrev_b32 v2, 4, v2"); A("v_lshl_add_u32 v10, v6, 9, v2")
    A("v_and_b32 v2, 1, v5"); A("v_lshl_add_u32 v10, v2, 3, v10"); A(f"v_add_u32 v10, {XS}, v10")
    A("v_lshrrev_b32 v11, 2, v1")
    A("v_and_b32 v12, 3, v1"); A("v_lshlrev_b32 v12, 3, v12")
    A("s_mov_b32 s48, 0x00ff00ff"); A("s_mov_b32 s49, 0x00ff00ff")
    A("s_mov_b32 s50, 0xff00ff00"); A("s_mov_b32 s51, 0xff00ff00")
    A("s_sub_u32 s9, s3, 1"); A("s_and_b32 s9, s9, 3")
    A("s_and_b32 s10, s7, 24"); A("s_add_u32 s10, s10, s6")
    A("s_lshr_b32 s11, s10, 2"); A("s_and_b32 s12, s10, 3"); A("s_and_b32 s13, s7, 7")
    A("v_lshrrev_b32 v2, 1, v11"); A("v_and_b32 v2, 3, v2"); A("v_xor_b32 v2, s9, v2"); A("v_lshlrev_b32 v2, 5, v2")
    A("v_lshl_add_u32 v13, v11, 7, v2"); A("v_add_u32 v13, v13, v12")
    A("v_lshlrev_b32 v14, 14, v6"); A("v_lshl_add_u32 v14, v5, 4, v14")
    A("s_lshl_b32 s52, s4, 17"); A("s_lshl_b32 s8, s5, 8"); A("s_add_u32 s52, s52, s8"); A("s_lshl_b32 s8, s9, 6"); A("s_add_u32 s52, s52, s8")
    A("v_and_b32 v2, 7, v11"); A("v_lshlrev_b32 v2, 5, v2"); A("v_lshl_add_u32 v150, v11, 8, v2"); A("v_add_u32 v150, v150, v12")
    A("s_lshl_b32 s8, s9, 6"); A("v_xor_b32 v150, s8, v150"); A("v_xor_b32 v151, 32, v150")
    A("v_mul_u32_u24 v152, 544, v6"); A("v_lshl_add_u32 v152, v5, 4, v152"); A(f"v_add_u32 v152, {OB}, v152")
    A("v_and_b32 v3, 31, v1"); A("v_lshrrev_b32 v28, 5, v1")
    A("v_lshrrev_b32 v2, 3, v3"); A("v_lshlrev_b32 v154, 6, v2"); A("v_lshl_add_u32 v154, v12, 1, v154")
    A("v_bfe_u32 v2, v3, 2, 1"); A("v_lshl_add_u32 v154, v2, 3, v154")
    A("v_mul_u32_u24 v2, 544, v28"); A("v_add_u32 v154, v154, v2")
    A("s_mul_i32 s8, s9, 1088"); A(f"s_add_u32 s8, s8, {OB}"); A("v_add_u32 v154, s8, v154")
    A("s_lshl_b32 s8, s9, 10"); A(f"s_add_u32 s8, s8, {TB}"); A("v_add_u32 v147, s8, v29")
    A("s_lshl_b32 s62, s10, 15"); A(f"s_add_u32 s62, s62, {OP}")
    A("s_lshl_b32 s63, s10, 9"); A(f"s_add_u32 s63, s63, {LSE}")
    if diag:
        A("v_mov_b32 v161, 0"); A("v_mov_b32 v162, 0"); A("v_mov_b32 v163, 0")
    A("s_cmp_ge_u32 s3, 5"); A("s_cbranch_scc1 L_B")

    A(f"s_add_u32 s52, s52, {QP}")
    A("v_xor_b32 v2, v5, v4"); A("v_lshlrev_b32 v2, 4, v2"); A("v_lshl_add_u32 v24, v4, 8, v2")
    A("s_lshl_b32 s8, s9, 13"); A(f"s_add_u32 s8, s8, {R1}"); A("v_add_u32 v24, s8, v24")
    A("v_xor_b32 v25, 64, v24"); A("v_xor_b32 v26, 0x80, v24"); A("v_xor_b32 v27, 0xc0, v24")
    A("s_lshr_b32 s14, s13, 1"); A("s_lshl_b32 s8, s14, 13"); A(f"s_add_u32 s8, s8, {R2}")
    A("v_add_u32 v148, s8, v150"); A("v_add_u32 v149, s8, v151")
    A("s_xor_b32 s86, s14, s9"); A("s_lshl_b32 s14, s86, 3"); A("s_add_u32 s14, s14, 40")
    A("s_lshl_b32 s56, s11, 14"); A("s_lshl_b32 s8, s12, 12"); A("s_add_u32 s56, s56, s8"); A("s_lshl_b32 s8, s9, 10"); A("s_add_u32 s56, s56, s8")
    A(f"s_add_u32 s56, s56, {QP}"); A("s_add_u32 s57, s56, 0x20000"); A("s_add_u32 s58, s56, 0x40000"); A("s_add_u32 s59, s56, 0x60000")
    A("v_mul_u32_u24 v2, 288, v28"); A("v_lshl_add_u32 v30, v3, 3, v2")
    A("s_mul_i32 s8, s9, 576"); A(f"s_add_u32 s8, s8, {QB}"); A("v_add_u32 v30, s8, v30")
    A("v_mul_u32_u24 v31, 288, v6"); A("v_lshl_add_u32 v31, v5, 4, v31"); A(f"v_add_u32 v31, {QB}, v31")
    A(f"v_add_u32 v106, {PB}, v29"); A("s_lshl_b32 s8, s86, 10"); A("v_add_u32 v104, s8, v106")
    A("v_lshlrev_b32 v107, 5, v6"); A(f"v_add_u32 v107, {ST}, v107"); A("s_lshl_b32 s8, s86, 2"); A("v_add_u32 v105, s8, v107")
    A("v_lshrrev_b32 v2, 3, v4")
    A("v_lshlrev_b32 v108, 12, v6"); A("v_lshl_add_u32 v108, v5, 4, v108"); A("v_lshl_add_u32 v108, v2, 6, v108")
    A("v_lshlrev_b32 v109, 6, v6")
    A("s_lshl_b32 s8, s9, 1"); A("s_lshl_b32 s42, 3, s8"); A("s_mov_b32 s43, 0")
    A("s_lshl_b32 s8, s13, 2"); A("s_add_u32 s8, s8, s9"); A("s_lshl_b32 s8, s8, 7"); A("s_add_u32 s60, s62, s8")
    A("s_and_b32 s8, s13, 1"); A("s_lshl_b32 s8, s8, 5"); A("s_add_u32 s61, s63, s8"); A("s_lshr_b32 s8, s13, 1"); A("s_lshl_b32 s8, s8, 3"); A("s_add_u32 s61, s61, s8")
    A("s_lshl_b32 s87, s7, 2"); A("s_add_u32 s87, s87, s9"); A("s_lshl_b32 s87, s87, 10"); A(f"s_add_u32 s87, s87, {OF}")
    A("s_and_b32 s8, s6, 3"); A("s_lshl_b32 s8, s8, 7"); A("s_add_u32 s8, s8, s87"); A("s_add_u32 s54, s38, s8"); A("s_addc_u32 s55, s39, 0")
    A(f"s_mov_b32 s64, {SCALE:#x}"); A(f"s_mov_b32 s65, {L2E:#x}")
    A("s_cmp_eq_u32 s13, 7"); A("s_movk_i32 s67, 160"); A("s_cselect_b32 s67, 0x80, s67"); A("s_movk_i32 s66, 192"); A("s_cselect_b32 s66, 0x80, s66")
    A("v_mov_b32 v157, v15"); A("v_mov_b32 v159, v15"); A("v_mov_b32 v111, v15")
    A("s_lshl_b32 s8, s13, 12"); A("s_add_u32 s84, s62, s8"); A("s_lshl_b32 s8, s9, 5"); A("s_add_u32 s84, s84, s8")
    A("v_lshrrev_b32 v2, 1, v1"); A("v_lshlrev_b32 v144, 7, v2"); A("v_and_b32 v2, 1, v1"); A("v_lshl_add_u32 v144, v2, 4, v144")
    A("v_lshlrev_b32 v145, 3, v2"); A("v_lshl_add_u32 v145, v5, 1, v145")
    srd(88, 34, 16384)
    A("s_lshr_b32 s85, s7, 2"); A("s_lshl_b32 s85, s85, 11"); A("s_lshl_b32 s8, s6, 8"); A("s_add_u32 s85, s85, s8")
    A("s_and_b32 s8, s7, 3"); A("s_lshl_b32 s8, s8, 6"); A("s_add_u32 s85, s85, s8"); A("s_lshl_b32 s8, s9, 4"); A("s_add_u32 s85, s85, s8")
    xfrags()
    p1(0)
    flag(2)
    stamp(2)
    for i in range(1, 4):
        A(f"v_xor_b32 v{88+2*i}, {i<<13:#x}, v148"); A(f"v_xor_b32 v{89+2*i}, {i<<13:#x}, v149")
    if hq:
        A("s_cmp_eq_u32 s13, 7"); A(f"s_movk_i32 s8, {q_start}"); A(f"s_cselect_b32 s8, {hq}, s8"); wait_lds("v7", "s8")
    else: wait_lds("v7", q_start)
    stamp(3)
    def kpull():
        wait_lds("v7", "s14")
        for t in range(2):
            for s in range(4):
                A(f"ds_read_b128 v[{32+16*t+4*s}:{35+16*t+4*s}], v{24+s} offset:{t*4096}")
        A("s_waitcnt lgkmcnt(0)")
        flag(3)
        if not gml: get_mode()
    gather([ld4(64+4*sp, "v29", f"s{56+sp}") for sp in range(4)], cnt="v161", mid=kpull)
    stamp(4)
    sum4(64, 4, 4, 16)
    A("v_cvt_pk_bf16_f32 v20, v16, v17"); A("v_cvt_pk_bf16_f32 v21, v18, v19")
    A("ds_write_b64 v30, v[20:21]")
    flag(4)
    if gml == 2: get_mode()
    wait_lds("v8", 4)
    for s in range(4):
        A(f"ds_read_b128 v[{64+4*s}:{67+4*s}], v31 offset:{s*64}")
    for s in range(4):
        A(f"s_waitcnt lgkmcnt({3-s})")
        for t in range(2):
            c = "0" if s == 0 else f"v[{16+4*t}:{19+4*t}]"
            A(f"v_mfma_f32_16x16x32_bf16 v[{16+4*t}:{19+4*t}], v[{32+16*t+4*s}:{35+16*t+4*s}], v[{64+4*s}:{67+4*s}], {c}")
    def vreads(w0, w1):
        for w in range(w0, w1):
            for q in range(2):
                f = 112 + (w*2 + q)*4; ad = f"v{88+2*w+q}" if w else f"v{148+q}"
                A(f"ds_read_b64_tr_b16 v[{f}:{f+1}], {ad}")
                A(f"ds_read_b64_tr_b16 v[{f+2}:{f+3}], {ad} offset:4096")
    def pvmm(w0, w1):
        n = 2 * (w1 - w0)
        for w in range(w0, w1):
            for q in range(2):
                n -= 1
                f = 112 + (w*2 + q)*4; d = 32 + (w*2 + q)*4
                A(f"s_waitcnt lgkmcnt({2*n})")
                A(f"v_mfma_f32_16x16x32_bf16 v[{d}:{d+3}], v[{f}:{f+3}], v[{64+4*w}:{67+4*w}], 0")
    def pvacc(w0, w1):
        for w in range(w0, w1):
            for k in range(8):
                A(f"v_mul_f32 v{80+k}, v16, v{32+k}" if w == 0 else f"v_fmac_f32 v{80+k}, v{16+w}, v{32+8*w+k}")
    if mimic:
        for i in range(4):
            a, b = 16 + 2*i, 17 + 2*i
            A(f"v_cvt_pk_bf16_f32 v2, v{a}, v{b}")
            A(f"v_lshlrev_b32 v{a}, 16, v2"); A(f"v_and_b32 v{b}, 0xffff0000, v2")
            A(f"v_mul_f32 v{a}, s64, v{a}"); A(f"v_mul_f32 v{b}, s64, v{b}")
            A(f"v_cvt_pk_bf16_f32 v2, v{a}, v{b}")
            A(f"v_lshlrev_b32 v{a}, 16, v2"); A(f"v_and_b32 v{b}, 0xffff0000, v2")
    else:
        for i in range(8): A(f"v_mul_f32 v{16+i}, s64, v{16+i}")
    A("v_max3_f32 v2, v16, v17, v18"); A("v_max3_f32 v3, v19, v20, v21"); A("v_max3_f32 v2, v2, v22, v23"); A("v_max_f32 v2, v2, v3")
    A("v_mov_b32 v3, v2"); A("v_permlane16_swap_b32 v2, v3"); A("v_max_f32 v2, v2, v3")
    A("v_mov_b32 v3, v2"); A("v_permlane32_swap_b32 v2, v3"); A("v_max_f32 v2, v2, v3")
    A("v_mul_f32 v96, s65, v2")
    for i in range(8): A(f"v_fma_f32 v{16+i}, v{16+i}, s65, -v96")
    for i in range(8): A(f"v_exp_f32 v{16+i}, v{16+i}")
    for i in range(4): A(f"v_cvt_pk_bf16_f32 v{100+i}, v{16+2*i}, v{17+2*i}")
    A("ds_write_b128 v104, v[100:103]")
    A("ds_read_b32 v28, v7")
    A("v_add_f32 v2, v16, v17"); A("v_add_f32 v3, v18, v19"); A("v_add_f32 v2, v2, v20"); A("v_add_f32 v3, v3, v21")
    A("v_add_f32 v2, v2, v22"); A("v_add_f32 v3, v3, v23"); A("v_add_f32 v97, v2, v3")
    A("v_mov_b32 v3, v97"); A("v_permlane16_swap_b32 v97, v3"); A("v_add_f32 v97, v97, v3")
    A("v_mov_b32 v3, v97"); A("v_permlane32_swap_b32 v97, v3"); A("v_add_f32 v97, v97, v3")
    A("s_mov_b64 exec, 0xff")
    A("ds_write2_b32 v105, v96, v97 offset0:0 offset1:4")
    A("s_mov_b64 exec, -1")
    flag(5)
    stamp(5)
    def wts():
        A("v_max3_f32 v98, v16, v17, v18"); A("v_max_f32 v98, v98, v19")
        for i in range(4): A(f"v_sub_f32 v{16+i}, v{16+i}, v98")
        for i in range(4): A(f"v_exp_f32 v{16+i}, v{16+i}")
        A("v_mul_f32 v3, v16, v20")
        for i in range(1, 4): A(f"v_fmac_f32 v3, v{16+i}, v{20+i}")
        A("v_rcp_f32 v20, v3"); A("v_log_f32 v21, v3")
        for i in range(4): A(f"v_mul_f32 v{16+i}, v{16+i}, v20")
        A("v_add_f32 v110, v98, v21")
    def preads():
        for w in range(4): A(f"ds_read_b128 v[{64+4*w}:{67+4*w}], v106 offset:{w*1024}")
        A("ds_read_b128 v[16:19], v107"); A("ds_read_b128 v[20:23], v107 offset:16")
    A("s_waitcnt lgkmcnt(2)"); A("v_cmp_gt_i32 vcc, 88, v28"); A("s_cbranch_vccnz L_vlate")
    vreads(0, 3)
    if gml == 1: get_mode()
    wait_lds("v8", 5)
    preads()
    for w in range(3):
        A(f"s_waitcnt lgkmcnt({5-w})")
        for q in range(2):
            f = 112 + (w*2 + q)*4; d = 32 + (w*2 + q)*4
            A(f"v_mfma_f32_16x16x32_bf16 v[{d}:{d+3}], v[{f}:{f+3}], v[{64+4*w}:{67+4*w}], 0")
    A("s_waitcnt lgkmcnt(0)")
    A("ds_read_b32 v28, v7")
    wts()
    A("s_branch L_vdone")
    A("L_vlate:")
    if gml == 1: get_mode()
    wait_lds("v8", 5)
    preads()
    A("s_waitcnt lgkmcnt(0)")
    wts()
    wait_lds("v7", 88)
    vreads(0, 3)
    pvmm(0, 3)
    A("ds_read_b32 v28, v7")
    A("L_vdone:")
    A("s_waitcnt lgkmcnt(0)"); A("v_cmp_gt_i32 vcc, 96, v28"); A("s_cbranch_vccnz L_v3late")
    vreads(3, 4)
    pvacc(0, 3)
    A("s_branch L_v3done")
    A("L_v3late:")
    A("s_nop 3")
    pvacc(0, 3)
    wait_lds("v7", 96)
    vreads(3, 4)
    A("L_v3done:")
    pvmm(3, 4)
    pvacc(3, 4)
    A("v_cvt_pk_bf16_f32 v16, v80, v81"); A("v_cvt_pk_bf16_f32 v17, v82, v83"); A("v_cvt_pk_bf16_f32 v18, v84, v85"); A("v_cvt_pk_bf16_f32 v19, v86, v87")
    A("v_cndmask_b32 v156, v16, v18, s[50:51]"); A("v_cndmask_b32 v158, v17, v19, s[50:51]")
    if ea == 1: finish(6)
    lstore([(None, "buffer_store_dwordx4 v[156:159], v108, s[44:47], s60 offen"),
            ("s_mov_b64 exec, s[42:43]", "buffer_store_dwordx2 v[110:111], v109, s[44:47], s61 offen")])
    flag(6)
    stamp(6)
    A("s_cmp_lg_u32 s13, 7"); A("s_cbranch_scc1 L_nocomb")
    A("s_mov_b32 s86, s9")
    A("s_call_b64 s[94:95], L_comb")
    A("L_nocomb:")
    if ea == 2: finish(7)
    if ostart:
        A(f"s_min_u32 s8, s67, {ostart}"); wait_lds("v7", "s8")
    L = A.lab("P"); Ld = L + "d"; Lr = L + "r"
    A(f"{L}:")
    A("s_load_dword s16, s[54:55], 4 glc"); A("s_load_dword s17, s[54:55], 516 glc")
    A("s_waitcnt lgkmcnt(0)")
    A("s_cmp_eq_u32 s16, s40"); A(f"s_cbranch_scc0 {Lr}"); A("s_cmp_eq_u32 s17, s40"); A(f"s_cbranch_scc1 {Ld}")
    A(f"{Lr}:")
    spin_tail(L, Ld, 16)
    stamp(7)
    if ea == 3: finish(8)
    def womid():
        wait_lds("v7", "s67")
        tilefr(R0, 0, 4)
    gather([ld4(32, "v29", "s87")], mid=womid, cnt="v162")
    if ea == 4: finish(8)
    A("v_mov_b32 v33, v34")
    A("ds_write_b64 v154, v[32:33]")
    flag(7)
    stamp(8)
    wait_lds("v8", 7)
    for ks in range(4): A(f"ds_read_b128 v[{48+4*ks}:{51+4*ks}], v152 offset:{ks*64}")
    for ks in range(4):
        A(f"s_waitcnt lgkmcnt({3-ks})")
        tilemm(ks)
    for k in range(4): A(f"v_cndmask_b32 v{16+k}, v{128+k}, v{132+k}, s[50:51]")
    for k in range(4): A(f"v_mul_f32 v{16+k}, v164, v{16+k}")
    A("ds_write_b128 v147, v[16:19]")
    flag(8)
    stamp(10)
    if ea == 5: finish(8)
    A("v_xor_b32 v15, 0x80000000, v15")
    if bwait: wait_lds("v7", "s66")
    gather([ld4(100, "v144", "s84", 0, lf)], tb=104, cnt="v163")
    sum4(100, 1, 4, 64)
    A("v_permlane32_swap_b32 v64, v66"); A("v_permlane32_swap_b32 v65, v67")
    A("v_add_f32 v64, v64, v66"); A("v_add_f32 v65, v65, v67")
    A("v_permlane16_swap_b32 v64, v65"); A("v_add_f32 v64, v64, v65")
    for r in (8, 4, 2): A(f"v_add_f32_dpp v64, v64, v64 row_ror:{r} row_mask:0xf bank_mask:0xf")
    A("v_cvt_pk_bf16_f32 v64, v64, v64")
    A("s_mov_b32 exec_lo, 0x00030003"); A("s_mov_b32 exec_hi, 0x00030003")
    A("buffer_store_short v64, v145, s[88:91], s85 offen")
    A("s_add_u32 s8, s2, s9"); A("s_cmp_lg_u32 s8, 0"); A("s_cbranch_scc1 L_Aend")
    A("s_mov_b64 exec, 1")
    A("buffer_store_dword v111, v29, s[44:47], 0 offen sc1")
    A("L_Aend:")
    stamp(11)
    finish(12, ["v161", "v162", "v163"])

    A("L_B:")
    role[0] = "B"
    A("v_lshrrev_b32 v2, 1, v6"); A("v_lshlrev_b32 v153, 18, v2"); A("v_and_b32 v2, 1, v6"); A("v_lshl_add_u32 v153, v2, 14, v153")
    A("v_lshl_add_u32 v153, v5, 4, v153"); A("v_lshrrev_b32 v2, 3, v4"); A("v_lshl_add_u32 v153, v2, 6, v153")
    A("s_lshl_b32 s66, s6, 3"); A("s_add_u32 s66, s66, s9"); A("s_lshl_b32 s66, s66, 5"); A("s_add_u32 s66, s66, s7"); A("s_lshl_b32 s66, s66, 7")
    A(f"s_add_u32 s66, s66, {OP}")
    A("v_lshlrev_b32 v26, 2, v3"); A("s_lshl_b32 s67, s6, 7"); A(f"s_add_u32 s67, s67, {DT}")
    A("v_lshlrev_b32 v25, 4, v3")
    A("s_lshl_b32 s8, s9, 8"); A("v_add_u32 v146, s8, v7")
    def modecheck():
        Ln = A.lab("NM")
        A("s_cmp_lg_u32 s9, 1"); A(f"s_cbranch_scc1 {Ln}")
        wait_lds("v7", xt)
        A("s_lshl_b32 s8, s6, 9"); A(f"s_add_u32 s8, s8, {XT}")
        A("buffer_load_dword v160, v26, s[44:47], s67 offen")
        gather([ld4(96, "v25", "s8")])
        A("v_lshlrev_b32 v100, 16, v98"); A("v_and_b32 v101, 0xffff0000, v98")
        A("v_lshl_add_u32 v2, v1, 3, v7"); A("s_mov_b64 exec, 0xff"); A(f"ds_write_b64 v2, v[100:101] offset:{10*256}"); A("s_mov_b64 exec, -1")
        A("s_getreg_b32 s8, hwreg(HW_REG_XCC_ID, 0, 4)")
        A("v_xor_b32 v3, s8, v96"); A("v_or_b32 v3, v3, v112")
        A("v_cmp_ne_u32 vcc, 0, v3")
        A("s_cmp_eq_u64 vcc, 0"); A(f"s_cselect_b32 s8, {1 if force_global else 2}, 1")
        A("v_mov_b32 v3, s8"); A("v_lshl_add_u32 v2, v1, 2, v7"); A(f"ds_write_b32 v2, v3 offset:{11*256}")
        A(f"{Ln}:")
    if dpre:
        A("s_cmp_lg_u32 s9, 2"); A("s_cbranch_scc1 L_nodpre")
        wait_lds("v7", dpre)
        A("s_lshl_b32 s8, s13, 12"); A("s_add_u32 s8, s8, s62"); A("v_lshlrev_b32 v2, 3, v25"); A("s_mov_b32 exec_hi, 0")
        A("buffer_load_dword v160, v2, s[44:47], s8 offen")
        A("s_lshl_b32 s8, s13, 6"); A("s_add_u32 s8, s8, s63"); A("s_mov_b64 exec, 1")
        A("buffer_load_dword v160, v29, s[44:47], s8 offen"); A("s_mov_b64 exec, -1")
        A("L_nodpre:")
    A("s_cmp_eq_u32 s13, 7"); A("s_cbranch_scc1 L_hub")
    modecheck()
    A(f"s_add_u32 s52, s52, {HP}")
    A(f"v_add_u32 v13, {R3}, v13")
    A("s_lshr_b32 s60, s5, 1"); A("s_lshl_b32 s60, s60, 10"); A("s_and_b32 s8, s5, 1"); A("s_lshl_b32 s8, s8, 4"); A("s_add_u32 s60, s60, s8")
    A("s_lshl_b32 s8, s4, 2"); A("s_add_u32 s60, s60, s8"); A(f"s_add_u32 s60, s60, {HH}")
    A("v_lshlrev_b32 v24, 7, v1")
    A("s_sub_u32 s14, s7, s4")
    A("s_lshl_b32 s8, s14, 3"); A("s_add_u32 s8, s8, s6"); A("s_lshl_b32 s8, s8, 7"); A(f"s_add_u32 s8, s8, {HH}"); A("s_add_u32 s54, s38, s8"); A("s_addc_u32 s55, s39, 0")
    A("v_lshl_add_u32 v30, v28, 14, v25")
    A("s_lshl_b32 s56, s14, 9"); A("s_lshl_b32 s8, s9, 15"); A("s_add_u32 s56, s56, s8"); A(f"s_add_u32 s56, s56, {HP}")
    A("s_add_u32 s57, s56, 0x20000"); A("s_add_u32 s58, s56, 0x40000"); A("s_add_u32 s59, s56, 0x60000")
    A("s_mov_b32 s42, s40"); A("s_mov_b32 s43, s40")
    xfrags()
    get_mode()
    if eb == 1: finish(1)
    p1(96)
    flag(2)
    A("s_cmp_lg_u32 s9, 0"); A("s_cbranch_scc1 L_Bw1d")
    wait_lds("v8", 2, off=1024)
    A("s_mov_b64 exec, 0xff")
    A("buffer_store_dword v15, v24, s[44:47], s60 offen sc1")
    A("s_mov_b64 exec, -1")
    A("L_Bw1d:")
    stamp(2)
    if eb == 2: finish(1)
    if hpstart: wait_lds("v7", hpstart)
    L = A.lab("P"); Ld = L + "d"; Lr = L + "r"
    A(f"{L}:")
    A("s_load_dwordx8 s[84:91], s[54:55], 0 glc")
    A("s_waitcnt lgkmcnt(0)")
    for i in range(4):
        A(f"s_cmp_eq_u64 s[{84+2*i}:{85+2*i}], s[42:43]"); A(f"s_cbranch_scc0 {Lr}")
    A(f"s_branch {Ld}")
    A(f"{Lr}:")
    spin_tail(L, Ld, 16)
    stamp(3)
    if eb == 3: finish(1)
    gather([ld4(32+4*i, "v30", f"s{56+i}") for i in range(4)], cnt="v162")
    sum4(32, 4, 4, 16)
    for k in range(4): A(f"v_max_f32 v{16+k}, 0, v{16+k}")
    A("v_cvt_pk_bf16_f32 v20, v16, v17"); A("v_cvt_pk_bf16_f32 v21, v18, v19")
    A("ds_write_b64 v154, v[20:21] offset:256")
    flag(3)
    stamp(4)
    if eb == 4: finish(1)
    def bfin():
        A("ds_read_b32 v2, v7"); A("s_waitcnt lgkmcnt(0)"); A("v_readfirstlane_b32 s15, v2")
        A("s_cmp_lt_i32 s15, 184"); A("s_cbranch_scc1 L_w2no")
        tilefr(R1, 0, 3)
        A("L_w2no:")
        wait_lds("v8", 3, off=1024)
        for ks in range(4): A(f"ds_read_b128 v[{48+4*ks}:{51+4*ks}], v152 offset:{256 + ks*64}")
        A("s_cmp_ge_i32 s15, 184"); A("s_cbranch_scc1 L_w2have")
        wait_lds("v7", 184)
        tilefr(R1, 0, 3)
        A("L_w2have:")
        A("s_waitcnt lgkmcnt(0)")
        for ks in range(3): tilemm(ks)
        wait_lds("v146", 8, off=256)
        A("ds_read_b128 v[96:99], v147")
        wait_lds("v7", 192)
        stamp(5)
        tilefr(R1, 3, 4)
        A("s_waitcnt lgkmcnt(0)")
        tilemm(3)
        for k in range(4): A(f"v_cndmask_b32 v{16+k}, v{128+k}, v{132+k}, s[50:51]")
        for k in range(4): A(f"v_fmac_f32 v{96+k}, v165, v{16+k}")
    def fpub(mid):
        A("v_xor_b32 v157, 0x80000000, v15"); A("v_mov_b32 v159, v157")
        def m2():
            mid()
            A("v_cvt_pk_bf16_f32 v156, v96, v97"); A("v_cvt_pk_bf16_f32 v158, v98, v99")
        gather([((27,), "buffer_load_dword v27, v26, s[44:47], s67 offen sc1")], tb=140, mid=m2)
        lstore([(None, "buffer_store_dwordx4 v[156:159], v153, s[44:47], s66 offen")])
        stamp(6)
        finish(7, ["v161", "v162"])
    fpub(bfin)

    A("L_comb:")
    A("s_lshl_b32 s8, s86, 12"); A("s_add_u32 s56, s62, s8")
    A("s_lshl_b32 s8, s86, 6"); A("s_add_u32 s58, s63, s8")
    A("v_and_b32 v31, 32, v1")
    def cmid():
        A("s_lshl_b32 s59, s12, 3"); A("s_add_u32 s59, s59, s86"); A("s_lshl_b32 s59, s59, 3"); A("s_add_u32 s59, s59, s11"); A("s_lshl_b32 s59, s59, 9"); A(f"s_add_u32 s59, s59, {OF}")
        A("v_and_b32 v2, 31, v1"); A("v_lshrrev_b32 v30, 2, v31"); A("v_lshl_add_u32 v30, v2, 4, v30")
        A("s_lshl_b32 s60, s6, 2"); A("s_add_u32 s60, s60, s4"); A("s_lshl_b32 s60, s60, 3"); A("s_add_u32 s60, s60, s86"); A("s_lshl_b32 s60, s60, 2"); A(f"s_add_u32 s60, s60, {DT}")
        A("v_mov_b32 v101, v15")
    gather([ld4(80+4*k, "v31", "s58", k*16, lf) for k in range(2)] + [ld4(32+4*i, "v29", "s56", i*1024, lf) for i in range(4)], cnt="v167", mid=cmid)
    A("v_max3_f32 v16, v80, v82, v84"); A("v_max_f32 v16, v16, v86"); A("v_mov_b32 v17, v16")
    for i in range(4): A(f"v_lshlrev_b32 v{48+4*i}, 16, v{32+4*i}")
    A("v_permlane32_swap_b32 v16, v17"); A("v_max_f32 v16, v16, v17")
    for i in range(4): A(f"v_sub_f32 v{80+2*i}, v{80+2*i}, v16")
    for i in range(4): A(f"v_exp_f32 v{80+2*i}, v{80+2*i}")
    for i in range(4):
        A(f"v_and_b32 v{49+4*i}, 0xffff0000, v{32+4*i}"); A(f"v_lshlrev_b32 v{50+4*i}, 16, v{34+4*i}"); A(f"v_and_b32 v{51+4*i}, 0xffff0000, v{34+4*i}")
    A("v_add_f32 v16, v80, v82"); A("v_add_f32 v17, v84, v86"); A("v_add_f32 v16, v16, v17"); A("v_mov_b32 v17, v16")
    for i in range(4):
        for k in range(4):
            A(f"v_mul_f32 v{96+k}, v80, v{48+k}" if i == 0 else f"v_fmac_f32 v{96+k}, v{80+2*i}, v{48+4*i+k}")
        if i == 0:
            A("v_permlane32_swap_b32 v16, v17"); A("v_add_f32 v16, v16, v17"); A("v_rcp_f32 v16, v16")
    A("v_permlane32_swap_b32 v96, v98"); A("v_permlane32_swap_b32 v97, v99")
    A("v_add_f32 v96, v96, v98"); A("v_add_f32 v97, v97, v99")
    A("v_mul_f32 v96, v96, v16"); A("v_mul_f32 v97, v97, v16")
    A("v_cvt_pk_bf16_f32 v100, v96, v97")
    A("buffer_store_dwordx2 v[100:101], v30, s[44:47], s59 offen sc1")
    lstore([("s_mov_b64 exec, 1", "buffer_store_dword v15, v29, s[44:47], s60 offen")])
    A("s_setpc_b64 s[94:95]")
    A("L_hub:")
    role[0] = "H"
    modecheck()
    if opre:
        wait_lds("v7", opre)
        if opf: wait_lds("v8", opf)
        A("s_lshl_b32 s8, s9, 13"); A("s_add_u32 s56, s62, s8"); A("s_lshl_b32 s8, s9, 7"); A("s_add_u32 s58, s63, s8")
        A("v_lshlrev_b32 v2, 7, v1")
        A("buffer_load_dword v160, v2, s[44:47], s56 offen"); A("s_mov_b64 exec, 1"); A("buffer_load_dword v160, v29, s[44:47], s58 offen"); A("s_mov_b64 exec, -1")
    get_mode()
    wait_lds("v8", 6 if hflag == 1 else 5)
    stamp(3)
    A("s_add_u32 s86, s9, 4")
    if diag: A("v_mov_b32 v167, 0")
    A("s_call_b64 s[94:95], L_comb")
    if diag: A("v_mov_b32 v162, v167")
    stamp(5)
    wait_lds("v146", 8, off=256)
    def hfin():
        A("ds_read_b128 v[96:99], v147"); A("s_waitcnt lgkmcnt(0)")
    fpub(hfin)
    A("L_codeend:")

    body = A.render().replace(' nt lds', f' {sf} lds')
    out = HEADER
    out += f"; @launch grid=(256,1,1) block=(576,1,1) lds={LDS_BYTES}\n"
    out += '.amdgcn_target "amdgcn-amd-amdhsa--gfx950"\n.text\n'
    out += f".globl {NAME}\n.p2align 8\n.type {NAME},@function\n"
    out += body
    out += f""".section .rodata,"a"
.p2align 6
.amdhsa_kernel {NAME}
  .amdhsa_next_free_vgpr 168
  .amdhsa_next_free_sgpr 102
  .amdhsa_accum_offset 168
  .amdhsa_group_segment_fixed_size 0
  .amdhsa_kernarg_size 96
  .amdhsa_user_sgpr_count 2
  .amdhsa_user_sgpr_kernarg_segment_ptr 1
  .amdhsa_system_sgpr_workgroup_id_x 1
  .amdhsa_float_denorm_mode_32 3
.end_amdhsa_kernel
"""
    return out

if __name__ == "__main__":
    import json
    kw = json.loads(sys.argv[2]) if len(sys.argv) > 2 else {}
    open(sys.argv[1], "w").write(gen(**kw))
```

```python
import sys
sys.path.insert(0, "work")
from asmlib import Asm

NAME = "gated_mix__sliding_block_cached__dense_activation_relu__decode_kernel"
HEADER = open("gated_mix__sliding_block_cached__dense_activation_relu__decode.s.ref").read().split("; Override launch")[0]

XT = 0x1000
DT = 0x3000
LSE = 0x4000
HH = 0x8000
OF = 0x40000
QP = 0x80000
HP = 0x100000
OP = 0x180000
WS_USED = 0x280000
DIAG = 0x500000
R0, R1, R2, R3, M = 0x0, 0x8000, 0x10000, 0x18000, 0x20000
XS = M
QB = M + 0x1000
OB = M + 0x1A00
PB = M + 0x2C00
TB = M + 0x3C00
ST = M + 0x4C00
FL = M + 0x5000
LDS_BYTES = M + 0x6000
TAGK = 0x9E3779B1
SPIN_LIMIT = 400000
L2E = 0x3FB8AA3B
SCALE = 0x3DB504F3

def gen(D=20, D2=0, Dh=0, diag=False, mimic=True, q_start=64, force_global=False, xt=72, hstart=96, opre=0, dpre=64, ostart=0, hpstart=0, hwo=0, hflag=1, prof=None, amp=0, elim=0, bwait=1, wr=1, gml=3, lf='sc1', ls='', hq=0, opf=3, Dhw=32, ea=99, eb=99, eh=99, sf='nt'):
    A = Asm()
    D2 = D2 or D
    R = lambda d: (d + 3) // 4 * 4
    SP = [68, 70, 72, 74, 76, 78, 80, 82, 92, 100, 32, 36]
    role = ["A"]
    def stamp(i):
        if diag: A(f"s_memrealtime s[{SP[i]}:{SP[i]+1}]")
        if prof and prof == f"{role[0]}{i}": A("s_memrealtime s[68:69]")
        if amp and i == 0: A("s_memrealtime s[74:75]")
    def finish(n, extra=()):
        if prof and prof[0] == role[0]:
            L = A.lab("PR")
            A("s_waitcnt lgkmcnt(0)"); A("s_sub_u32 s72, s68, s74"); A(f"s_mul_i32 s72, s72, {amp}"); A("s_add_u32 s68, s74, s72")
            A(f"{L}:"); A("s_memrealtime s[70:71]"); A("s_waitcnt lgkmcnt(0)"); A("s_sub_u32 s72, s70, s68"); A("s_cmp_lt_i32 s72, 2000"); A(f"s_cbranch_scc1 {L}")
        if diag:
            A("s_waitcnt lgkmcnt(0)")
            A("s_mov_b64 exec, -1")
            A("v_mov_b32 v3, 0")
            for i in range(n): A(f"v_writelane_b32 v3, s{SP[i]}, {i}")
            for k, r in enumerate(extra):
                A(f"v_readfirstlane_b32 s60, {r}"); A(f"v_writelane_b32 v3, s60, {12+k}")
            A("s_lshl_b32 s60, s3, 6"); A(f"s_add_u32 s60, s60, {FL + 0xC00}"); A("v_lshl_add_u32 v2, v1, 2, s60")
            A("s_mov_b64 exec, 0xffff")
            A("ds_write_b32 v2, v3")
            A("s_mov_b64 exec, -1")
            if role[0] != "L":
                A("v_mov_b32 v2, 63"); A("ds_write_b32 v9, v2")
        if not (diag and role[0] == "L"): A("s_endpgm")
    def spin_tail(L, Ld, inc=1):
        A(f"s_add_u32 s41, s41, {inc}"); A(f"s_cmp_lt_u32 s41, {SPIN_LIMIT}"); A(f"s_cbranch_scc1 {L}"); A(f"{Ld}:")
    def wait_lds(vaddr, th, vt="v2", off=0):
        L = A.lab("W"); Ld = L + "d"
        A(f"{L}:")
        A(f"ds_read_b32 {vt}, {vaddr}" + (f" offset:{off}" if off else ""))
        A("s_waitcnt lgkmcnt(0)")
        A(f"v_cmp_gt_i32 vcc, {th}, {vt}")
        A(f"s_cbranch_vccz {Ld}")
        spin_tail(L, Ld)
    def wait_read(vaddr, th, reads, off=0):
        L = A.lab("WR"); Ld = L + "d"
        A(f"{L}:")
        A(f"ds_read_b32 v2, {vaddr}" + (f" offset:{off}" if off else ""))
        for t in reads: A(t)
        A(f"s_waitcnt lgkmcnt({len(reads)})")
        A(f"v_cmp_gt_i32 vcc, {th}, v2"); A(f"s_cbranch_vccz {Ld}")
        spin_tail(L, Ld)
    def cap(fn, *a):
        n = len(A.items); fn(*a); t = [x.text for x in A.items[n:]]; del A.items[n:]; return t
    def wait_then(vaddr, th, reads, off=0):
        if wr: wait_read(vaddr, th, reads, off)
        else:
            wait_lds(vaddr, th, off=off)
            for t in reads: A(t)
    def srd(d, b, size):
        A(f"s_mov_b32 s{d}, s{b}"); A(f"s_mov_b32 s{d+1}, s{b+1}"); A(f"s_mov_b32 s{d+2}, {size:#x}"); A(f"s_mov_b32 s{d+3}, 0x20000")
    WSZ = 0x800000 if diag else WS_USED

    A(f"{NAME}:")
    A("s_load_dwordx16 s[16:31], s[0:1], 0")
    A("v_readfirstlane_b32 s3, v0")
    A("s_cmp_ge_u32 s2, 256")
    A("s_cbranch_scc1 L_exit")
    stamp(0)
    A("s_lshr_b32 s4, s2, 6")
    A("s_and_b32 s5, s2, 63")
    A("s_lshr_b32 s3, s3, 6")
    A("s_cbranch_scc1 L_stub")
    role[0] = "L"
    A("v_lshrrev_b32 v13, 3, v0"); A("v_and_b32 v2, 6, v13"); A("v_and_b32 v3, 7, v0"); A("v_xor_b32 v3, v3, v2"); A("v_lshlrev_b32 v12, 4, v3")
    A("v_lshl_add_u32 v5, v13, 13, v12")
    A("s_lshl_b32 s10, s5, 7"); A("s_lshl_b32 s9, s4, 21"); A("s_add_u32 s9, s9, s10")
    A("s_mov_b32 s50, 0x800000"); A("s_mov_b32 s51, 0x20000"); A("s_mov_b32 s11, 0xfc00"); A("s_mov_b32 m0, 0")
    A("s_setprio 3")
    A("s_waitcnt lgkmcnt(0)")
    A("s_mov_b64 s[48:49], s[22:23]")
    A("L_burst:")
    for u in range(4):
        A(f"buffer_load_dwordx4 v5, s[48:51], s9 offen offset:{u*1024} nt lds")
        A("s_add_u32 s9, s9, s11")
    A("s_addk_i32 s9, 0x1000"); A("s_add_u32 m0, m0, 0x1000"); A("s_bitcmp0_b32 m0, 15"); A("s_cbranch_scc1 L_burst")
    A("s_branch L_loader")

    A("L_stub:")
    A("s_load_dwordx8 s[32:39], s[0:1], 64")
    A("s_getpc_b64 s[54:55]")
    A("L_pc:")
    A("v_subrev_u32 v2, 64, v0"); A("v_lshlrev_b32 v2, 7, v2"); A("v_min_u32 v2, L_codeend-L_pc-4, v2")
    A("global_load_dword v160, v2, s[54:55]")
    A("v_and_b32 v1, 63, v0")
    A("s_mov_b32 s41, 0"); A("s_and_b32 s6, s2, 7"); A("s_lshr_b32 s7, s2, 3")
    A("v_mov_b32 v3, 0")
    A(f"v_lshlrev_b32 v9, 2, v0"); A(f"v_add_u32 v9, {FL}, v9")
    A(f"v_lshlrev_b32 v2, 2, v1"); A(f"v_add_u32 v2, {FL}, v2")
    A("ds_write_b32 v9, v3"); A("ds_write_b32 v2, v3"); A(f"ds_write_b32 v2, v3 offset:{11*256}")
    A("v_lshrrev_b32 v3, 5, v0"); A("v_subrev_u32 v3, 2, v3")
    A("v_and_b32 v2, 31, v1"); A("v_xor_b32 v2, v2, v3"); A("v_lshlrev_b32 v2, 4, v2"); A("v_lshl_add_u32 v2, v3, 11, v2")
    A("s_lshl_b32 s8, s4, 9"); A("v_add_u32 v2, s8, v2")
    A("s_lshl_b32 s8, s3, 10"); A(f"s_add_u32 m0, s8, {XS - 1024}")
    A("s_waitcnt lgkmcnt(0)")
    A("s_load_dword s40, s[38:39], 0")
    A("s_cmp_gt_u32 s3, 4"); A("s_cbranch_scc1 L_nx")
    A("global_load_lds_dwordx4 v2, s[16:17]")
    A("L_nx:")
    A("s_cmp_lg_u32 s3, 5"); A("s_cbranch_scc1 L_ng5")
    A("s_and_b32 s8, s7, 7"); A("s_lshl_b32 s8, s8, 11"); A("v_lshlrev_b32 v2, 5, v1"); A("v_add_u32 v3, s8, v2")
    A("global_load_dwordx4 v[96:99], v3, s[16:17]"); A("global_load_dwordx4 v[100:103], v3, s[16:17] offset:16")
    A("global_load_dwordx4 v[104:107], v2, s[32:33]"); A("global_load_dwordx4 v[108:111], v2, s[32:33] offset:16")
    A("L_ng5:")
    A("s_barrier")
    if elim == 1: A("s_endpgm")
    A("s_waitcnt vmcnt(0) lgkmcnt(0)")
    A("v_mov_b32 v2, 1"); A("ds_write_b32 v9, v2")
    A("s_branch L_notloader")

    def kvcall():
        if Dh:
            La = A.lab("KV")
            A("s_cmp_eq_u32 s12, 7"); A(f"s_cbranch_scc1 {La}h"); A("s_call_b64 s[52:53], L_loopx"); A(f"s_branch {La}e")
            A(f"{La}h:"); A("s_call_b64 s[52:53], L_looph"); A(f"{La}e:")
        else: A("s_call_b64 s[52:53], L_loopx")
    A("L_loader:")
    if diag: A("s_load_dwordx8 s[32:39], s[0:1], 64")
    A("v_mov_b32 v1, v0"); A("s_mov_b32 s41, 0"); A("s_and_b32 s6, s2, 7"); A("s_lshr_b32 s7, s2, 3")
    A("v_lshrrev_b32 v14, 4, v1"); A("v_and_b32 v15, 15, v1")
    A("v_xor_b32 v2, v15, v14"); A("v_lshlrev_b32 v2, 4, v2"); A("v_lshl_add_u32 v5, v14, 8, v2")
    A("v_xor_b32 v6, 64, v5"); A("v_xor_b32 v7, 0x80, v5"); A("v_xor_b32 v8, 64, v7")
    A("v_lshlrev_b32 v9, 1, v14"); A("v_xor_b32 v9, v15, v9"); A("v_lshlrev_b32 v9, 4, v9")
    A(f"v_mov_b32 v29, {FL}"); A("v_lshl_add_u32 v10, v1, 2, v29"); A("v_and_b32 v2, 3, v1"); A("v_mul_u32_u24 v2, 0x104, v2"); A("v_add_u32 v29, v2, v29")
    A(f"s_mul_i32 s42, s4, {256*7168}"); A("s_add_u32 s42, s42, s10")
    A("s_and_b32 s15, s7, 24"); A("s_add_u32 s15, s15, s6"); A("s_lshl_b32 s15, s15, 5"); A("s_and_b32 s12, s7, 7"); A("s_add_u32 s15, s15, s12")
    A("s_add_u32 s15, s15, 24"); A("s_lshl_b32 s15, s15, 15"); A("s_lshl_b32 s14, s12, 12")
    A("s_mov_b64 s[48:49], s[18:19]"); A("s_mov_b32 s50, 0x2000000"); A("s_mov_b32 s9, s15"); A("s_mov_b32 s13, 8"); A(f"s_mov_b32 s10, {R1}")
    A(f"s_mov_b32 s43, {32 + 4 - R(D)}")
    if Dh:
        A("s_cmp_eq_u32 s12, 7"); A(f"s_cselect_b32 s43, {32 + 4 - R(Dh)}, s43")
    A("s_barrier")
    stamp(6)
    kvcall()
    stamp(7)
    A("v_lshl_add_u32 v5, v14, 8, v9"); A("v_xor_b32 v6, 0x80, v5"); A("v_mov_b32 v7, v5"); A("v_mov_b32 v8, v6")
    A("s_mov_b64 s[48:49], s[20:21]"); A("s_mov_b32 s9, s15"); A("s_mov_b32 s13, 8")
    kvcall()
    stamp(3)
    A("s_cmp_eq_u32 s12, 7"); A("s_cbranch_scc1 L_now1")
    A("v_mul_u32_u24 v5, 0x1c00, v13"); A("v_add_u32 v5, v5, v12"); A("v_mov_b32 v6, v5")
    A(f"s_mov_b32 m0, {R3}"); A("s_mov_b32 s50, 0x700000")
    A("s_mov_b64 s[48:49], s[28:29]"); A("s_mov_b32 s9, s42"); A(f"s_mov_b32 s11, {8*7168-1024}"); A("s_mov_b32 s13, 8")
    A("s_call_b64 s[52:53], L_loop")
    A("L_now1:")
    stamp(1)
    A("v_lshl_add_u32 v5, v14, 11, v9"); A("v_xor_b32 v6, 0x80, v5")
    A("s_mov_b64 s[48:49], s[24:25]"); A("s_mov_b32 s50, 0x800000")
    A("s_lshl_b32 s9, s7, 10"); A("s_add_u32 s9, s9, s6"); A("s_lshl_b32 s9, s9, 8")
    A("s_movk_i32 s11, 0x1c00"); A("s_mov_b32 s13, 8"); A("s_mov_b32 m0, 0")
    if not elim: wait_lds("v29", 2, off=256)
    A("s_cmp_eq_u32 s12, 7"); A("s_cbranch_scc0 L_wonorm")
    DW = Dhw or Dh or D
    if DW != (Dh or D): A(f"s_add_i32 s43, s43, {R(Dh or D) - R(DW)}")
    A(f"s_call_b64 s[52:53], {'L_loop3' if DW != D else 'L_loop'}")
    if DW > 32: A("s_waitcnt vmcnt(32)"); A("v_mov_b32 v11, 96"); A("ds_write_b32 v10, v11")
    A(f"s_add_i32 s43, s43, {R(DW) - R(D2)}")
    A("s_branch L_now2")
    A("L_wonorm:")
    A("s_call_b64 s[52:53], L_loop")
    if D2 != D: A(f"s_add_i32 s43, s43, {R(D) - R(D2)}")
    A("s_mov_b64 s[48:49], s[30:31]"); A("s_mov_b32 s50, 0x700000")
    A("s_sub_u32 s9, s7, s4"); A("s_lshl_b32 s9, s9, 10"); A("s_add_u32 s9, s9, s6"); A("s_lshl_b32 s9, s9, 8"); A("s_mov_b32 s13, 8")
    if not elim: wait_lds("v29", 3, off=256)
    A(f"s_call_b64 s[52:53], {'L_loop2' if D2 != D else 'L_loop'}")
    A("L_now2:")
    prev = R(D2) - 4
    for k in (8, 0):
        A(f"s_waitcnt vmcnt({k})")
        A(f"s_add_i32 s43, s43, {prev - k}")
        prev = k
        A("v_mov_b32 v11, s43"); A("ds_write_b32 v10, v11")
    stamp(2)
    if diag or prof: A("s_branch L_ldend")
    A("L_exit:")
    A("s_endpgm")
    for lab, Dd in (("L_loopx", D), ("L_looph", Dh)):
        if not Dd: continue
        A(f"{lab}:")
        A("s_xor_b32 m0, s10, s14"); A("s_xor_b32 s8, s9, s14")
        for u in range(4):
            A(f"s_waitcnt vmcnt({Dd-1})")
            if u == (Dd - 1) % 4:
                A("v_mov_b32 v11, s43"); A("ds_write_b32 v10, v11")
            A(f"buffer_load_dwordx4 v{5+u}, s[48:51], s8 offen offset:{u*1024} nt lds")
        A("s_addk_i32 s9, 0x1000"); A("s_addk_i32 s10, 0x1000"); A("s_add_i32 s43, s43, 4")
        A("s_sub_u32 s13, s13, 1"); A("s_cmp_lg_u32 s13, 0"); A(f"s_cbranch_scc1 {lab}")
        A("s_setpc_b64 s[52:53]")
    for lab, Dd in (("L_loop", D), ("L_loop2", D2), ("L_loop3", DW if DW != D else 0)):
        if lab == "L_loop2" and D2 == D: continue
        if not Dd: continue
        A(f"{lab}:")
        for u in range(4):
            A(f"s_waitcnt vmcnt({Dd-1})")
            if u == (Dd - 1) % 4:
                A("v_mov_b32 v11, s43"); A("ds_write_b32 v10, v11")
            A(f"buffer_load_dwordx4 v{5+(u&1)}, s[48:51], s9 offen offset:{u*1024} nt lds")
            A("s_add_u32 s9, s9, s11")
        A("s_addk_i32 s9, 0x1000"); A("s_add_u32 m0, m0, 0x1000"); A("s_add_i32 s43, s43, 4")
        A("s_sub_u32 s13, s13, 1"); A("s_cmp_lg_u32 s13, 0"); A(f"s_cbranch_scc1 {lab}")
        A("s_setpc_b64 s[52:53]")
    if diag or prof:
        A("L_ldend:")
        finish(8)
    if diag:
        A("v_and_b32 v2, 7, v1"); A("v_mul_u32_u24 v2, 0x104, v2"); A(f"v_add_u32 v29, {FL}, v2")
        if not elim: wait_lds("v29", 63, off=256)
        srd(44, 38, WSZ)
        A("v_lshlrev_b32 v2, 4, v1"); A(f"v_add_u32 v3, {FL + 0xC00}, v2")
        A("ds_read_b128 v[16:19], v3"); A("s_waitcnt lgkmcnt(0)")
        A("s_lshl_b32 s60, s2, 10"); A(f"s_add_u32 s60, s60, {DIAG}")
        A("s_mov_b32 exec_hi, 0xf")
        A("buffer_store_dwordx4 v[16:19], v2, s[44:47], s60 offen")
        A("s_endpgm")

    def flag(stage):
        A(f"v_mov_b32 v2, {stage}"); A("ds_write_b32 v9, v2")
    def gather(loads, tb=112, mid=None, cnt=None):
        N = len(loads)
        mreg = lambda i: 16 + 2*i if i < 8 else 84 + 2*(i - 8)
        L = A.lab("G"); Ld = L + "d"; Lc = L + "c"
        for tg, t in loads: A(t)
        if mid: mid()
        A(f"{Lc}:")
        if diag and cnt: A(f"v_add_u32 {cnt}, 1, {cnt}")
        A("s_waitcnt vmcnt(0)")
        for i, (tg, t) in enumerate(loads):
            A(f"v_xor_b32 v{tb+i}, v{tg[0]}, v15")
            for r in tg[1:]: A(f"v_bitop3_b32 v{tb+i}, v{tb+i}, v{r}, v15 bitop3:0xf6")
        if N == 1: A(f"v_cmp_ne_u32 vcc, 0, v{tb}")
        else:
            A(f"v_or_b32 v2, v{tb}, v{tb+1}")
            for i in range(2, N, 2): A(f"v_or3_b32 v2, v2, v{tb+i}, v{tb+i+1}")
            A("v_cmp_ne_u32 vcc, 0, v2")
        A(f"s_cbranch_vccz {Ld}")
        A("s_add_u32 s41, s41, 16"); A(f"s_cmp_ge_u32 s41, {SPIN_LIMIT}"); A(f"s_cbranch_scc1 {Ld}")
        if N == 1:
            A("s_mov_b64 exec, vcc"); A(loads[0][1])
        else:
            for i in range(N): A(f"v_cmp_ne_u32 s[{mreg(i)}:{mreg(i)+1}], 0, v{tb+i}")
            for i, (tg, t) in enumerate(loads):
                sk = A.lab("S")
                A(f"s_mov_b64 exec, s[{mreg(i)}:{mreg(i)+1}]"); A(f"s_cbranch_execz {sk}"); A(t); A(f"{sk}:")
        A("s_mov_b64 exec, -1")
        A(f"s_branch {Lc}")
        A(f"{Ld}:")
    def ld4(d, va, so, off=0, fl="sc1"):
        return ((d+1, d+3), f"buffer_load_dwordx4 v[{d}:{d+3}], {va}, s[44:47], {so} offen" + (f" offset:{off}" if off else "") + " " + fl)
    def sum4(base, n, stride, out):
        for k, off in enumerate((0, 2)):
            for i in range(n):
                r = base + stride * i + off
                if i == 0:
                    A(f"v_lshlrev_b32 v{out+2*k}, 16, v{r}"); A(f"v_and_b32 v{out+2*k+1}, 0xffff0000, v{r}")
                else:
                    A(f"v_lshlrev_b32 v2, 16, v{r}"); A(f"v_and_b32 v3, 0xffff0000, v{r}")
                    A(f"v_add_f32 v{out+2*k}, v{out+2*k}, v2"); A(f"v_add_f32 v{out+2*k+1}, v{out+2*k+1}, v3")
    def lstore(texts):
        Lg = A.lab("F"); Le = Lg + "e"
        A("s_cmp_eq_u32 s53, 2"); A(f"s_cbranch_scc0 {Lg}")
        for ex, t in texts:
            if ex: A(ex)
            A(t + " " + ls)
        A(f"s_branch {Le}")
        A(f"{Lg}:")
        for ex, t in texts:
            if ex: A(ex)
            A(t + " sc1")
        A(f"{Le}:")
        if any(ex for ex, t in texts): A("s_mov_b64 exec, -1")
    def get_mode():
        wait_lds("v7", 1, off=11*256)
        A("v_readfirstlane_b32 s53, v2")
        A("v_lshl_add_u32 v3, v6, 3, v7"); A(f"ds_read_b64 v[164:165], v3 offset:{10*256}")
    def xfrags():
        wait_lds("v166", 1)
        for var in range(4):
            if var: A(f"v_xor_b32 v3, {var*32}, v10")
            for kk in range(4):
                ks = kk*2 + (var >> 1); hh = var & 1
                A(f"ds_read_b64 v[{32+4*ks+2*hh}:{33+4*ks+2*hh}], {'v3' if var else 'v10'} offset:{kk*128}")
    def p1(base):
        for (k0, k1) in ((0, 6), (6, 8)):
            rd = []
            for ks in range(k0, k1):
                rd += [f"ds_read_b64_tr_b16 v[{64+4*ks}:{65+4*ks}], v13 offset:{ks*4096}", f"ds_read_b64_tr_b16 v[{66+4*ks}:{67+4*ks}], v13 offset:{ks*4096 + 2048}"]
            if k1 == 8: wait_then("v7", base + 4*k1, rd); stamp(1)
            else:
                wait_lds("v7", base + 4*k1)
                for t in rd: A(t)
            for ks in range(k0, k1):
                A(f"s_waitcnt lgkmcnt({2*(k1 - 1 - ks)})")
                c = "0" if ks == 0 else "v[16:19]"
                A(f"v_mfma_f32_16x16x32_bf16 v[16:19], v[{64+4*ks}:{67+4*ks}], v[{32+4*ks}:{35+4*ks}], {c}")
        A("v_cvt_pk_bf16_f32 v20, v16, v17"); A("v_cvt_pk_bf16_f32 v22, v18, v19")
        A("s_mov_b64 exec, s[48:49]")
        A("buffer_store_dwordx4 v[20:23], v14, s[44:47], s52 offen sc1")
        A("s_mov_b64 exec, -1")
    def tilefr(region, k0, k1):
        for ks in range(k0, k1):
            for q in range(2):
                f = 64 + (ks*2 + q)*4
                A(f"ds_read_b64_tr_b16 v[{f}:{f+1}], v{150+q} offset:{region + ks*8192}")
                A(f"ds_read_b64_tr_b16 v[{f+2}:{f+3}], v{150+q} offset:{region + ks*8192 + 4096}")
    def tilemm(ks):
        for q in range(2):
            f = 64 + (ks*2 + q)*4
            c = "0" if ks == 0 else f"v[{128+4*q}:{131+4*q}]"
            A(f"v_mfma_f32_16x16x32_bf16 v[{128+4*q}:{131+4*q}], v[{f}:{f+3}], v[{48+4*ks}:{51+4*ks}], {c}")

    A("L_notloader:")
    role[0] = "A"
    srd(44, 38, WSZ)
    A(f"s_add_u32 s40, s40, {TAGK:#x}")
    A("v_mov_b32 v15, s40"); A("v_mov_b32 v21, s40"); A("v_mov_b32 v23, s40")
    A("v_and_b32 v4, 15, v1"); A("v_lshrrev_b32 v5, 4, v1"); A("v_and_b32 v6, 7, v1")
    A("v_lshlrev_b32 v29, 4, v1")
    A("s_cmp_lg_u32 s3, 5"); A("s_cbranch_scc1 L_nogate")
    A("v_mov_b32 v16, 0"); A("v_mov_b32 v17, 0")
    for i in range(8):
        x, gw = 96 + i, 104 + i
        A(f"v_lshlrev_b32 v18, 16, v{x}"); A(f"v_and_b32 v19, 0xffff0000, v{x}")
        A(f"v_lshlrev_b32 v24, 16, v{gw}"); A(f"v_and_b32 v25, 0xffff0000, v{gw}")
        A("v_mul_f32 v18, v18, v24"); A("v_mul_f32 v19, v19, v25")
        A("v_cvt_pk_bf16_f32 v18, v18, v19")
        A("v_and_b32 v19, 0xffff0000, v18"); A("v_lshlrev_b32 v18, 16, v18")
        A("v_add_f32 v16, v16, v18"); A("v_add_f32 v17, v17, v19")
    A("v_add_f32 v16, v16, v17")
    for r in (1, 2, 4, 8): A(f"v_add_f32_dpp v16, v16, v16 row_ror:{r} row_mask:0xf bank_mask:0xf")
    for sw in ("v_permlane16_swap_b32", "v_permlane32_swap_b32"):
        A("v_mov_b32 v17, v16"); A(f"{sw} v16, v17"); A("v_add_f32 v16, v16, v17")
    A("v_cvt_pk_bf16_f32 v16, v16, v16"); A("v_lshlrev_b32 v16, 16, v16")
    A(f"v_mul_f32 v16, {0xBFB8AA3B:#x}, v16"); A("v_exp_f32 v16, v16"); A("v_add_f32 v16, 1.0, v16"); A("v_rcp_f32 v16, v16")
    A("v_cvt_pk_bf16_f32 v16, v16, v16"); A("v_lshlrev_b32 v16, 16, v16")
    A("v_sub_f32 v17, 1.0, v16"); A("v_cvt_pk_bf16_f32 v22, v16, v17")
    A("s_getreg_b32 s8, hwreg(HW_REG_XCC_ID, 0, 4)")
    A("v_mov_b32 v20, s8")
    A("s_lshl_b32 s8, s6, 5"); A("s_add_u32 s8, s8, s7"); A("s_lshl_b32 s8, s8, 4"); A(f"s_add_u32 s8, s8, {XT}")
    A("s_mov_b64 exec, 1")
    A("buffer_store_dwordx4 v[20:23], v29, s[44:47], s8 offen sc1")
    A("s_mov_b64 exec, -1")
    A("L_nogate:")
    if prof == "B9": A("s_memrealtime s[68:69]")
    A(f"v_mov_b32 v7, {FL}")
    A("v_and_b32 v2, 3, v1"); A("v_mul_u32_u24 v2, 0x104, v2"); A(f"v_add_u32 v8, {FL+256}, v2")
    A("v_mul_u32_u24 v2, 0x104, v6"); A(f"v_add_u32 v166, {FL+256}, v2")
    A("v_lshrrev_b32 v2, 1, v5"); A("v_xor_b32 v2, v2, v6"); A("v_lshlrev_b32 v2, 4, v2"); A("v_lshl_add_u32 v10, v6, 9, v2")
    A("v_and_b32 v2, 1, v5"); A("v_lshl_add_u32 v10, v2, 3, v10"); A(f"v_add_u32 v10, {XS}, v10")
    A("v_lshrrev_b32 v11, 2, v1")
    A("v_and_b32 v12, 3, v1"); A("v_lshlrev_b32 v12, 3, v12")
    A("s_mov_b32 s48, 0x00ff00ff"); A("s_mov_b32 s49, 0x00ff00ff")
    A("s_mov_b32 s50, 0xff00ff00"); A("s_mov_b32 s51, 0xff00ff00")
    A("s_sub_u32 s9, s3, 1"); A("s_and_b32 s9, s9, 3")
    A("s_and_b32 s10, s7, 24"); A("s_add_u32 s10, s10, s6")
    A("s_lshr_b32 s11, s10, 2"); A("s_and_b32 s12, s10, 3"); A("s_and_b32 s13, s7, 7")
    A("v_lshrrev_b32 v2, 1, v11"); A("v_and_b32 v2, 3, v2"); A("v_xor_b32 v2, s9, v2"); A("v_lshlrev_b32 v2, 5, v2")
    A("v_lshl_add_u32 v13, v11, 7, v2"); A("v_add_u32 v13, v13, v12")
    A("v_lshlrev_b32 v14, 14, v6"); A("v_lshl_add_u32 v14, v5, 4, v14")
    A("s_lshl_b32 s52, s4, 17"); A("s_lshl_b32 s8, s5, 8"); A("s_add_u32 s52, s52, s8"); A("s_lshl_b32 s8, s9, 6"); A("s_add_u32 s52, s52, s8")
    A("v_and_b32 v2, 7, v11"); A("v_lshlrev_b32 v2, 5, v2"); A("v_lshl_add_u32 v150, v11, 8, v2"); A("v_add_u32 v150, v150, v12")
    A("s_lshl_b32 s8, s9, 6"); A("v_xor_b32 v150, s8, v150"); A("v_xor_b32 v151, 32, v150")
    A("v_mul_u32_u24 v152, 544, v6"); A("v_lshl_add_u32 v152, v5, 4, v152"); A(f"v_add_u32 v152, {OB}, v152")
    A("v_and_b32 v3, 31, v1"); A("v_lshrrev_b32 v28, 5, v1")
    A("v_lshrrev_b32 v2, 3, v3"); A("v_lshlrev_b32 v154, 6, v2"); A("v_lshl_add_u32 v154, v12, 1, v154")
    A("v_bfe_u32 v2, v3, 2, 1"); A("v_lshl_add_u32 v154, v2, 3, v154")
    A("v_mul_u32_u24 v2, 544, v28"); A("v_add_u32 v154, v154, v2")
    A("s_mul_i32 s8, s9, 1088"); A(f"s_add_u32 s8, s8, {OB}"); A("v_add_u32 v154, s8, v154")
    A("s_lshl_b32 s8, s9, 10"); A(f"s_add_u32 s8, s8, {TB}"); A("v_add_u32 v147, s8, v29")
    A("s_lshl_b32 s62, s10, 15"); A(f"s_add_u32 s62, s62, {OP}")
    A("s_lshl_b32 s63, s10, 9"); A(f"s_add_u32 s63, s63, {LSE}")
    if diag:
        A("v_mov_b32 v161, 0"); A("v_mov_b32 v162, 0"); A("v_mov_b32 v163, 0")
    A("s_cmp_ge_u32 s3, 5"); A("s_cbranch_scc1 L_B")

    A(f"s_add_u32 s52, s52, {QP}")
    A("v_xor_b32 v2, v5, v4"); A("v_lshlrev_b32 v2, 4, v2"); A("v_lshl_add_u32 v24, v4, 8, v2")
    A("s_lshl_b32 s8, s9, 13"); A(f"s_add_u32 s8, s8, {R1}"); A("v_add_u32 v24, s8, v24")
    A("v_xor_b32 v25, 64, v24"); A("v_xor_b32 v26, 0x80, v24"); A("v_xor_b32 v27, 0xc0, v24")
    A("s_lshr_b32 s14, s13, 1"); A("s_lshl_b32 s8, s14, 13"); A(f"s_add_u32 s8, s8, {R2}")
    A("v_add_u32 v148, s8, v150"); A("v_add_u32 v149, s8, v151")
    A("s_xor_b32 s86, s14, s9"); A("s_lshl_b32 s14, s86, 3"); A("s_add_u32 s14, s14, 40")
    A("s_lshl_b32 s56, s11, 14"); A("s_lshl_b32 s8, s12, 12"); A("s_add_u32 s56, s56, s8"); A("s_lshl_b32 s8, s9, 10"); A("s_add_u32 s56, s56, s8")
    A(f"s_add_u32 s56, s56, {QP}"); A("s_add_u32 s57, s56, 0x20000"); A("s_add_u32 s58, s56, 0x40000"); A("s_add_u32 s59, s56, 0x60000")
    A("v_mul_u32_u24 v2, 288, v28"); A("v_lshl_add_u32 v30, v3, 3, v2")
    A("s_mul_i32 s8, s9, 576"); A(f"s_add_u32 s8, s8, {QB}"); A("v_add_u32 v30, s8, v30")
    A("v_mul_u32_u24 v31, 288, v6"); A("v_lshl_add_u32 v31, v5, 4, v31"); A(f"v_add_u32 v31, {QB}, v31")
    A(f"v_add_u32 v106, {PB}, v29"); A("s_lshl_b32 s8, s86, 10"); A("v_add_u32 v104, s8, v106")
    A("v_lshlrev_b32 v107, 5, v6"); A(f"v_add_u32 v107, {ST}, v107"); A("s_lshl_b32 s8, s86, 2"); A("v_add_u32 v105, s8, v107")
    A("v_lshrrev_b32 v2, 3, v4")
    A("v_lshlrev_b32 v108, 12, v6"); A("v_lshl_add_u32 v108, v5, 4, v108"); A("v_lshl_add_u32 v108, v2, 6, v108")
    A("v_lshlrev_b32 v109, 6, v6")
    A("s_lshl_b32 s8, s9, 1"); A("s_lshl_b32 s42, 3, s8"); A("s_mov_b32 s43, 0")
    A("s_lshl_b32 s8, s13, 2"); A("s_add_u32 s8, s8, s9"); A("s_lshl_b32 s8, s8, 7"); A("s_add_u32 s60, s62, s8")
    A("s_and_b32 s8, s13, 1"); A("s_lshl_b32 s8, s8, 5"); A("s_add_u32 s61, s63, s8"); A("s_lshr_b32 s8, s13, 1"); A("s_lshl_b32 s8, s8, 3"); A("s_add_u32 s61, s61, s8")
    A("s_lshl_b32 s87, s7, 2"); A("s_add_u32 s87, s87, s9"); A("s_lshl_b32 s87, s87, 10"); A(f"s_add_u32 s87, s87, {OF}")
    A("s_and_b32 s8, s6, 3"); A("s_lshl_b32 s8, s8, 7"); A("s_add_u32 s8, s8, s87"); A("s_add_u32 s54, s38, s8"); A("s_addc_u32 s55, s39, 0")
    A(f"s_mov_b32 s64, {SCALE:#x}"); A(f"s_mov_b32 s65, {L2E:#x}")
    A("s_cmp_eq_u32 s13, 7"); A("s_movk_i32 s67, 160"); A("s_cselect_b32 s67, 0x80, s67"); A("s_movk_i32 s66, 192"); A("s_cselect_b32 s66, 0x80, s66")
    A("v_mov_b32 v157, v15"); A("v_mov_b32 v159, v15"); A("v_mov_b32 v111, v15")
    A("v_lshl_add_u32 v153, v6, 3, v7")
    A("s_lshl_b32 s8, s13, 12"); A("s_add_u32 s84, s62, s8"); A("s_lshl_b32 s8, s9, 5"); A("s_add_u32 s84, s84, s8")
    A("v_lshrrev_b32 v2, 1, v1"); A("v_lshlrev_b32 v144, 7, v2"); A("v_and_b32 v2, 1, v1"); A("v_lshl_add_u32 v144, v2, 4, v144")
    A("v_lshlrev_b32 v145, 3, v2"); A("v_lshl_add_u32 v145, v5, 1, v145")
    srd(88, 34, 16384)
    A("s_lshr_b32 s85, s7, 2"); A("s_lshl_b32 s85, s85, 11"); A("s_lshl_b32 s8, s6, 8"); A("s_add_u32 s85, s85, s8")
    A("s_and_b32 s8, s7, 3"); A("s_lshl_b32 s8, s8, 6"); A("s_add_u32 s85, s85, s8"); A("s_lshl_b32 s8, s9, 4"); A("s_add_u32 s85, s85, s8")
    xfrags()
    p1(0)
    flag(2)
    stamp(2)
    for i in range(1, 4):
        A(f"v_xor_b32 v{88+2*i}, {i<<13:#x}, v148"); A(f"v_xor_b32 v{89+2*i}, {i<<13:#x}, v149")
    if hq:
        A("s_cmp_eq_u32 s13, 7"); A(f"s_movk_i32 s8, {q_start}"); A(f"s_cselect_b32 s8, {hq}, s8"); wait_lds("v7", "s8")
    else: wait_lds("v7", q_start)
    stamp(3)
    def kpull():
        wait_lds("v7", "s14")
        for t in range(2):
            for s in range(4):
                A(f"ds_read_b128 v[{32+16*t+4*s}:{35+16*t+4*s}], v{24+s} offset:{t*4096}")
        A("s_waitcnt lgkmcnt(0)")
        flag(3)
        if not gml: get_mode()
    gather([ld4(64+4*sp, "v29", f"s{56+sp}") for sp in range(4)], cnt="v161", mid=kpull)
    stamp(4)
    sum4(64, 4, 4, 16)
    A("v_cvt_pk_bf16_f32 v20, v16, v17"); A("v_cvt_pk_bf16_f32 v21, v18, v19")
    A("ds_write_b64 v30, v[20:21]")
    flag(4)
    if gml == 2: get_mode()
    wait_then("v8", 4, [f"ds_read_b128 v[{64+4*s}:{67+4*s}], v31 offset:{s*64}" for s in range(4)])
    for s in range(4):
        A(f"s_waitcnt lgkmcnt({3-s})")
        for t in range(2):
            c = "0" if s == 0 else f"v[{16+4*t}:{19+4*t}]"
            A(f"v_mfma_f32_16x16x32_bf16 v[{16+4*t}:{19+4*t}], v[{32+16*t+4*s}:{35+16*t+4*s}], v[{64+4*s}:{67+4*s}], {c}")
    def vreads(w0, w1):
        for w in range(w0, w1):
            for q in range(2):
                f = 112 + (w*2 + q)*4; ad = f"v{88+2*w+q}" if w else f"v{148+q}"
                A(f"ds_read_b64_tr_b16 v[{f}:{f+1}], {ad}")
                A(f"ds_read_b64_tr_b16 v[{f+2}:{f+3}], {ad} offset:4096")
    def pvmm(w0, w1):
        n = 2 * (w1 - w0)
        for w in range(w0, w1):
            for q in range(2):
                n -= 1
                f = 112 + (w*2 + q)*4; d = 32 + (w*2 + q)*4
                A(f"s_waitcnt lgkmcnt({2*n})")
                A(f"v_mfma_f32_16x16x32_bf16 v[{d}:{d+3}], v[{f}:{f+3}], v[{64+4*w}:{67+4*w}], 0")
    def pvacc(w0, w1):
        for w in range(w0, w1):
            for k in range(8):
                A(f"v_mul_f32 v{80+k}, v16, v{32+k}" if w == 0 else f"v_fmac_f32 v{80+k}, v{16+w}, v{32+8*w+k}")
    if mimic:
        for i in range(4):
            a, b = 16 + 2*i, 17 + 2*i
            A(f"v_cvt_pk_bf16_f32 v2, v{a}, v{b}")
            A(f"v_lshlrev_b32 v{a}, 16, v2"); A(f"v_and_b32 v{b}, 0xffff0000, v2")
            A(f"v_mul_f32 v{a}, s64, v{a}"); A(f"v_mul_f32 v{b}, s64, v{b}")
            A(f"v_cvt_pk_bf16_f32 v2, v{a}, v{b}")
            A(f"v_lshlrev_b32 v{a}, 16, v2"); A(f"v_and_b32 v{b}, 0xffff0000, v2")
    else:
        for i in range(8): A(f"v_mul_f32 v{16+i}, s64, v{16+i}")
    A("v_max3_f32 v2, v16, v17, v18"); A("v_max3_f32 v3, v19, v20, v21"); A("v_max3_f32 v2, v2, v22, v23"); A("v_max_f32 v2, v2, v3")
    A("v_mov_b32 v3, v2"); A("v_permlane16_swap_b32 v2, v3"); A("v_max_f32 v2, v2, v3")
    A("v_mov_b32 v3, v2"); A("v_permlane32_swap_b32 v2, v3"); A("v_max_f32 v2, v2, v3")
    A("v_mul_f32 v96, s65, v2")
    for i in range(8): A(f"v_fma_f32 v{16+i}, v{16+i}, s65, -v96")
    for i in range(8): A(f"v_exp_f32 v{16+i}, v{16+i}")
    for i in range(4): A(f"v_cvt_pk_bf16_f32 v{100+i}, v{16+2*i}, v{17+2*i}")
    A("ds_write_b128 v104, v[100:103]")
    A("ds_read_b32 v28, v7")
    if gml == 3:
        A(f"ds_read_b32 v155, v7 offset:{11*256}"); A(f"ds_read_b64 v[164:165], v153 offset:{10*256}")
    A("v_add_f32 v2, v16, v17"); A("v_add_f32 v3, v18, v19"); A("v_add_f32 v2, v2, v20"); A("v_add_f32 v3, v3, v21")
    A("v_add_f32 v2, v2, v22"); A("v_add_f32 v3, v3, v23"); A("v_add_f32 v97, v2, v3")
    A("v_mov_b32 v3, v97"); A("v_permlane16_swap_b32 v97, v3"); A("v_add_f32 v97, v97, v3")
    A("v_mov_b32 v3, v97"); A("v_permlane32_swap_b32 v97, v3"); A("v_add_f32 v97, v97, v3")
    A("s_mov_b64 exec, 0xff")
    A("ds_write2_b32 v105, v96, v97 offset0:0 offset1:4")
    A("s_mov_b64 exec, -1")
    flag(5)
    stamp(5)
    def wts():
        A("v_max3_f32 v98, v16, v17, v18"); A("v_max_f32 v98, v98, v19")
        for i in range(4): A(f"v_sub_f32 v{16+i}, v{16+i}, v98")
        for i in range(4): A(f"v_exp_f32 v{16+i}, v{16+i}")
        A("v_mul_f32 v3, v16, v20")
        for i in range(1, 4): A(f"v_fmac_f32 v3, v{16+i}, v{20+i}")
        A("v_rcp_f32 v20, v3"); A("v_log_f32 v21, v3")
        for i in range(4): A(f"v_mul_f32 v{16+i}, v{16+i}, v20")
        A("v_add_f32 v110, v98, v21")
    def preads():
        for w in range(4): A(f"ds_read_b128 v[{64+4*w}:{67+4*w}], v106 offset:{w*1024}")
        A("ds_read_b128 v[16:19], v107"); A("ds_read_b128 v[20:23], v107 offset:16")
    A("s_waitcnt lgkmcnt(2)"); A("v_cmp_gt_i32 vcc, 88, v28"); A("s_cbranch_vccnz L_vlate")
    vreads(0, 3)
    if gml == 1: get_mode()
    wait_then("v8", 5, cap(preads))
    for w in range(3):
        A(f"s_waitcnt lgkmcnt({5-w})")
        for q in range(2):
            f = 112 + (w*2 + q)*4; d = 32 + (w*2 + q)*4
            A(f"v_mfma_f32_16x16x32_bf16 v[{d}:{d+3}], v[{f}:{f+3}], v[{64+4*w}:{67+4*w}], 0")
    A("s_waitcnt lgkmcnt(0)")
    A("ds_read_b32 v28, v7")
    wts()
    A("s_branch L_vdone")
    A("L_vlate:")
    if gml == 1: get_mode()
    wait_then("v8", 5, cap(preads))
    A("s_waitcnt lgkmcnt(0)")
    wts()
    wait_lds("v7", 88)
    vreads(0, 3)
    pvmm(0, 3)
    A("ds_read_b32 v28, v7")
    A("L_vdone:")
    A("s_waitcnt lgkmcnt(0)"); A("v_cmp_gt_i32 vcc, 96, v28"); A("s_cbranch_vccnz L_v3late")
    vreads(3, 4)
    pvacc(0, 3)
    A("s_branch L_v3done")
    A("L_v3late:")
    A("s_nop 3")
    pvacc(0, 3)
    wait_then("v7", 96, cap(vreads, 3, 4))
    A("L_v3done:")
    if gml == 3: A("v_readfirstlane_b32 s53, v155")
    pvmm(3, 4)
    pvacc(3, 4)
    A("v_cvt_pk_bf16_f32 v16, v80, v81"); A("v_cvt_pk_bf16_f32 v17, v82, v83"); A("v_cvt_pk_bf16_f32 v18, v84, v85"); A("v_cvt_pk_bf16_f32 v19, v86, v87")
    A("v_cndmask_b32 v156, v16, v18, s[50:51]"); A("v_cndmask_b32 v158, v17, v19, s[50:51]")
    if gml == 3:
        A("s_cmp_lg_u32 s53, 0"); A("s_cbranch_scc1 L_mok")
        get_mode()
        A("L_mok:")
    if ea == 1: finish(6)
    lstore([(None, "buffer_store_dwordx4 v[156:159], v108, s[44:47], s60 offen"),
            ("s_mov_b64 exec, s[42:43]", "buffer_store_dwordx2 v[110:111], v109, s[44:47], s61 offen")])
    flag(6)
    stamp(6)
    A("s_cmp_lg_u32 s13, 7"); A("s_cbranch_scc1 L_nocomb")
    A("s_mov_b32 s86, s9")
    A("s_call_b64 s[94:95], L_comb")
    A("L_nocomb:")
    if ea == 2: finish(7)
    if ostart:
        A(f"s_min_u32 s8, s67, {ostart}"); wait_lds("v7", "s8")
    L = A.lab("P"); Ld = L + "d"; Lr = L + "r"
    A(f"{L}:")
    A("s_load_dword s16, s[54:55], 4 glc"); A("s_load_dword s17, s[54:55], 516 glc")
    A("s_waitcnt lgkmcnt(0)")
    A("s_cmp_eq_u32 s16, s40"); A(f"s_cbranch_scc0 {Lr}"); A("s_cmp_eq_u32 s17, s40"); A(f"s_cbranch_scc1 {Ld}")
    A(f"{Lr}:")
    spin_tail(L, Ld, 16)
    stamp(7)
    if ea == 3: finish(8)
    def womid():
        wait_lds("v7", "s67")
        tilefr(R0, 0, 4)
    gather([ld4(32, "v29", "s87")], mid=womid, cnt="v162")
    if ea == 4: finish(8)
    A("v_mov_b32 v33, v34")
    A("ds_write_b64 v154, v[32:33]")
    flag(7)
    stamp(8)
    wait_read("v8", 7, [f"ds_read_b128 v[{48+4*ks}:{51+4*ks}], v152 offset:{ks*64}" for ks in range(4)])
    for ks in range(4):
        A(f"s_waitcnt lgkmcnt({3-ks})")
        tilemm(ks)
    for k in range(4): A(f"v_cndmask_b32 v{16+k}, v{128+k}, v{132+k}, s[50:51]")
    for k in range(4): A(f"v_mul_f32 v{16+k}, v164, v{16+k}")
    A("ds_write_b128 v147, v[16:19]")
    flag(8)
    stamp(10)
    if ea == 5: finish(8)
    A("v_xor_b32 v15, 0x80000000, v15")
    if bwait: wait_lds("v7", "s66")
    gather([ld4(100, "v144", "s84", 0, lf)], tb=104, cnt="v163")
    sum4(100, 1, 4, 64)
    A("v_permlane32_swap_b32 v64, v66"); A("v_permlane32_swap_b32 v65, v67")
    A("v_add_f32 v64, v64, v66"); A("v_add_f32 v65, v65, v67")
    A("v_permlane16_swap_b32 v64, v65"); A("v_add_f32 v64, v64, v65")
    for r in (8, 4, 2): A(f"v_add_f32_dpp v64, v64, v64 row_ror:{r} row_mask:0xf bank_mask:0xf")
    A("v_cvt_pk_bf16_f32 v64, v64, v64")
    A("s_mov_b32 exec_lo, 0x00030003"); A("s_mov_b32 exec_hi, 0x00030003")
    A("buffer_store_short v64, v145, s[88:91], s85 offen")
    A("s_add_u32 s8, s2, s9"); A("s_cmp_lg_u32 s8, 0"); A("s_cbranch_scc1 L_Aend")
    A("s_mov_b64 exec, 1")
    A("buffer_store_dword v111, v29, s[44:47], 0 offen sc1")
    A("L_Aend:")
    stamp(11)
    finish(12, ["v161", "v162", "v163"])

    A("L_B:")
    role[0] = "B"
    A("v_lshrrev_b32 v2, 1, v6"); A("v_lshlrev_b32 v153, 18, v2"); A("v_and_b32 v2, 1, v6"); A("v_lshl_add_u32 v153, v2, 14, v153")
    A("v_lshl_add_u32 v153, v5, 4, v153"); A("v_lshrrev_b32 v2, 3, v4"); A("v_lshl_add_u32 v153, v2, 6, v153")
    A("s_lshl_b32 s66, s6, 3"); A("s_add_u32 s66, s66, s9"); A("s_lshl_b32 s66, s66, 5"); A("s_add_u32 s66, s66, s7"); A("s_lshl_b32 s66, s66, 7")
    A(f"s_add_u32 s66, s66, {OP}")
    A("v_lshlrev_b32 v26, 2, v3"); A("s_lshl_b32 s67, s6, 7"); A(f"s_add_u32 s67, s67, {DT}")
    A("v_lshlrev_b32 v25, 4, v3")
    A("s_lshl_b32 s8, s9, 8"); A("v_add_u32 v146, s8, v7")
    def modecheck():
        Ln = A.lab("NM")
        A("s_cmp_lg_u32 s9, 1"); A(f"s_cbranch_scc1 {Ln}")
        wait_lds("v7", xt)
        A("s_lshl_b32 s8, s6, 9"); A(f"s_add_u32 s8, s8, {XT}")
        A("buffer_load_dword v160, v26, s[44:47], s67 offen")
        gather([ld4(96, "v25", "s8")])
        A("v_lshlrev_b32 v100, 16, v98"); A("v_and_b32 v101, 0xffff0000, v98")
        A("v_lshl_add_u32 v2, v1, 3, v7"); A("s_mov_b64 exec, 0xff"); A(f"ds_write_b64 v2, v[100:101] offset:{10*256}"); A("s_mov_b64 exec, -1")
        A("s_getreg_b32 s8, hwreg(HW_REG_XCC_ID, 0, 4)")
        A("v_xor_b32 v3, s8, v96"); A("v_or_b32 v3, v3, v112")
        A("v_cmp_ne_u32 vcc, 0, v3")
        A("s_cmp_eq_u64 vcc, 0"); A(f"s_cselect_b32 s8, {1 if force_global else 2}, 1")
        A("v_mov_b32 v3, s8"); A("v_lshl_add_u32 v2, v1, 2, v7"); A(f"ds_write_b32 v2, v3 offset:{11*256}")
        A(f"{Ln}:")
    if dpre:
        A("s_cmp_lg_u32 s9, 2"); A("s_cbranch_scc1 L_nodpre")
        wait_lds("v7", dpre)
        A("s_lshl_b32 s8, s13, 12"); A("s_add_u32 s8, s8, s62"); A("v_lshlrev_b32 v2, 3, v25"); A("s_mov_b32 exec_hi, 0")
        A("buffer_load_dword v160, v2, s[44:47], s8 offen")
        A("s_lshl_b32 s8, s13, 6"); A("s_add_u32 s8, s8, s63"); A("s_mov_b64 exec, 1")
        A("buffer_load_dword v160, v29, s[44:47], s8 offen"); A("s_mov_b64 exec, -1")
        A("L_nodpre:")
    A("s_cmp_eq_u32 s13, 7"); A("s_cbranch_scc1 L_hub")
    modecheck()
    A(f"s_add_u32 s52, s52, {HP}")
    A(f"v_add_u32 v13, {R3}, v13")
    A("s_lshr_b32 s60, s5, 1"); A("s_lshl_b32 s60, s60, 10"); A("s_and_b32 s8, s5, 1"); A("s_lshl_b32 s8, s8, 4"); A("s_add_u32 s60, s60, s8")
    A("s_lshl_b32 s8, s4, 2"); A("s_add_u32 s60, s60, s8"); A(f"s_add_u32 s60, s60, {HH}")
    A("v_lshlrev_b32 v24, 7, v1")
    A("s_sub_u32 s14, s7, s4")
    A("s_lshl_b32 s8, s14, 3"); A("s_add_u32 s8, s8, s6"); A("s_lshl_b32 s8, s8, 7"); A(f"s_add_u32 s8, s8, {HH}"); A("s_add_u32 s54, s38, s8"); A("s_addc_u32 s55, s39, 0")
    A("v_lshl_add_u32 v30, v28, 14, v25")
    A("s_lshl_b32 s56, s14, 9"); A("s_lshl_b32 s8, s9, 15"); A("s_add_u32 s56, s56, s8"); A(f"s_add_u32 s56, s56, {HP}")
    A("s_add_u32 s57, s56, 0x20000"); A("s_add_u32 s58, s56, 0x40000"); A("s_add_u32 s59, s56, 0x60000")
    A("s_mov_b32 s42, s40"); A("s_mov_b32 s43, s40")
    xfrags()
    get_mode()
    if eb == 1: finish(1)
    p1(96)
    flag(2)
    A("s_cmp_lg_u32 s9, 0"); A("s_cbranch_scc1 L_Bw1d")
    wait_lds("v8", 2, off=1024)
    A("s_mov_b64 exec, 0xff")
    A("buffer_store_dword v15, v24, s[44:47], s60 offen sc1")
    A("s_mov_b64 exec, -1")
    A("L_Bw1d:")
    stamp(2)
    if eb == 2: finish(1)
    if hpstart: wait_lds("v7", hpstart)
    L = A.lab("P"); Ld = L + "d"; Lr = L + "r"
    A(f"{L}:")
    A("s_load_dwordx8 s[84:91], s[54:55], 0 glc")
    A("s_waitcnt lgkmcnt(0)")
    for i in range(4):
        A(f"s_cmp_eq_u64 s[{84+2*i}:{85+2*i}], s[42:43]"); A(f"s_cbranch_scc0 {Lr}")
    A(f"s_branch {Ld}")
    A(f"{Lr}:")
    spin_tail(L, Ld, 16)
    stamp(3)
    if eb == 3: finish(1)
    gather([ld4(32+4*i, "v30", f"s{56+i}") for i in range(4)], cnt="v162")
    sum4(32, 4, 4, 16)
    for k in range(4): A(f"v_max_f32 v{16+k}, 0, v{16+k}")
    A("v_cvt_pk_bf16_f32 v20, v16, v17"); A("v_cvt_pk_bf16_f32 v21, v18, v19")
    A("ds_write_b64 v154, v[20:21] offset:256")
    flag(3)
    stamp(4)
    if eb == 4: finish(1)
    def bfin():
        A("ds_read_b32 v2, v7"); A("s_waitcnt lgkmcnt(0)"); A("v_readfirstlane_b32 s15, v2")
        A("s_cmp_lt_i32 s15, 184"); A("s_cbranch_scc1 L_w2no")
        tilefr(R1, 0, 3)
        A("L_w2no:")
        wait_then("v8", 3, [f"ds_read_b128 v[{48+4*ks}:{51+4*ks}], v152 offset:{256 + ks*64}" for ks in range(4)], off=1024)
        A("s_cmp_ge_i32 s15, 184"); A("s_cbranch_scc1 L_w2have")
        wait_lds("v7", 184)
        tilefr(R1, 0, 3)
        A("L_w2have:")
        A("s_waitcnt lgkmcnt(0)")
        for ks in range(3): tilemm(ks)
        wait_then("v7", 192, cap(tilefr, R1, 3, 4))
        stamp(5)
        A("ds_read_b32 v3, v146 offset:256"); A("ds_read_b128 v[96:99], v147")
        A("s_waitcnt lgkmcnt(2)")
        tilemm(3)
        A("s_waitcnt lgkmcnt(0)")
        A("v_cmp_gt_i32 vcc, 8, v3")
        for k in range(4): A(f"v_cndmask_b32 v{16+k}, v{128+k}, v{132+k}, s[50:51]")
        A("s_cbranch_vccz L_tok")
        A("L_tw:")
        A("ds_read_b32 v3, v146 offset:256"); A("ds_read_b128 v[96:99], v147")
        A("s_waitcnt lgkmcnt(0)")
        A("v_cmp_gt_i32 vcc, 8, v3"); A("s_cbranch_vccz L_tok")
        spin_tail("L_tw", "L_tok")
        for k in range(4): A(f"v_fmac_f32 v{96+k}, v165, v{16+k}")
    def fpub(mid):
        A("v_xor_b32 v157, 0x80000000, v15"); A("v_mov_b32 v159, v157")
        def m2():
            mid()
            A("v_cvt_pk_bf16_f32 v156, v96, v97"); A("v_cvt_pk_bf16_f32 v158, v98, v99")
        gather([((27,), "buffer_load_dword v27, v26, s[44:47], s67 offen sc1")], tb=140, mid=m2)
        lstore([(None, "buffer_store_dwordx4 v[156:159], v153, s[44:47], s66 offen")])
        stamp(6)
        finish(7, ["v161", "v162"])
    fpub(bfin)

    A("L_comb:")
    A("s_lshl_b32 s8, s86, 12"); A("s_add_u32 s56, s62, s8")
    A("s_lshl_b32 s8, s86, 6"); A("s_add_u32 s58, s63, s8")
    A("v_and_b32 v31, 32, v1")
    def cmid():
        A("s_lshl_b32 s59, s12, 3"); A("s_add_u32 s59, s59, s86"); A("s_lshl_b32 s59, s59, 3"); A("s_add_u32 s59, s59, s11"); A("s_lshl_b32 s59, s59, 9"); A(f"s_add_u32 s59, s59, {OF}")
        A("v_and_b32 v2, 31, v1"); A("v_lshrrev_b32 v30, 2, v31"); A("v_lshl_add_u32 v30, v2, 4, v30")
        A("s_lshl_b32 s60, s6, 2"); A("s_add_u32 s60, s60, s4"); A("s_lshl_b32 s60, s60, 3"); A("s_add_u32 s60, s60, s86"); A("s_lshl_b32 s60, s60, 2"); A(f"s_add_u32 s60, s60, {DT}")
        A("v_mov_b32 v101, v15")
    gather([ld4(80+4*k, "v31", "s58", k*16, lf) for k in range(2)] + [ld4(32+4*i, "v29", "s56", i*1024, lf) for i in range(4)], cnt="v167", mid=cmid)
    A("v_max3_f32 v16, v80, v82, v84"); A("v_max_f32 v16, v16, v86"); A("v_mov_b32 v17, v16")
    for i in range(4): A(f"v_lshlrev_b32 v{48+4*i}, 16, v{32+4*i}")
    A("v_permlane32_swap_b32 v16, v17"); A("v_max_f32 v16, v16, v17")
    for i in range(4): A(f"v_sub_f32 v{80+2*i}, v{80+2*i}, v16")
    for i in range(4): A(f"v_exp_f32 v{80+2*i}, v{80+2*i}")
    for i in range(4):
        A(f"v_and_b32 v{49+4*i}, 0xffff0000, v{32+4*i}"); A(f"v_lshlrev_b32 v{50+4*i}, 16, v{34+4*i}"); A(f"v_and_b32 v{51+4*i}, 0xffff0000, v{34+4*i}")
    A("v_add_f32 v16, v80, v82"); A("v_add_f32 v17, v84, v86"); A("v_add_f32 v16, v16, v17"); A("v_mov_b32 v17, v16")
    for i in range(4):
        for k in range(4):
            A(f"v_mul_f32 v{96+k}, v80, v{48+k}" if i == 0 else f"v_fmac_f32 v{96+k}, v{80+2*i}, v{48+4*i+k}")
        if i == 0:
            A("v_permlane32_swap_b32 v16, v17"); A("v_add_f32 v16, v16, v17"); A("v_rcp_f32 v16, v16")
    A("v_permlane32_swap_b32 v96, v98"); A("v_permlane32_swap_b32 v97, v99")
    A("v_add_f32 v96, v96, v98"); A("v_add_f32 v97, v97, v99")
    A("v_mul_f32 v96, v96, v16"); A("v_mul_f32 v97, v97, v16")
    A("v_cvt_pk_bf16_f32 v100, v96, v97")
    A("buffer_store_dwordx2 v[100:101], v30, s[44:47], s59 offen sc1")
    lstore([("s_mov_b64 exec, 1", "buffer_store_dword v15, v29, s[44:47], s60 offen")])
    A("s_setpc_b64 s[94:95]")
    A("L_hub:")
    role[0] = "H"
    modecheck()
    if opre:
        wait_lds("v7", opre)
        if opf: wait_lds("v8", opf)
        A("s_lshl_b32 s8, s9, 13"); A("s_add_u32 s56, s62, s8"); A("s_lshl_b32 s8, s9, 7"); A("s_add_u32 s58, s63, s8")
        A("v_lshlrev_b32 v2, 7, v1")
        A("buffer_load_dword v160, v2, s[44:47], s56 offen"); A("s_mov_b64 exec, 1"); A("buffer_load_dword v160, v29, s[44:47], s58 offen"); A("s_mov_b64 exec, -1")
    get_mode()
    wait_lds("v8", 6 if hflag == 1 else 5)
    stamp(3)
    A("s_add_u32 s86, s9, 4")
    if diag: A("v_mov_b32 v167, 0")
    A("s_call_b64 s[94:95], L_comb")
    if diag: A("v_mov_b32 v162, v167")
    stamp(5)
    wait_lds("v146", 8, off=256)
    def hfin():
        A("ds_read_b128 v[96:99], v147"); A("s_waitcnt lgkmcnt(0)")
    fpub(hfin)
    A("L_codeend:")

    body = A.render().replace(' nt lds', f' {sf} lds')
    out = HEADER
    out += f"; @launch grid=(256,1,1) block=(576,1,1) lds={LDS_BYTES}\n"
    out += '.amdgcn_target "amdgcn-amd-amdhsa--gfx950"\n.text\n'
    out += f".globl {NAME}\n.p2align 8\n.type {NAME},@function\n"
    out += body
    out += f""".section .rodata,"a"
.p2align 6
.amdhsa_kernel {NAME}
  .amdhsa_next_free_vgpr 168
  .amdhsa_next_free_sgpr 102
  .amdhsa_accum_offset 168
  .amdhsa_group_segment_fixed_size 0
  .amdhsa_kernarg_size 96
  .amdhsa_user_sgpr_count 2
  .amdhsa_user_sgpr_kernarg_segment_ptr 1
  .amdhsa_system_sgpr_workgroup_id_x 1
  .amdhsa_float_denorm_mode_32 3
.end_amdhsa_kernel
"""
    return out

if __name__ == "__main__":
    import json
    kw = json.loads(sys.argv[2]) if len(sys.argv) > 2 else {}
    open(sys.argv[1], "w").write(gen(**kw))
```

```python
import sys
sys.path.insert(0, "work")
from asmlib import Asm

NAME = "gated_mix__sliding_block_cached__dense_activation_relu__decode_kernel"
HEADER = open("gated_mix__sliding_block_cached__dense_activation_relu__decode.s.ref").read().split("; Override launch")[0]

DOC = """; ---------------------------------------------------------------------------------------------
; Hand-offs between workgroups go through d_ws as 8-byte {data, tag} granules. The tag is derived from
; ---------------------------------------------------------------------------------------------
"""
XT = 0x1000
DT = 0x3000
LSE = 0x4000
HH = 0x8000
OF = 0x40000
QP = 0x80000
HP = 0x100000
OP = 0x180000
WS_USED = 0x280000
DIAG = 0x500000
R0, R1, R2, R3, M = 0x0, 0x8000, 0x10000, 0x18000, 0x20000
XS = M
QB = M + 0x1000
OB = M + 0x1A00
PB = M + 0x2C00
TB = M + 0x3C00
ST = M + 0x4C00
FL = M + 0x5000
LDS_BYTES = M + 0x6000
TAGK = 0x9E3779B1
SPIN_LIMIT = 400000
L2E = 0x3FB8AA3B
SCALE = 0x3DB504F3

def gen(D=20, D2=0, Dh=0, diag=False, mimic=True, q_start=64, force_global=False, xt=72, hstart=96, opre=0, dpre=64, ostart=0, hpstart=0, hwo=0, hflag=1, prof=None, amp=0, elim=0, bwait=1, wr=1, gml=3, lf='sc1', ls='', hq=0, opf=3, Dhw=32, ea=99, eb=99, eh=99, sf='nt'):
    A = Asm()
    D2 = D2 or D
    R = lambda d: (d + 3) // 4 * 4
    SP = [68, 70, 72, 74, 76, 78, 80, 82, 92, 100, 32, 36]
    role = ["A"]
    def stamp(i):
        if diag: A(f"s_memrealtime s[{SP[i]}:{SP[i]+1}]")
        if prof and prof == f"{role[0]}{i}": A("s_memrealtime s[68:69]")
        if amp and i == 0: A("s_memrealtime s[74:75]")
    def finish(n, extra=()):
        if prof and prof[0] == role[0]:
            L = A.lab("PR")
            A("s_waitcnt lgkmcnt(0)"); A("s_sub_u32 s72, s68, s74"); A(f"s_mul_i32 s72, s72, {amp}"); A("s_add_u32 s68, s74, s72")
            A(f"{L}:"); A("s_memrealtime s[70:71]"); A("s_waitcnt lgkmcnt(0)"); A("s_sub_u32 s72, s70, s68"); A("s_cmp_lt_i32 s72, 2000"); A(f"s_cbranch_scc1 {L}")
        if diag:
            A("s_waitcnt lgkmcnt(0)")
            A("s_mov_b64 exec, -1")
            A("v_mov_b32 v3, 0")
            for i in range(n): A(f"v_writelane_b32 v3, s{SP[i]}, {i}")
            for k, r in enumerate(extra):
                A(f"v_readfirstlane_b32 s60, {r}"); A(f"v_writelane_b32 v3, s60, {12+k}")
            A("s_lshl_b32 s60, s3, 6"); A(f"s_add_u32 s60, s60, {FL + 0xC00}"); A("v_lshl_add_u32 v2, v1, 2, s60")
            A("s_mov_b64 exec, 0xffff")
            A("ds_write_b32 v2, v3")
            A("s_mov_b64 exec, -1")
            if role[0] != "L":
                A("v_mov_b32 v2, 63"); A("ds_write_b32 v9, v2")
        if not (diag and role[0] == "L"): A("s_endpgm")
    def spin_tail(L, Ld, inc=1):
        A(f"s_add_u32 s41, s41, {inc}"); A(f"s_cmp_lt_u32 s41, {SPIN_LIMIT}"); A(f"s_cbranch_scc1 {L}"); A(f"{Ld}:")
    def wait_lds(vaddr, th, vt="v2", off=0):
        L = A.lab("W"); Ld = L + "d"
        A(f"{L}:")
        A(f"ds_read_b32 {vt}, {vaddr}" + (f" offset:{off}" if off else ""))
        A("s_waitcnt lgkmcnt(0)")
        A(f"v_cmp_gt_i32 vcc, {th}, {vt}")
        A(f"s_cbranch_vccz {Ld}")
        spin_tail(L, Ld)
    def wait_read(vaddr, th, reads, off=0):
        L = A.lab("WR"); Ld = L + "d"
        A(f"{L}:")
        A(f"ds_read_b32 v2, {vaddr}" + (f" offset:{off}" if off else ""))
        for t in reads: A(t)
        A(f"s_waitcnt lgkmcnt({len(reads)})")
        A(f"v_cmp_gt_i32 vcc, {th}, v2"); A(f"s_cbranch_vccz {Ld}")
        spin_tail(L, Ld)
    def cap(fn, *a):
        n = len(A.items); fn(*a); t = [x.text for x in A.items[n:]]; del A.items[n:]; return t
    def wait_then(vaddr, th, reads, off=0):
        if wr: wait_read(vaddr, th, reads, off)
        else:
            wait_lds(vaddr, th, off=off)
            for t in reads: A(t)
    def srd(d, b, size):
        A(f"s_mov_b32 s{d}, s{b}"); A(f"s_mov_b32 s{d+1}, s{b+1}"); A(f"s_mov_b32 s{d+2}, {size:#x}"); A(f"s_mov_b32 s{d+3}, 0x20000")
    WSZ = 0x800000 if diag else WS_USED

    A(f"{NAME}:")
    A("s_load_dwordx16 s[16:31], s[0:1], 0")
    A("v_readfirstlane_b32 s3, v0")
    A("s_cmp_ge_u32 s2, 256")
    A("s_cbranch_scc1 L_exit")
    stamp(0)
    A("s_lshr_b32 s4, s2, 6")
    A("s_and_b32 s5, s2, 63")
    A("s_lshr_b32 s3, s3, 6")
    A("s_cbranch_scc1 L_stub")
    role[0] = "L"
    A("v_lshrrev_b32 v13, 3, v0"); A("v_and_b32 v2, 6, v13"); A("v_and_b32 v3, 7, v0"); A("v_xor_b32 v3, v3, v2"); A("v_lshlrev_b32 v12, 4, v3")
    A("v_lshl_add_u32 v5, v13, 13, v12")
    A("s_lshl_b32 s10, s5, 7"); A("s_lshl_b32 s9, s4, 21"); A("s_add_u32 s9, s9, s10")
    A("s_mov_b32 s50, 0x800000"); A("s_mov_b32 s51, 0x20000"); A("s_mov_b32 s11, 0xfc00"); A("s_mov_b32 m0, 0")
    A("s_setprio 3")
    A("s_waitcnt lgkmcnt(0)")
    A("s_mov_b64 s[48:49], s[22:23]")
    A("L_burst:")
    for u in range(4):
        A(f"buffer_load_dwordx4 v5, s[48:51], s9 offen offset:{u*1024} nt lds")
        A("s_add_u32 s9, s9, s11")
    A("s_addk_i32 s9, 0x1000"); A("s_add_u32 m0, m0, 0x1000"); A("s_bitcmp0_b32 m0, 15"); A("s_cbranch_scc1 L_burst")
    A("s_branch L_loader")

    A("L_stub:")
    A("s_load_dwordx8 s[32:39], s[0:1], 64")
    A("s_getpc_b64 s[54:55]")
    A("L_pc:")
    A("v_subrev_u32 v2, 64, v0"); A("v_lshlrev_b32 v2, 7, v2"); A("v_min_u32 v2, L_codeend-L_pc-4, v2")
    A("global_load_dword v160, v2, s[54:55]")
    A("v_and_b32 v1, 63, v0")
    A("s_mov_b32 s41, 0"); A("s_and_b32 s6, s2, 7"); A("s_lshr_b32 s7, s2, 3")
    A("v_mov_b32 v3, 0")
    A(f"v_lshlrev_b32 v9, 2, v0"); A(f"v_add_u32 v9, {FL}, v9")
    A(f"v_lshlrev_b32 v2, 2, v1"); A(f"v_add_u32 v2, {FL}, v2")
    A("ds_write_b32 v9, v3"); A("ds_write_b32 v2, v3"); A(f"ds_write_b32 v2, v3 offset:{11*256}")
    A("v_lshrrev_b32 v3, 5, v0"); A("v_subrev_u32 v3, 2, v3")
    A("v_and_b32 v2, 31, v1"); A("v_xor_b32 v2, v2, v3"); A("v_lshlrev_b32 v2, 4, v2"); A("v_lshl_add_u32 v2, v3, 11, v2")
    A("s_lshl_b32 s8, s4, 9"); A("v_add_u32 v2, s8, v2")
    A("s_lshl_b32 s8, s3, 10"); A(f"s_add_u32 m0, s8, {XS - 1024}")
    A("s_waitcnt lgkmcnt(0)")
    A("s_load_dword s40, s[38:39], 0")
    A("s_cmp_gt_u32 s3, 4"); A("s_cbranch_scc1 L_nx")
    A("global_load_lds_dwordx4 v2, s[16:17]")
    A("L_nx:")
    A("s_cmp_lg_u32 s3, 5"); A("s_cbranch_scc1 L_ng5")
    A("s_and_b32 s8, s7, 7"); A("s_lshl_b32 s8, s8, 11"); A("v_lshlrev_b32 v2, 5, v1"); A("v_add_u32 v3, s8, v2")
    A("global_load_dwordx4 v[96:99], v3, s[16:17]"); A("global_load_dwordx4 v[100:103], v3, s[16:17] offset:16")
    A("global_load_dwordx4 v[104:107], v2, s[32:33]"); A("global_load_dwordx4 v[108:111], v2, s[32:33] offset:16")
    A("L_ng5:")
    A("s_barrier")
    if elim == 1: A("s_endpgm")
    A("s_waitcnt vmcnt(0) lgkmcnt(0)")
    A("v_mov_b32 v2, 1"); A("ds_write_b32 v9, v2")
    A("s_branch L_notloader")

    def kvcall():
        if Dh:
            La = A.lab("KV")
            A("s_cmp_eq_u32 s12, 7"); A(f"s_cbranch_scc1 {La}h"); A("s_call_b64 s[52:53], L_loopx"); A(f"s_branch {La}e")
            A(f"{La}h:"); A("s_call_b64 s[52:53], L_looph"); A(f"{La}e:")
        else: A("s_call_b64 s[52:53], L_loopx")
    A("L_loader:")
    if diag: A("s_load_dwordx8 s[32:39], s[0:1], 64")
    A("v_mov_b32 v1, v0"); A("s_mov_b32 s41, 0"); A("s_and_b32 s6, s2, 7"); A("s_lshr_b32 s7, s2, 3")
    A("v_lshrrev_b32 v14, 4, v1"); A("v_and_b32 v15, 15, v1")
    A("v_xor_b32 v2, v15, v14"); A("v_lshlrev_b32 v2, 4, v2"); A("v_lshl_add_u32 v5, v14, 8, v2")
    A("v_xor_b32 v6, 64, v5"); A("v_xor_b32 v7, 0x80, v5"); A("v_xor_b32 v8, 64, v7")
    A("v_lshlrev_b32 v9, 1, v14"); A("v_xor_b32 v9, v15, v9"); A("v_lshlrev_b32 v9, 4, v9")
    A(f"v_mov_b32 v29, {FL}"); A("v_lshl_add_u32 v10, v1, 2, v29"); A("v_and_b32 v2, 3, v1"); A("v_mul_u32_u24 v2, 0x104, v2"); A("v_add_u32 v29, v2, v29")
    A(f"s_mul_i32 s42, s4, {256*7168}"); A("s_add_u32 s42, s42, s10")
    A("s_and_b32 s15, s7, 24"); A("s_add_u32 s15, s15, s6"); A("s_lshl_b32 s15, s15, 5"); A("s_and_b32 s12, s7, 7"); A("s_add_u32 s15, s15, s12")
    A("s_add_u32 s15, s15, 24"); A("s_lshl_b32 s15, s15, 15"); A("s_lshl_b32 s14, s12, 12")
    A("s_mov_b64 s[48:49], s[18:19]"); A("s_mov_b32 s50, 0x2000000"); A("s_mov_b32 s9, s15"); A("s_mov_b32 s13, 8"); A(f"s_mov_b32 s10, {R1}")
    A(f"s_mov_b32 s43, {32 + 4 - R(D)}")
    if Dh:
        A("s_cmp_eq_u32 s12, 7"); A(f"s_cselect_b32 s43, {32 + 4 - R(Dh)}, s43")
    A("s_barrier")
    stamp(6)
    kvcall()
    stamp(7)
    A("v_lshl_add_u32 v5, v14, 8, v9"); A("v_xor_b32 v6, 0x80, v5"); A("v_mov_b32 v7, v5"); A("v_mov_b32 v8, v6")
    A("s_mov_b64 s[48:49], s[20:21]"); A("s_mov_b32 s9, s15"); A("s_mov_b32 s13, 8")
    kvcall()
    stamp(3)
    A("s_cmp_eq_u32 s12, 7"); A("s_cbranch_scc1 L_now1")
    A("v_mul_u32_u24 v5, 0x1c00, v13"); A("v_add_u32 v5, v5, v12"); A("v_mov_b32 v6, v5")
    A(f"s_mov_b32 m0, {R3}"); A("s_mov_b32 s50, 0x700000")
    A("s_mov_b64 s[48:49], s[28:29]"); A("s_mov_b32 s9, s42"); A(f"s_mov_b32 s11, {8*7168-1024}"); A("s_mov_b32 s13, 8")
    A("s_call_b64 s[52:53], L_loop")
    A("L_now1:")
    stamp(1)
    A("v_lshl_add_u32 v5, v14, 11, v9"); A("v_xor_b32 v6, 0x80, v5")
    A("s_mov_b64 s[48:49], s[24:25]"); A("s_mov_b32 s50, 0x800000")
    A("s_lshl_b32 s9, s7, 10"); A("s_add_u32 s9, s9, s6"); A("s_lshl_b32 s9, s9, 8")
    A("s_movk_i32 s11, 0x1c00"); A("s_mov_b32 s13, 8"); A("s_mov_b32 m0, 0")
    if not elim: wait_lds("v29", 2, off=256)
    A("s_cmp_eq_u32 s12, 7"); A("s_cbranch_scc0 L_wonorm")
    DW = Dhw or Dh or D
    if DW != (Dh or D): A(f"s_add_i32 s43, s43, {R(Dh or D) - R(DW)}")
    A(f"s_call_b64 s[52:53], {'L_loop3' if DW != D else 'L_loop'}")
    if DW > 32: A("s_waitcnt vmcnt(32)"); A("v_mov_b32 v11, 96"); A("ds_write_b32 v10, v11")
    A(f"s_add_i32 s43, s43, {R(DW) - R(D2)}")
    A("s_branch L_now2")
    A("L_wonorm:")
    A("s_call_b64 s[52:53], L_loop")
    if D2 != D: A(f"s_add_i32 s43, s43, {R(D) - R(D2)}")
    A("s_mov_b64 s[48:49], s[30:31]"); A("s_mov_b32 s50, 0x700000")
    A("s_sub_u32 s9, s7, s4"); A("s_lshl_b32 s9, s9, 10"); A("s_add_u32 s9, s9, s6"); A("s_lshl_b32 s9, s9, 8"); A("s_mov_b32 s13, 8")
    if not elim: wait_lds("v29", 3, off=256)
    A(f"s_call_b64 s[52:53], {'L_loop2' if D2 != D else 'L_loop'}")
    A("L_now2:")
    prev = R(D2) - 4
    for k in (8, 0):
        A(f"s_waitcnt vmcnt({k})")
        A(f"s_add_i32 s43, s43, {prev - k}")
        prev = k
        A("v_mov_b32 v11, s43"); A("ds_write_b32 v10, v11")
    stamp(2)
    if diag or prof: A("s_branch L_ldend")
    A("L_exit:")
    A("s_endpgm")
    for lab, Dd in (("L_loopx", D), ("L_looph", Dh)):
        if not Dd: continue
        A(f"{lab}:")
        A("s_xor_b32 m0, s10, s14"); A("s_xor_b32 s8, s9, s14")
        for u in range(4):
            A(f"s_waitcnt vmcnt({Dd-1})")
            if u == (Dd - 1) % 4:
                A("v_mov_b32 v11, s43"); A("ds_write_b32 v10, v11")
            A(f"buffer_load_dwordx4 v{5+u}, s[48:51], s8 offen offset:{u*1024} nt lds")
        A("s_addk_i32 s9, 0x1000"); A("s_addk_i32 s10, 0x1000"); A("s_add_i32 s43, s43, 4")
        A("s_sub_u32 s13, s13, 1"); A("s_cmp_lg_u32 s13, 0"); A(f"s_cbranch_scc1 {lab}")
        A("s_setpc_b64 s[52:53]")
    for lab, Dd in (("L_loop", D), ("L_loop2", D2), ("L_loop3", DW if DW != D else 0)):
        if lab == "L_loop2" and D2 == D: continue
        if not Dd: continue
        A(f"{lab}:")
        for u in range(4):
            A(f"s_waitcnt vmcnt({Dd-1})")
            if u == (Dd - 1) % 4:
                A("v_mov_b32 v11, s43"); A("ds_write_b32 v10, v11")
            A(f"buffer_load_dwordx4 v{5+(u&1)}, s[48:51], s9 offen offset:{u*1024} nt lds")
            A("s_add_u32 s9, s9, s11")
        A("s_addk_i32 s9, 0x1000"); A("s_add_u32 m0, m0, 0x1000"); A("s_add_i32 s43, s43, 4")
        A("s_sub_u32 s13, s13, 1"); A("s_cmp_lg_u32 s13, 0"); A(f"s_cbranch_scc1 {lab}")
        A("s_setpc_b64 s[52:53]")
    if diag or prof:
        A("L_ldend:")
        finish(8)
    if diag:
        A("v_and_b32 v2, 7, v1"); A("v_mul_u32_u24 v2, 0x104, v2"); A(f"v_add_u32 v29, {FL}, v2")
        if not elim: wait_lds("v29", 63, off=256)
        srd(44, 38, WSZ)
        A("v_lshlrev_b32 v2, 4, v1"); A(f"v_add_u32 v3, {FL + 0xC00}, v2")
        A("ds_read_b128 v[16:19], v3"); A("s_waitcnt lgkmcnt(0)")
        A("s_lshl_b32 s60, s2, 10"); A(f"s_add_u32 s60, s60, {DIAG}")
        A("s_mov_b32 exec_hi, 0xf")
        A("buffer_store_dwordx4 v[16:19], v2, s[44:47], s60 offen")
        A("s_endpgm")

    def flag(stage):
        A(f"v_mov_b32 v2, {stage}"); A("ds_write_b32 v9, v2")
    def gather(loads, tb=112, mid=None, cnt=None):
        N = len(loads)
        mreg = lambda i: 16 + 2*i if i < 8 else 84 + 2*(i - 8)
        L = A.lab("G"); Ld = L + "d"; Lc = L + "c"
        for tg, t in loads: A(t)
        if mid: mid()
        A(f"{Lc}:")
        if diag and cnt: A(f"v_add_u32 {cnt}, 1, {cnt}")
        A("s_waitcnt vmcnt(0)")
        for i, (tg, t) in enumerate(loads):
            A(f"v_xor_b32 v{tb+i}, v{tg[0]}, v15")
            for r in tg[1:]: A(f"v_bitop3_b32 v{tb+i}, v{tb+i}, v{r}, v15 bitop3:0xf6")
        if N == 1: A(f"v_cmp_ne_u32 vcc, 0, v{tb}")
        else:
            A(f"v_or_b32 v2, v{tb}, v{tb+1}")
            for i in range(2, N, 2): A(f"v_or3_b32 v2, v2, v{tb+i}, v{tb+i+1}")
            A("v_cmp_ne_u32 vcc, 0, v2")
        A(f"s_cbranch_vccz {Ld}")
        A("s_add_u32 s41, s41, 16"); A(f"s_cmp_ge_u32 s41, {SPIN_LIMIT}"); A(f"s_cbranch_scc1 {Ld}")
        if N == 1:
            A("s_mov_b64 exec, vcc"); A(loads[0][1])
        else:
            for i in range(N): A(f"v_cmp_ne_u32 s[{mreg(i)}:{mreg(i)+1}], 0, v{tb+i}")
            for i, (tg, t) in enumerate(loads):
                sk = A.lab("S")
                A(f"s_mov_b64 exec, s[{mreg(i)}:{mreg(i)+1}]"); A(f"s_cbranch_execz {sk}"); A(t); A(f"{sk}:")
        A("s_mov_b64 exec, -1")
        A(f"s_branch {Lc}")
        A(f"{Ld}:")
    def ld4(d, va, so, off=0, fl="sc1"):
        return ((d+1, d+3), f"buffer_load_dwordx4 v[{d}:{d+3}], {va}, s[44:47], {so} offen" + (f" offset:{off}" if off else "") + " " + fl)
    def sum4(base, n, stride, out):
        for k, off in enumerate((0, 2)):
            for i in range(n):
                r = base + stride * i + off
                if i == 0:
                    A(f"v_lshlrev_b32 v{out+2*k}, 16, v{r}"); A(f"v_and_b32 v{out+2*k+1}, 0xffff0000, v{r}")
                else:
                    A(f"v_lshlrev_b32 v2, 16, v{r}"); A(f"v_and_b32 v3, 0xffff0000, v{r}")
                    A(f"v_add_f32 v{out+2*k}, v{out+2*k}, v2"); A(f"v_add_f32 v{out+2*k+1}, v{out+2*k+1}, v3")
    def lstore(texts):
        Lg = A.lab("F"); Le = Lg + "e"
        A("s_cmp_eq_u32 s53, 2"); A(f"s_cbranch_scc0 {Lg}")
        for ex, t in texts:
            if ex: A(ex)
            A(t + " " + ls)
        A(f"s_branch {Le}")
        A(f"{Lg}:")
        for ex, t in texts:
            if ex: A(ex)
            A(t + " sc1")
        A(f"{Le}:")
        if any(ex for ex, t in texts): A("s_mov_b64 exec, -1")
    def get_mode():
        wait_lds("v7", 1, off=11*256)
        A("v_readfirstlane_b32 s53, v2")
        A("v_lshl_add_u32 v3, v6, 3, v7"); A(f"ds_read_b64 v[164:165], v3 offset:{10*256}")
    def xfrags():
        wait_lds("v166", 1)
        for var in range(4):
            if var: A(f"v_xor_b32 v3, {var*32}, v10")
            for kk in range(4):
                ks = kk*2 + (var >> 1); hh = var & 1
                A(f"ds_read_b64 v[{32+4*ks+2*hh}:{33+4*ks+2*hh}], {'v3' if var else 'v10'} offset:{kk*128}")
    def p1(base):
        for (k0, k1) in ((0, 6), (6, 8)):
            rd = []
            for ks in range(k0, k1):
                rd += [f"ds_read_b64_tr_b16 v[{64+4*ks}:{65+4*ks}], v13 offset:{ks*4096}", f"ds_read_b64_tr_b16 v[{66+4*ks}:{67+4*ks}], v13 offset:{ks*4096 + 2048}"]
            if k1 == 8: wait_then("v7", base + 4*k1, rd); stamp(1)
            else:
                wait_lds("v7", base + 4*k1)
                for t in rd: A(t)
            for ks in range(k0, k1):
                A(f"s_waitcnt lgkmcnt({2*(k1 - 1 - ks)})")
                c = "0" if ks == 0 else "v[16:19]"
                A(f"v_mfma_f32_16x16x32_bf16 v[16:19], v[{64+4*ks}:{67+4*ks}], v[{32+4*ks}:{35+4*ks}], {c}")
        A("v_cvt_pk_bf16_f32 v20, v16, v17"); A("v_cvt_pk_bf16_f32 v22, v18, v19")
        A("s_mov_b64 exec, s[48:49]")
        A("buffer_store_dwordx4 v[20:23], v14, s[44:47], s52 offen sc1")
        A("s_mov_b64 exec, -1")
    def tilefr(region, k0, k1):
        for ks in range(k0, k1):
            for q in range(2):
                f = 64 + (ks*2 + q)*4
                A(f"ds_read_b64_tr_b16 v[{f}:{f+1}], v{150+q} offset:{region + ks*8192}")
                A(f"ds_read_b64_tr_b16 v[{f+2}:{f+3}], v{150+q} offset:{region + ks*8192 + 4096}")
    def tilemm(ks):
        for q in range(2):
            f = 64 + (ks*2 + q)*4
            c = "0" if ks == 0 else f"v[{128+4*q}:{131+4*q}]"
            A(f"v_mfma_f32_16x16x32_bf16 v[{128+4*q}:{131+4*q}], v[{f}:{f+3}], v[{48+4*ks}:{51+4*ks}], {c}")

    A("L_notloader:")
    role[0] = "A"
    srd(44, 38, WSZ)
    A(f"s_add_u32 s40, s40, {TAGK:#x}")
    A("v_mov_b32 v15, s40"); A("v_mov_b32 v21, s40"); A("v_mov_b32 v23, s40")
    A("v_and_b32 v4, 15, v1"); A("v_lshrrev_b32 v5, 4, v1"); A("v_and_b32 v6, 7, v1")
    A("v_lshlrev_b32 v29, 4, v1")
    A("s_cmp_lg_u32 s3, 5"); A("s_cbranch_scc1 L_nogate")
    A("v_mov_b32 v16, 0"); A("v_mov_b32 v17, 0")
    for i in range(8):
        x, gw = 96 + i, 104 + i
        A(f"v_lshlrev_b32 v18, 16, v{x}"); A(f"v_and_b32 v19, 0xffff0000, v{x}")
        A(f"v_lshlrev_b32 v24, 16, v{gw}"); A(f"v_and_b32 v25, 0xffff0000, v{gw}")
        A("v_mul_f32 v18, v18, v24"); A("v_mul_f32 v19, v19, v25")
        A("v_cvt_pk_bf16_f32 v18, v18, v19")
        A("v_and_b32 v19, 0xffff0000, v18"); A("v_lshlrev_b32 v18, 16, v18")
        A("v_add_f32 v16, v16, v18"); A("v_add_f32 v17, v17, v19")
    A("v_add_f32 v16, v16, v17")
    for r in (1, 2, 4, 8): A(f"v_add_f32_dpp v16, v16, v16 row_ror:{r} row_mask:0xf bank_mask:0xf")
    for sw in ("v_permlane16_swap_b32", "v_permlane32_swap_b32"):
        A("v_mov_b32 v17, v16"); A(f"{sw} v16, v17"); A("v_add_f32 v16, v16, v17")
    A("v_cvt_pk_bf16_f32 v16, v16, v16"); A("v_lshlrev_b32 v16, 16, v16")
    A(f"v_mul_f32 v16, {0xBFB8AA3B:#x}, v16"); A("v_exp_f32 v16, v16"); A("v_add_f32 v16, 1.0, v16"); A("v_rcp_f32 v16, v16")
    A("v_cvt_pk_bf16_f32 v16, v16, v16"); A("v_lshlrev_b32 v16, 16, v16")
    A("v_sub_f32 v17, 1.0, v16"); A("v_cvt_pk_bf16_f32 v22, v16, v17")
    A("s_getreg_b32 s8, hwreg(HW_REG_XCC_ID, 0, 4)")
    A("v_mov_b32 v20, s8")
    A("s_lshl_b32 s8, s6, 5"); A("s_add_u32 s8, s8, s7"); A("s_lshl_b32 s8, s8, 4"); A(f"s_add_u32 s8, s8, {XT}")
    A("s_mov_b64 exec, 1")
    A("buffer_store_dwordx4 v[20:23], v29, s[44:47], s8 offen sc1")
    A("s_mov_b64 exec, -1")
    A("L_nogate:")
    if prof == "B9": A("s_memrealtime s[68:69]")
    A(f"v_mov_b32 v7, {FL}")
    A("v_and_b32 v2, 3, v1"); A("v_mul_u32_u24 v2, 0x104, v2"); A(f"v_add_u32 v8, {FL+256}, v2")
    A("v_mul_u32_u24 v2, 0x104, v6"); A(f"v_add_u32 v166, {FL+256}, v2")
    A("v_lshrrev_b32 v2, 1, v5"); A("v_xor_b32 v2, v2, v6"); A("v_lshlrev_b32 v2, 4, v2"); A("v_lshl_add_u32 v10, v6, 9, v2")
    A("v_and_b32 v2, 1, v5"); A("v_lshl_add_u32 v10, v2, 3, v10"); A(f"v_add_u32 v10, {XS}, v10")
    A("v_lshrrev_b32 v11, 2, v1")
    A("v_and_b32 v12, 3, v1"); A("v_lshlrev_b32 v12, 3, v12")
    A("s_mov_b32 s48, 0x00ff00ff"); A("s_mov_b32 s49, 0x00ff00ff")
    A("s_mov_b32 s50, 0xff00ff00"); A("s_mov_b32 s51, 0xff00ff00")
    A("s_sub_u32 s9, s3, 1"); A("s_and_b32 s9, s9, 3")
    A("s_and_b32 s10, s7, 24"); A("s_add_u32 s10, s10, s6")
    A("s_lshr_b32 s11, s10, 2"); A("s_and_b32 s12, s10, 3"); A("s_and_b32 s13, s7, 7")
    A("v_lshrrev_b32 v2, 1, v11"); A("v_and_b32 v2, 3, v2"); A("v_xor_b32 v2, s9, v2"); A("v_lshlrev_b32 v2, 5, v2")
    A("v_lshl_add_u32 v13, v11, 7, v2"); A("v_add_u32 v13, v13, v12")
    A("v_lshlrev_b32 v14, 14, v6"); A("v_lshl_add_u32 v14, v5, 4, v14")
    A("s_lshl_b32 s52, s4, 17"); A("s_lshl_b32 s8, s5, 8"); A("s_add_u32 s52, s52, s8"); A("s_lshl_b32 s8, s9, 6"); A("s_add_u32 s52, s52, s8")
    A("v_and_b32 v2, 7, v11"); A("v_lshlrev_b32 v2, 5, v2"); A("v_lshl_add_u32 v150, v11, 8, v2"); A("v_add_u32 v150, v150, v12")
    A("s_lshl_b32 s8, s9, 6"); A("v_xor_b32 v150, s8, v150"); A("v_xor_b32 v151, 32, v150")
    A("v_mul_u32_u24 v152, 544, v6"); A("v_lshl_add_u32 v152, v5, 4, v152"); A(f"v_add_u32 v152, {OB}, v152")
    A("v_and_b32 v3, 31, v1"); A("v_lshrrev_b32 v28, 5, v1")
    A("v_lshrrev_b32 v2, 3, v3"); A("v_lshlrev_b32 v154, 6, v2"); A("v_lshl_add_u32 v154, v12, 1, v154")
    A("v_bfe_u32 v2, v3, 2, 1"); A("v_lshl_add_u32 v154, v2, 3, v154")
    A("v_mul_u32_u24 v2, 544, v28"); A("v_add_u32 v154, v154, v2")
    A("s_mul_i32 s8, s9, 1088"); A(f"s_add_u32 s8, s8, {OB}"); A("v_add_u32 v154, s8, v154")
    A("s_lshl_b32 s8, s9, 10"); A(f"s_add_u32 s8, s8, {TB}"); A("v_add_u32 v147, s8, v29")
    A("s_lshl_b32 s62, s10, 15"); A(f"s_add_u32 s62, s62, {OP}")
    A("s_lshl_b32 s63, s10, 9"); A(f"s_add_u32 s63, s63, {LSE}")
    if diag:
        A("v_mov_b32 v161, 0"); A("v_mov_b32 v162, 0"); A("v_mov_b32 v163, 0")
    A("s_cmp_ge_u32 s3, 5"); A("s_cbranch_scc1 L_B")

    A(f"s_add_u32 s52, s52, {QP}")
    A("v_xor_b32 v2, v5, v4"); A("v_lshlrev_b32 v2, 4, v2"); A("v_lshl_add_u32 v24, v4, 8, v2")
    A("s_lshl_b32 s8, s9, 13"); A(f"s_add_u32 s8, s8, {R1}"); A("v_add_u32 v24, s8, v24")
    A("v_xor_b32 v25, 64, v24"); A("v_xor_b32 v26, 0x80, v24"); A("v_xor_b32 v27, 0xc0, v24")
    A("s_lshr_b32 s14, s13, 1"); A("s_lshl_b32 s8, s14, 13"); A(f"s_add_u32 s8, s8, {R2}")
    A("v_add_u32 v148, s8, v150"); A("v_add_u32 v149, s8, v151")
    A("s_xor_b32 s86, s14, s9"); A("s_lshl_b32 s14, s86, 3"); A("s_add_u32 s14, s14, 40")
    A("s_lshl_b32 s56, s11, 14"); A("s_lshl_b32 s8, s12, 12"); A("s_add_u32 s56, s56, s8"); A("s_lshl_b32 s8, s9, 10"); A("s_add_u32 s56, s56, s8")
    A(f"s_add_u32 s56, s56, {QP}"); A("s_add_u32 s57, s56, 0x20000"); A("s_add_u32 s58, s56, 0x40000"); A("s_add_u32 s59, s56, 0x60000")
    A("v_mul_u32_u24 v2, 288, v28"); A("v_lshl_add_u32 v30, v3, 3, v2")
    A("s_mul_i32 s8, s9, 576"); A(f"s_add_u32 s8, s8, {QB}"); A("v_add_u32 v30, s8, v30")
    A("v_mul_u32_u24 v31, 288, v6"); A("v_lshl_add_u32 v31, v5, 4, v31"); A(f"v_add_u32 v31, {QB}, v31")
    A(f"v_add_u32 v106, {PB}, v29"); A("s_lshl_b32 s8, s86, 10"); A("v_add_u32 v104, s8, v106")
    A("v_lshlrev_b32 v107, 5, v6"); A(f"v_add_u32 v107, {ST}, v107"); A("s_lshl_b32 s8, s86, 2"); A("v_add_u32 v105, s8, v107")
    A("v_lshrrev_b32 v2, 3, v4")
    A("v_lshlrev_b32 v108, 12, v6"); A("v_lshl_add_u32 v108, v5, 4, v108"); A("v_lshl_add_u32 v108, v2, 6, v108")
    A("v_lshlrev_b32 v109, 6, v6")
    A("s_lshl_b32 s8, s9, 1"); A("s_lshl_b32 s42, 3, s8"); A("s_mov_b32 s43, 0")
    A("s_lshl_b32 s8, s13, 2"); A("s_add_u32 s8, s8, s9"); A("s_lshl_b32 s8, s8, 7"); A("s_add_u32 s60, s62, s8")
    A("s_and_b32 s8, s13, 1"); A("s_lshl_b32 s8, s8, 5"); A("s_add_u32 s61, s63, s8"); A("s_lshr_b32 s8, s13, 1"); A("s_lshl_b32 s8, s8, 3"); A("s_add_u32 s61, s61, s8")
    A("s_lshl_b32 s87, s7, 2"); A("s_add_u32 s87, s87, s9"); A("s_lshl_b32 s87, s87, 10"); A(f"s_add_u32 s87, s87, {OF}")
    A("s_and_b32 s8, s6, 3"); A("s_lshl_b32 s8, s8, 7"); A("s_add_u32 s8, s8, s87"); A("s_add_u32 s54, s38, s8"); A("s_addc_u32 s55, s39, 0")
    A(f"s_mov_b32 s64, {SCALE:#x}"); A(f"s_mov_b32 s65, {L2E:#x}")
    A("s_cmp_eq_u32 s13, 7"); A("s_movk_i32 s67, 160"); A("s_cselect_b32 s67, 0x80, s67"); A("s_movk_i32 s66, 192"); A("s_cselect_b32 s66, 0x80, s66")
    A("v_mov_b32 v157, v15"); A("v_mov_b32 v159, v15"); A("v_mov_b32 v111, v15")
    A("v_lshl_add_u32 v153, v6, 3, v7")
    A("s_lshl_b32 s8, s13, 12"); A("s_add_u32 s84, s62, s8"); A("s_lshl_b32 s8, s9, 5"); A("s_add_u32 s84, s84, s8")
    A("v_lshrrev_b32 v2, 1, v1"); A("v_lshlrev_b32 v144, 7, v2"); A("v_and_b32 v2, 1, v1"); A("v_lshl_add_u32 v144, v2, 4, v144")
    A("v_lshlrev_b32 v145, 3, v2"); A("v_lshl_add_u32 v145, v5, 1, v145")
    srd(88, 34, 16384)
    A("s_lshr_b32 s85, s7, 2"); A("s_lshl_b32 s85, s85, 11"); A("s_lshl_b32 s8, s6, 8"); A("s_add_u32 s85, s85, s8")
    A("s_and_b32 s8, s7, 3"); A("s_lshl_b32 s8, s8, 6"); A("s_add_u32 s85, s85, s8"); A("s_lshl_b32 s8, s9, 4"); A("s_add_u32 s85, s85, s8")
    xfrags()
    p1(0)
    flag(2)
    stamp(2)
    for i in range(1, 4):
        A(f"v_xor_b32 v{88+2*i}, {i<<13:#x}, v148"); A(f"v_xor_b32 v{89+2*i}, {i<<13:#x}, v149")
    if hq:
        A("s_cmp_eq_u32 s13, 7"); A(f"s_movk_i32 s8, {q_start}"); A(f"s_cselect_b32 s8, {hq}, s8"); wait_lds("v7", "s8")
    else: wait_lds("v7", q_start)
    stamp(3)
    def kpull():
        wait_lds("v7", "s14")
        for t in range(2):
            for s in range(4):
                A(f"ds_read_b128 v[{32+16*t+4*s}:{35+16*t+4*s}], v{24+s} offset:{t*4096}")
        A("s_waitcnt lgkmcnt(0)")
        flag(3)
        if not gml: get_mode()
    gather([ld4(64+4*sp, "v29", f"s{56+sp}") for sp in range(4)], cnt="v161", mid=kpull)
    stamp(4)
    sum4(64, 4, 4, 16)
    A("v_cvt_pk_bf16_f32 v20, v16, v17"); A("v_cvt_pk_bf16_f32 v21, v18, v19")
    A("ds_write_b64 v30, v[20:21]")
    flag(4)
    if gml == 2: get_mode()
    wait_then("v8", 4, [f"ds_read_b128 v[{64+4*s}:{67+4*s}], v31 offset:{s*64}" for s in range(4)])
    for s in range(4):
        A(f"s_waitcnt lgkmcnt({3-s})")
        for t in range(2):
            c = "0" if s == 0 else f"v[{16+4*t}:{19+4*t}]"
            A(f"v_mfma_f32_16x16x32_bf16 v[{16+4*t}:{19+4*t}], v[{32+16*t+4*s}:{35+16*t+4*s}], v[{64+4*s}:{67+4*s}], {c}")
    def vreads(w0, w1):
        for w in range(w0, w1):
            for q in range(2):
                f = 112 + (w*2 + q)*4; ad = f"v{88+2*w+q}" if w else f"v{148+q}"
                A(f"ds_read_b64_tr_b16 v[{f}:{f+1}], {ad}")
                A(f"ds_read_b64_tr_b16 v[{f+2}:{f+3}], {ad} offset:4096")
    def pvmm(w0, w1):
        n = 2 * (w1 - w0)
        for w in range(w0, w1):
            for q in range(2):
                n -= 1
                f = 112 + (w*2 + q)*4; d = 32 + (w*2 + q)*4
                A(f"s_waitcnt lgkmcnt({2*n})")
                A(f"v_mfma_f32_16x16x32_bf16 v[{d}:{d+3}], v[{f}:{f+3}], v[{64+4*w}:{67+4*w}], 0")
    def pvacc(w0, w1):
        for w in range(w0, w1):
            for k in range(8):
                A(f"v_mul_f32 v{80+k}, v16, v{32+k}" if w == 0 else f"v_fmac_f32 v{80+k}, v{16+w}, v{32+8*w+k}")
    if mimic:
        for i in range(4):
            a, b = 16 + 2*i, 17 + 2*i
            A(f"v_cvt_pk_bf16_f32 v2, v{a}, v{b}")
            A(f"v_lshlrev_b32 v{a}, 16, v2"); A(f"v_and_b32 v{b}, 0xffff0000, v2")
            A(f"v_mul_f32 v{a}, s64, v{a}"); A(f"v_mul_f32 v{b}, s64, v{b}")
            A(f"v_cvt_pk_bf16_f32 v2, v{a}, v{b}")
            A(f"v_lshlrev_b32 v{a}, 16, v2"); A(f"v_and_b32 v{b}, 0xffff0000, v2")
    else:
        for i in range(8): A(f"v_mul_f32 v{16+i}, s64, v{16+i}")
    A("v_max3_f32 v2, v16, v17, v18"); A("v_max3_f32 v3, v19, v20, v21"); A("v_max3_f32 v2, v2, v22, v23"); A("v_max_f32 v2, v2, v3")
    A("v_mov_b32 v3, v2"); A("v_permlane16_swap_b32 v2, v3"); A("v_max_f32 v2, v2, v3")
    A("v_mov_b32 v3, v2"); A("v_permlane32_swap_b32 v2, v3"); A("v_max_f32 v2, v2, v3")
    A("v_mul_f32 v96, s65, v2")
    for i in range(8): A(f"v_fma_f32 v{16+i}, v{16+i}, s65, -v96")
    for i in range(8): A(f"v_exp_f32 v{16+i}, v{16+i}")
    for i in range(4): A(f"v_cvt_pk_bf16_f32 v{100+i}, v{16+2*i}, v{17+2*i}")
    A("ds_write_b128 v104, v[100:103]")
    A("ds_read_b32 v28, v7")
    if gml == 3:
        A(f"ds_read_b32 v155, v7 offset:{11*256}"); A(f"ds_read_b64 v[164:165], v153 offset:{10*256}")
    A("v_add_f32 v2, v16, v17"); A("v_add_f32 v3, v18, v19"); A("v_add_f32 v2, v2, v20"); A("v_add_f32 v3, v3, v21")
    A("v_add_f32 v2, v2, v22"); A("v_add_f32 v3, v3, v23"); A("v_add_f32 v97, v2, v3")
    A("v_mov_b32 v3, v97"); A("v_permlane16_swap_b32 v97, v3"); A("v_add_f32 v97, v97, v3")
    A("v_mov_b32 v3, v97"); A("v_permlane32_swap_b32 v97, v3"); A("v_add_f32 v97, v97, v3")
    A("s_mov_b64 exec, 0xff")
    A("ds_write2_b32 v105, v96, v97 offset0:0 offset1:4")
    A("s_mov_b64 exec, -1")
    flag(5)
    stamp(5)
    def wts():
        A("v_max3_f32 v98, v16, v17, v18"); A("v_max_f32 v98, v98, v19")
        for i in range(4): A(f"v_sub_f32 v{16+i}, v{16+i}, v98")
        for i in range(4): A(f"v_exp_f32 v{16+i}, v{16+i}")
        A("v_mul_f32 v3, v16, v20")
        for i in range(1, 4): A(f"v_fmac_f32 v3, v{16+i}, v{20+i}")
        A("v_rcp_f32 v20, v3"); A("v_log_f32 v21, v3")
        for i in range(4): A(f"v_mul_f32 v{16+i}, v{16+i}, v20")
        A("v_add_f32 v110, v98, v21")
    def preads():
        for w in range(4): A(f"ds_read_b128 v[{64+4*w}:{67+4*w}], v106 offset:{w*1024}")
        A("ds_read_b128 v[16:19], v107"); A("ds_read_b128 v[20:23], v107 offset:16")
    A("s_waitcnt lgkmcnt(2)"); A("v_cmp_gt_i32 vcc, 88, v28"); A("s_cbranch_vccnz L_vlate")
    vreads(0, 3)
    if gml == 1: get_mode()
    wait_then("v8", 5, cap(preads))
    for w in range(3):
        A(f"s_waitcnt lgkmcnt({5-w})")
        for q in range(2):
            f = 112 + (w*2 + q)*4; d = 32 + (w*2 + q)*4
            A(f"v_mfma_f32_16x16x32_bf16 v[{d}:{d+3}], v[{f}:{f+3}], v[{64+4*w}:{67+4*w}], 0")
    A("s_waitcnt lgkmcnt(0)")
    A("ds_read_b32 v28, v7")
    wts()
    A("s_branch L_vdone")
    A("L_vlate:")
    if gml == 1: get_mode()
    wait_then("v8", 5, cap(preads))
    A("s_waitcnt lgkmcnt(0)")
    wts()
    wait_lds("v7", 88)
    vreads(0, 3)
    pvmm(0, 3)
    A("ds_read_b32 v28, v7")
    A("L_vdone:")
    A("s_waitcnt lgkmcnt(0)"); A("v_cmp_gt_i32 vcc, 96, v28"); A("s_cbranch_vccnz L_v3late")
    vreads(3, 4)
    pvacc(0, 3)
    A("s_branch L_v3done")
    A("L_v3late:")
    A("s_nop 3")
    pvacc(0, 3)
    wait_then("v7", 96, cap(vreads, 3, 4))
    A("L_v3done:")
    if gml == 3: A("v_readfirstlane_b32 s53, v155")
    pvmm(3, 4)
    pvacc(3, 4)
    A("v_cvt_pk_bf16_f32 v16, v80, v81"); A("v_cvt_pk_bf16_f32 v17, v82, v83"); A("v_cvt_pk_bf16_f32 v18, v84, v85"); A("v_cvt_pk_bf16_f32 v19, v86, v87")
    A("v_cndmask_b32 v156, v16, v18, s[50:51]"); A("v_cndmask_b32 v158, v17, v19, s[50:51]")
    if gml == 3:
        A("s_cmp_lg_u32 s53, 0"); A("s_cbranch_scc1 L_mok")
        get_mode()
        A("L_mok:")
    if ea == 1: finish(6)
    lstore([(None, "buffer_store_dwordx4 v[156:159], v108, s[44:47], s60 offen"),
            ("s_mov_b64 exec, s[42:43]", "buffer_store_dwordx2 v[110:111], v109, s[44:47], s61 offen")])
    flag(6)
    stamp(6)
    A("s_cmp_lg_u32 s13, 7"); A("s_cbranch_scc1 L_nocomb")
    A("s_mov_b32 s86, s9")
    A("s_call_b64 s[94:95], L_comb")
    A("L_nocomb:")
    if ea == 2: finish(7)
    if ostart:
        A(f"s_min_u32 s8, s67, {ostart}"); wait_lds("v7", "s8")
    L = A.lab("P"); Ld = L + "d"; Lr = L + "r"
    A(f"{L}:")
    A("s_load_dword s16, s[54:55], 4 glc"); A("s_load_dword s17, s[54:55], 516 glc")
    A("s_waitcnt lgkmcnt(0)")
    A("s_cmp_eq_u32 s16, s40"); A(f"s_cbranch_scc0 {Lr}"); A("s_cmp_eq_u32 s17, s40"); A(f"s_cbranch_scc1 {Ld}")
    A(f"{Lr}:")
    spin_tail(L, Ld, 16)
    stamp(7)
    if ea == 3: finish(8)
    def womid():
        wait_lds("v7", "s67")
        tilefr(R0, 0, 4)
    gather([ld4(32, "v29", "s87")], mid=womid, cnt="v162")
    if ea == 4: finish(8)
    A("v_mov_b32 v33, v34")
    A("ds_write_b64 v154, v[32:33]")
    flag(7)
    stamp(8)
    wait_read("v8", 7, [f"ds_read_b128 v[{48+4*ks}:{51+4*ks}], v152 offset:{ks*64}" for ks in range(4)])
    for ks in range(4):
        A(f"s_waitcnt lgkmcnt({3-ks})")
        tilemm(ks)
    for k in range(4): A(f"v_cndmask_b32 v{16+k}, v{128+k}, v{132+k}, s[50:51]")
    for k in range(4): A(f"v_mul_f32 v{16+k}, v164, v{16+k}")
    A("ds_write_b128 v147, v[16:19]")
    flag(8)
    stamp(10)
    if ea == 5: finish(8)
    A("v_xor_b32 v15, 0x80000000, v15")
    if bwait: wait_lds("v7", "s66")
    gather([ld4(100, "v144", "s84", 0, lf)], tb=104, cnt="v163")
    sum4(100, 1, 4, 64)
    A("v_permlane32_swap_b32 v64, v66"); A("v_permlane32_swap_b32 v65, v67")
    A("v_add_f32 v64, v64, v66"); A("v_add_f32 v65, v65, v67")
    A("v_permlane16_swap_b32 v64, v65"); A("v_add_f32 v64, v64, v65")
    for r in (8, 4, 2): A(f"v_add_f32_dpp v64, v64, v64 row_ror:{r} row_mask:0xf bank_mask:0xf")
    A("v_cvt_pk_bf16_f32 v64, v64, v64")
    A("s_mov_b32 exec_lo, 0x00030003"); A("s_mov_b32 exec_hi, 0x00030003")
    A("buffer_store_short v64, v145, s[88:91], s85 offen")
    A("s_add_u32 s8, s2, s9"); A("s_cmp_lg_u32 s8, 0"); A("s_cbranch_scc1 L_Aend")
    A("s_mov_b64 exec, 1")
    A("buffer_store_dword v111, v29, s[44:47], 0 offen sc1")
    A("L_Aend:")
    stamp(11)
    finish(12, ["v161", "v162", "v163"])

    A("L_B:")
    role[0] = "B"
    A("v_lshrrev_b32 v2, 1, v6"); A("v_lshlrev_b32 v153, 18, v2"); A("v_and_b32 v2, 1, v6"); A("v_lshl_add_u32 v153, v2, 14, v153")
    A("v_lshl_add_u32 v153, v5, 4, v153"); A("v_lshrrev_b32 v2, 3, v4"); A("v_lshl_add_u32 v153, v2, 6, v153")
    A("s_lshl_b32 s66, s6, 3"); A("s_add_u32 s66, s66, s9"); A("s_lshl_b32 s66, s66, 5"); A("s_add_u32 s66, s66, s7"); A("s_lshl_b32 s66, s66, 7")
    A(f"s_add_u32 s66, s66, {OP}")
    A("v_lshlrev_b32 v26, 2, v3"); A("s_lshl_b32 s67, s6, 7"); A(f"s_add_u32 s67, s67, {DT}")
    A("v_lshlrev_b32 v25, 4, v3")
    A("s_lshl_b32 s8, s9, 8"); A("v_add_u32 v146, s8, v7")
    def modecheck():
        Ln = A.lab("NM")
        A("s_cmp_lg_u32 s9, 1"); A(f"s_cbranch_scc1 {Ln}")
        wait_lds("v7", xt)
        A("s_lshl_b32 s8, s6, 9"); A(f"s_add_u32 s8, s8, {XT}")
        A("buffer_load_dword v160, v26, s[44:47], s67 offen")
        gather([ld4(96, "v25", "s8")])
        A("v_lshlrev_b32 v100, 16, v98"); A("v_and_b32 v101, 0xffff0000, v98")
        A("v_lshl_add_u32 v2, v1, 3, v7"); A("s_mov_b64 exec, 0xff"); A(f"ds_write_b64 v2, v[100:101] offset:{10*256}"); A("s_mov_b64 exec, -1")
        A("s_getreg_b32 s8, hwreg(HW_REG_XCC_ID, 0, 4)")
        A("v_xor_b32 v3, s8, v96"); A("v_or_b32 v3, v3, v112")
        A("v_cmp_ne_u32 vcc, 0, v3")
        A("s_cmp_eq_u64 vcc, 0"); A(f"s_cselect_b32 s8, {1 if force_global else 2}, 1")
        A("v_mov_b32 v3, s8"); A("v_lshl_add_u32 v2, v1, 2, v7"); A(f"ds_write_b32 v2, v3 offset:{11*256}")
        A(f"{Ln}:")
    if dpre:
        A("s_cmp_lg_u32 s9, 2"); A("s_cbranch_scc1 L_nodpre")
        wait_lds("v7", dpre)
        A("s_lshl_b32 s8, s13, 12"); A("s_add_u32 s8, s8, s62"); A("v_lshlrev_b32 v2, 3, v25"); A("s_mov_b32 exec_hi, 0")
        A("buffer_load_dword v160, v2, s[44:47], s8 offen")
        A("s_lshl_b32 s8, s13, 6"); A("s_add_u32 s8, s8, s63"); A("s_mov_b64 exec, 1")
        A("buffer_load_dword v160, v29, s[44:47], s8 offen"); A("s_mov_b64 exec, -1")
        A("L_nodpre:")
    A("s_cmp_eq_u32 s13, 7"); A("s_cbranch_scc1 L_hub")
    modecheck()
    A("s_lshl_b32 s52, s5, 2"); A("s_add_u32 s52, s52, s9"); A("s_lshl_b32 s52, s52, 7"); A("s_lshl_b32 s8, s4, 17"); A("s_add_u32 s52, s52, s8"); A(f"s_add_u32 s52, s52, {HP}")
    A("v_lshrrev_b32 v2, 1, v6"); A("v_lshlrev_b32 v14, 15, v2"); A("v_and_b32 v2, 1, v6"); A("v_lshl_add_u32 v14, v2, 6, v14"); A("v_lshl_add_u32 v14, v5, 4, v14")
    A("v_lshlrev_b32 v154, 6, v5"); A("v_lshl_add_u32 v154, v12, 1, v154"); A("v_and_b32 v2, 8, v1"); A("v_add_u32 v154, v154, v2")
    A("v_bfe_u32 v2, v1, 2, 1"); A("v_mul_u32_u24 v2, 544, v2"); A("v_add_u32 v154, v154, v2")
    A("s_mul_i32 s8, s9, 1088"); A(f"s_add_u32 s8, s8, {OB}"); A("v_add_u32 v154, s8, v154")
    A(f"v_add_u32 v13, {R3}, v13")
    A("s_lshr_b32 s60, s5, 1"); A("s_lshl_b32 s60, s60, 10"); A("s_and_b32 s8, s5, 1"); A("s_lshl_b32 s8, s8, 4"); A("s_add_u32 s60, s60, s8")
    A("s_lshl_b32 s8, s4, 2"); A("s_add_u32 s60, s60, s8"); A(f"s_add_u32 s60, s60, {HH}")
    A("v_lshlrev_b32 v24, 7, v1")
    A("s_sub_u32 s14, s7, s4")
    A("s_lshl_b32 s8, s14, 3"); A("s_add_u32 s8, s8, s6"); A("s_lshl_b32 s8, s8, 7"); A(f"s_add_u32 s8, s8, {HH}"); A("s_add_u32 s54, s38, s8"); A("s_addc_u32 s55, s39, 0")
    A("v_mov_b32 v30, v29")
    A("s_lshl_b32 s56, s14, 10"); A("s_lshl_b32 s8, s9, 15"); A("s_add_u32 s56, s56, s8"); A(f"s_add_u32 s56, s56, {HP}")
    A("s_add_u32 s57, s56, 0x20000"); A("s_add_u32 s58, s56, 0x40000"); A("s_add_u32 s59, s56, 0x60000")
    A("s_mov_b32 s42, s40"); A("s_mov_b32 s43, s40")
    xfrags()
    get_mode()
    if eb == 1: finish(1)
    p1(96)
    flag(2)
    A("s_cmp_lg_u32 s9, 0"); A("s_cbranch_scc1 L_Bw1d")
    wait_lds("v8", 2, off=1024)
    A("s_mov_b64 exec, 0xff")
    A("buffer_store_dword v15, v24, s[44:47], s60 offen sc1")
    A("s_mov_b64 exec, -1")
    A("L_Bw1d:")
    stamp(2)
    if eb == 2: finish(1)
    if hpstart: wait_lds("v7", hpstart)
    L = A.lab("P"); Ld = L + "d"; Lr = L + "r"
    A(f"{L}:")
    A("s_load_dwordx8 s[84:91], s[54:55], 0 glc")
    A("s_waitcnt lgkmcnt(0)")
    for i in range(4):
        A(f"s_cmp_eq_u64 s[{84+2*i}:{85+2*i}], s[42:43]"); A(f"s_cbranch_scc0 {Lr}")
    A(f"s_branch {Ld}")
    A(f"{Lr}:")
    spin_tail(L, Ld, 16)
    stamp(3)
    if eb == 3: finish(1)
    gather([ld4(32+4*i, "v30", f"s{56+i}") for i in range(4)], cnt="v162")
    sum4(32, 4, 4, 16)
    for k in range(4): A(f"v_max_f32 v{16+k}, 0, v{16+k}")
    A("v_cvt_pk_bf16_f32 v20, v16, v17"); A("v_cvt_pk_bf16_f32 v21, v18, v19")
    A("ds_write_b64 v154, v[20:21] offset:256")
    flag(3)
    stamp(4)
    if eb == 4: finish(1)
    def bfin():
        A("ds_read_b32 v2, v7"); A("s_waitcnt lgkmcnt(0)"); A("v_readfirstlane_b32 s15, v2")
        A("s_cmp_lt_i32 s15, 184"); A("s_cbranch_scc1 L_w2no")
        tilefr(R1, 0, 3)
        A("L_w2no:")
        wait_then("v8", 3, [f"ds_read_b128 v[{48+4*ks}:{51+4*ks}], v152 offset:{256 + ks*64}" for ks in range(4)], off=1024)
        A("s_cmp_ge_i32 s15, 184"); A("s_cbranch_scc1 L_w2have")
        wait_lds("v7", 184)
        tilefr(R1, 0, 3)
        A("L_w2have:")
        A("s_waitcnt lgkmcnt(0)")
        for ks in range(3): tilemm(ks)
        wait_then("v7", 192, cap(tilefr, R1, 3, 4))
        stamp(5)
        A("ds_read_b32 v3, v146 offset:256"); A("ds_read_b128 v[96:99], v147")
        A("s_waitcnt lgkmcnt(2)")
        tilemm(3)
        A("s_waitcnt lgkmcnt(0)")
        A("v_cmp_gt_i32 vcc, 8, v3")
        for k in range(4): A(f"v_cndmask_b32 v{16+k}, v{128+k}, v{132+k}, s[50:51]")
        A("s_cbranch_vccz L_tok")
        A("L_tw:")
        A("ds_read_b32 v3, v146 offset:256"); A("ds_read_b128 v[96:99], v147")
        A("s_waitcnt lgkmcnt(0)")
        A("v_cmp_gt_i32 vcc, 8, v3"); A("s_cbranch_vccz L_tok")
        spin_tail("L_tw", "L_tok")
        for k in range(4): A(f"v_fmac_f32 v{96+k}, v165, v{16+k}")
    def fpub(mid):
        A("v_xor_b32 v157, 0x80000000, v15"); A("v_mov_b32 v159, v157")
        def m2():
            mid()
            A("v_cvt_pk_bf16_f32 v156, v96, v97"); A("v_cvt_pk_bf16_f32 v158, v98, v99")
        gather([((27,), "buffer_load_dword v27, v26, s[44:47], s67 offen sc1")], tb=140, mid=m2)
        lstore([(None, "buffer_store_dwordx4 v[156:159], v153, s[44:47], s66 offen")])
        stamp(6)
        finish(7, ["v161", "v162"])
    fpub(bfin)

    A("L_comb:")
    A("s_lshl_b32 s8, s86, 12"); A("s_add_u32 s56, s62, s8")
    A("s_lshl_b32 s8, s86, 6"); A("s_add_u32 s58, s63, s8")
    A("v_and_b32 v31, 32, v1")
    def cmid():
        A("s_lshl_b32 s59, s12, 3"); A("s_add_u32 s59, s59, s86"); A("s_lshl_b32 s59, s59, 3"); A("s_add_u32 s59, s59, s11"); A("s_lshl_b32 s59, s59, 9"); A(f"s_add_u32 s59, s59, {OF}")
        A("v_and_b32 v2, 31, v1"); A("v_lshrrev_b32 v30, 2, v31"); A("v_lshl_add_u32 v30, v2, 4, v30")
        A("s_lshl_b32 s60, s6, 2"); A("s_add_u32 s60, s60, s4"); A("s_lshl_b32 s60, s60, 3"); A("s_add_u32 s60, s60, s86"); A("s_lshl_b32 s60, s60, 2"); A(f"s_add_u32 s60, s60, {DT}")
        A("v_mov_b32 v101, v15")
    gather([ld4(80+4*k, "v31", "s58", k*16, lf) for k in range(2)] + [ld4(32+4*i, "v29", "s56", i*1024, lf) for i in range(4)], cnt="v167", mid=cmid)
    A("v_max3_f32 v16, v80, v82, v84"); A("v_max_f32 v16, v16, v86"); A("v_mov_b32 v17, v16")
    for i in range(4): A(f"v_lshlrev_b32 v{48+4*i}, 16, v{32+4*i}")
    A("v_permlane32_swap_b32 v16, v17"); A("v_max_f32 v16, v16, v17")
    for i in range(4): A(f"v_sub_f32 v{80+2*i}, v{80+2*i}, v16")
    for i in range(4): A(f"v_exp_f32 v{80+2*i}, v{80+2*i}")
    for i in range(4):
        A(f"v_and_b32 v{49+4*i}, 0xffff0000, v{32+4*i}"); A(f"v_lshlrev_b32 v{50+4*i}, 16, v{34+4*i}"); A(f"v_and_b32 v{51+4*i}, 0xffff0000, v{34+4*i}")
    A("v_add_f32 v16, v80, v82"); A("v_add_f32 v17, v84, v86"); A("v_add_f32 v16, v16, v17"); A("v_mov_b32 v17, v16")
    for i in range(4):
        for k in range(4):
            A(f"v_mul_f32 v{96+k}, v80, v{48+k}" if i == 0 else f"v_fmac_f32 v{96+k}, v{80+2*i}, v{48+4*i+k}")
        if i == 0:
            A("v_permlane32_swap_b32 v16, v17"); A("v_add_f32 v16, v16, v17"); A("v_rcp_f32 v16, v16")
    A("v_permlane32_swap_b32 v96, v98"); A("v_permlane32_swap_b32 v97, v99")
    A("v_add_f32 v96, v96, v98"); A("v_add_f32 v97, v97, v99")
    A("v_mul_f32 v96, v96, v16"); A("v_mul_f32 v97, v97, v16")
    A("v_cvt_pk_bf16_f32 v100, v96, v97")
    A("buffer_store_dwordx2 v[100:101], v30, s[44:47], s59 offen sc1")
    lstore([("s_mov_b64 exec, 1", "buffer_store_dword v15, v29, s[44:47], s60 offen")])
    A("s_setpc_b64 s[94:95]")
    A("L_hub:")
    role[0] = "H"
    modecheck()
    if opre:
        wait_lds("v7", opre)
        if opf: wait_lds("v8", opf)
        A("s_lshl_b32 s8, s9, 13"); A("s_add_u32 s56, s62, s8"); A("s_lshl_b32 s8, s9, 7"); A("s_add_u32 s58, s63, s8")
        A("v_lshlrev_b32 v2, 7, v1")
        A("buffer_load_dword v160, v2, s[44:47], s56 offen"); A("s_mov_b64 exec, 1"); A("buffer_load_dword v160, v29, s[44:47], s58 offen"); A("s_mov_b64 exec, -1")
    get_mode()
    wait_lds("v8", 6 if hflag == 1 else 5)
    stamp(3)
    A("s_add_u32 s86, s9, 4")
    if diag: A("v_mov_b32 v167, 0")
    A("s_call_b64 s[94:95], L_comb")
    if diag: A("v_mov_b32 v162, v167")
    stamp(5)
    wait_lds("v146", 8, off=256)
    def hfin():
        A("ds_read_b128 v[96:99], v147"); A("s_waitcnt lgkmcnt(0)")
    fpub(hfin)
    A("L_codeend:")

    body = A.render().replace(' nt lds', f' {sf} lds')
    out = HEADER
    out += f"; @launch grid=(256,1,1) block=(576,1,1) lds={LDS_BYTES}\n"
    out += DOC + '.amdgcn_target "amdgcn-amd-amdhsa--gfx950"\n.text\n'
    out += f".globl {NAME}\n.p2align 8\n.type {NAME},@function\n"
    out += body
    out += f""".section .rodata,"a"
.p2align 6
.amdhsa_kernel {NAME}
  .amdhsa_next_free_vgpr 168
  .amdhsa_next_free_sgpr 102
  .amdhsa_accum_offset 168
  .amdhsa_group_segment_fixed_size 0
  .amdhsa_kernarg_size 96
  .amdhsa_user_sgpr_count 2
  .amdhsa_user_sgpr_kernarg_segment_ptr 1
  .amdhsa_system_sgpr_workgroup_id_x 1
  .amdhsa_float_denorm_mode_32 3
.end_amdhsa_kernel
"""
    return out

if __name__ == "__main__":
    import json
    kw = json.loads(sys.argv[2]) if len(sys.argv) > 2 else {}
    open(sys.argv[1], "w").write(gen(**kw))
```
